```python
import torch

def _softmax(x, axis=-1):
    return torch.softmax(x, dim=axis)
def _gelu(x):
    return torch.nn.functional.gelu(x, approximate="tanh")
def _silu(x):
    return torch.nn.functional.silu(x)
def _sigmoid(x):
    return torch.sigmoid(x)
def _layernorm(x, axis=-1, eps=1e-5):
    m = x.mean(dim=axis, keepdim=True)
    v = x.var(dim=axis, keepdim=True, unbiased=False)
    return (x - m) / torch.sqrt(v + eps)
def _scatter_add(tgt, idx, src, axis=0):
    return tgt.clone().index_add_(axis, idx, src)
def _segment_sum(src, seg, n):
    out = torch.zeros((n,) + src.shape[1:], dtype=src.dtype)
    return out.index_add_(0, seg, src)
def _pad(x, pw):
    flat = tuple(v for pair in reversed(pw) for v in pair)
    return torch.nn.functional.pad(x, flat)

kernel_name = 'concat_heads__gqa_block_cached__gqa_block_cached__near_ridge'

def setup_inputs():

    _w = (lambda a: (lambda t: t.to(torch.bfloat16) if t.is_floating_point() else t)(torch.as_tensor(a)))
    def _A_setup():
        B, Sq, D = 32, 32, 640
        Hq, Hkv, Sk, Dh = 32, 32, 32, 128
        assert Hq % Hkv == 0, (Hq, Hkv)
        return {
            "x": _w((lambda *s: torch.randn(*s, dtype=torch.bfloat16) * 0.8)(B, Sq, D)),
            "k_cache": _w((lambda *s: torch.randn(*s, dtype=torch.bfloat16) * 0.8)(B, Hkv, Sk, Dh)),
            "v_cache": _w((lambda *s: torch.randn(*s, dtype=torch.bfloat16) * 0.05)(B, Hkv, Sk, Dh)),
            "wq": _w((lambda *s: torch.randn(*s, dtype=torch.bfloat16) * 0.8)(D, Hq * Dh) * (D ** -0.5)),
            "wo": _w((lambda *s: torch.randn(*s, dtype=torch.bfloat16) * 0.05)(Hq * Dh, D) * ((Hq * Dh) ** -0.5)),
        }
    _A_in = _A_setup()

    def _B_setup():
        B, Sq, D = 32, 32, 640
        Hq, Hkv, Sk, Dh = 32, 32, 32, 128
        assert Hq % Hkv == 0, (Hq, Hkv)
        return {
            "x": _w((lambda *s: torch.randn(*s, dtype=torch.bfloat16) * 0.8)(B, Sq, D)),
            "k_cache": _w((lambda *s: torch.randn(*s, dtype=torch.bfloat16) * 0.8)(B, Hkv, Sk, Dh)),
            "v_cache": _w((lambda *s: torch.randn(*s, dtype=torch.bfloat16) * 0.05)(B, Hkv, Sk, Dh)),
            "wq": _w((lambda *s: torch.randn(*s, dtype=torch.bfloat16) * 0.8)(D, Hq * Dh) * (D ** -0.5)),
            "wo": _w((lambda *s: torch.randn(*s, dtype=torch.bfloat16) * 0.05)(Hq * Dh, D) * ((Hq * Dh) ** -0.5)),
        }
    _B_in = _B_setup()

    return {
        "A_x": _A_in["x"],
        "A_k_cache": _A_in["k_cache"],
        "A_v_cache": _A_in["v_cache"],
        "A_wq": _A_in["wq"],
        "A_wo": _A_in["wo"],
        "B_x": _B_in["x"],
        "B_k_cache": _B_in["k_cache"],
        "B_v_cache": _B_in["v_cache"],
        "B_wq": _B_in["wq"],
        "B_wo": _B_in["wo"],
    }

def reference(A_x, A_k_cache, A_v_cache, A_wq, A_wo, B_x, B_k_cache, B_v_cache, B_wq, B_wo):
    def _A_ref(x, k_cache, v_cache, wq, wo):
        B, Sq, D = x.shape
        Hq, Dh = 32, 128
        Hkv = k_cache.shape[1]
        rep = Hq // Hkv
        q = (lambda x, *d: x.permute(*d))((x @ wq).reshape(B, Sq, Hq, Dh), 0, 2, 1, 3)
        k = (lambda x, n, axis: torch.repeat_interleave(x, n, dim=axis))(k_cache, rep, axis=1)
        v = (lambda x, n, axis: torch.repeat_interleave(x, n, dim=axis))(v_cache, rep, axis=1)
        scores = torch.einsum("bhqd,bhkd->bhqk", q, k) * (Dh ** -0.5)
        p = _softmax(scores, axis=-1)
        o = torch.einsum("bhqk,bhkd->bhqd", p, v)
        return (lambda x, *d: x.permute(*d))(o, 0, 2, 1, 3).reshape(B, Sq, Hq * Dh) @ wo

    def _B_ref(x, k_cache, v_cache, wq, wo):
        B, Sq, D = x.shape
        Hq, Dh = 32, 128
        Hkv = k_cache.shape[1]
        rep = Hq // Hkv
        q = (lambda x, *d: x.permute(*d))((x @ wq).reshape(B, Sq, Hq, Dh), 0, 2, 1, 3)
        k = (lambda x, n, axis: torch.repeat_interleave(x, n, dim=axis))(k_cache, rep, axis=1)
        v = (lambda x, n, axis: torch.repeat_interleave(x, n, dim=axis))(v_cache, rep, axis=1)
        scores = torch.einsum("bhqd,bhkd->bhqk", q, k) * (Dh ** -0.5)
        p = _softmax(scores, axis=-1)
        o = torch.einsum("bhqk,bhkd->bhqd", p, v)
        return (lambda x, *d: x.permute(*d))(o, 0, 2, 1, 3).reshape(B, Sq, Hq * Dh) @ wo

    a = _A_ref(A_x, A_k_cache, A_v_cache, A_wq, A_wo)
    b = _B_ref(B_x, B_k_cache, B_v_cache, B_wq, B_wo)
    return torch.concatenate([a, b], axis=-1)
```

```python
import re

REG_RE = re.compile(r'\b([vsa])(?:(\d+)|\[(\d+):(\d+)\])')


def regs_of(tok):
    out = set()
    tok = tok.strip()
    for m in REG_RE.finditer(tok):
        k = m.group(1)
        if m.group(2) is not None:
            out.add((k, int(m.group(2))))
        else:
            for i in range(int(m.group(3)), int(m.group(4)) + 1):
                out.add((k, i))
    if re.search(r'\bvcc\b', tok):
        out.add(('s', 'vcc'))
    if re.search(r'\bm0\b', tok):
        out.add(('s', 'm0'))
    if re.search(r'\bexec\b', tok):
        out.add(('s', 'exec'))
    return out


TRANS = ('v_exp_f32', 'v_log_f32', 'v_rcp_f32', 'v_rsq_f32', 'v_sqrt_f32', 'v_sin_f32', 'v_cos_f32')


class Ins:
    def __init__(self, text):
        self.text = text
        t = text.split(';')[0].strip()
        self.is_label = t.endswith(':')
        self.is_dir = t.startswith('.')
        self.op = t.split()[0] if t else ''
        rest = t[len(self.op):].strip()
        ops = [o.strip() for o in re.split(r',\s*(?![^\[]*\])', rest)] if rest else []
        self.ops = ops
        self.nop_before = 0
        self.lgkm_before = None
        op = self.op
        self.kind = 'other'
        self.w = set()
        self.r = set()
        R = regs_of
        if self.is_label or self.is_dir or not op:
            self.kind = 'none'
        elif op.startswith('v_mfma'):
            self.kind = 'mfma'
            self.D = R(ops[0]); self.A = R(ops[1]); self.B = R(ops[2]); self.C = R(ops[3])
            self.w = set(self.D); self.r = self.A | self.B | self.C
            self.passes = 8 if '32x32x16' in op else 4
        elif op.startswith('v_'):
            self.kind = 'valu'
            self.trans = any(op.startswith(x) for x in TRANS)
            if op.startswith('v_permlane') and 'swap' in op:
                self.w = R(ops[0]) | R(ops[1]); self.r = set(self.w)
            elif op.startswith('v_cmp'):
                self.w = R(ops[0]); self.r = set().union(*[R(o) for o in ops[1:]])
            elif op.startswith(('v_add_co', 'v_addc_co', 'v_sub_co', 'v_subb_co')):
                self.w = R(ops[0]) | R(ops[1]); self.r = set().union(*[R(o) for o in ops[2:]])
            elif op == 'v_nop':
                pass
            else:
                self.w = R(ops[0]); self.r = set().union(*[R(o) for o in ops[1:]]) if len(ops) > 1 else set()
                if op.startswith(('v_fmac', 'v_pk_fmac', 'v_dot2c')):
                    self.r |= self.w
            self.dpp = ('row_' in t or 'quad_perm' in t or 'dpp' in op)
        elif op.startswith('ds_'):
            self.kind = 'ds'
            if op.startswith(('ds_read', 'ds_bpermute', 'ds_permute', 'ds_swizzle')):
                self.w = R(ops[0]); self.r = set().union(*[R(o) for o in ops[1:]])
            else:
                self.r = set().union(*[R(o) for o in ops])
        elif op.startswith(('buffer_', 'global_')):
            self.kind = 'vmem'
            self.lds = bool(re.search(r'\blds\b', t)) or 'load_lds' in op
            allr = set().union(*[R(o) for o in ops]) if ops else set()
            if 'load' in op and not self.lds:
                self.w = R(ops[0]); self.r = set().union(*[R(o) for o in ops[1:]])
            elif 'atomic' in op and ('sc0' in t):
                self.w = R(ops[0]); self.r = allr
            else:
                self.r = allr
            if self.lds:
                self.r.add(('s', 'm0'))
            self.wide_store = ('store' in op and ('x4' in op or 'x3' in op))
            if self.wide_store:
                self.sdata = R(ops[0]) if op.startswith('buffer_') else R(ops[1])
        elif op == 's_nop':
            self.kind = 'nop'; self.n = int(ops[0], 0) + 1
        elif op == 's_waitcnt':
            self.kind = 'wait'
            m = re.search(r'lgkmcnt\((\d+)\)', t)
            self.lgkm = int(m.group(1)) if m else None
        elif op.startswith(('s_load', 's_buffer_load', 's_memtime', 's_memrealtime', 's_atomic')):
            self.kind = 'smem'
            self.w = R(ops[0]); self.r = set().union(*[R(o) for o in ops[1:]]) if len(ops) > 1 else set()
        elif op.startswith('s_'):
            self.kind = 'salu'
            if op.startswith(('s_cmp', 's_cbranch', 's_branch', 's_barrier', 's_endpgm', 's_setprio', 's_sleep', 's_bitcmp')):
                self.r = set().union(*[R(o) for o in ops]) if ops else set()
            else:
                self.w = R(ops[0]) if ops else set()
                self.r = set().union(*[R(o) for o in ops[1:]]) if len(ops) > 1 else set()
                if 'saveexec' in op:
                    self.w.add(('s', 'exec'))

    def states(self):
        if self.kind == 'none':
            return 0
        if self.kind == 'nop':
            return self.n
        return 1


def need_between(p, c):
    n = 0
    vw = {x for x in p.w if x[0] in 'va'}
    sw = {x for x in p.w if x[0] == 's'}
    if p.kind == 'valu':
        if c.kind == 'mfma' and vw & c.r:
            n = max(n, 2)
        if c.kind == 'valu':
            if p.trans and not c.trans and (vw & c.r):
                n = max(n, 1)
            if p.trans and c.trans and (vw & c.r):
                n = max(n, 1)
            if c.op.startswith('v_permlane') and (vw & c.r):
                n = max(n, 2)
            if c.op.startswith(('v_readfirstlane', 'v_readlane')) and (vw & c.r):
                n = max(n, 1)
            if c.dpp and (vw & c.r):
                n = max(n, 2)
            if sw & c.r:
                n = max(n, 4 if c.op.startswith(('v_readlane', 'v_writelane')) else 2)
            if ('s', 'exec') in sw:
                n = max(n, 5 if c.dpp else 4 if c.op.startswith(('v_read', 'v_permlane')) else 0)
        if c.kind == 'mfma' and ('s', 'exec') in sw:
            n = max(n, 4)
        if c.kind == 'vmem' and (sw & c.r):
            n = max(n, 5)
        if c.kind in ('salu', 'smem') and (sw & c.r):
            n = max(n, 4)
        if p.trans and c.kind in ('vmem', 'ds') and (vw & c.r):
            n = max(n, 1)
    if p.kind == 'mfma':
        big = {8: 12, 4: 8}[p.passes]
        if c.kind == 'mfma':
            if p.D & (c.A | c.B):
                n = max(n, big)
            if p.D & c.C:
                if p.D == c.C and p.passes == c.passes:
                    pass
                else:
                    n = max(n, big - 2)
            elif p.D & c.D:
                n = max(n, big)
        elif c.kind in ('valu', 'vmem', 'ds'):
            if p.D & (c.r | c.w):
                n = max(n, big)
            if c.kind == 'valu' and (p.C & c.w):
                n = max(n, {8: 7, 4: 3}[p.passes])
    if p.kind == 'salu':
        if ('s', 'm0') in p.w and c.kind == 'vmem' and c.lds:
            n = max(n, 1)
        if ('s', 'exec') in p.w and c.kind in ('valu',) and getattr(c, 'dpp', False):
            n = max(n, 1)
    if p.kind == 'vmem' and getattr(p, 'wide_store', False):
        if p.sdata & c.w:
            n = max(n, 2)
    return n


class Prog:
    def __init__(self):
        self.ins = []
        self.traces = []

    def e(self, text):
        for line in text.split('\n'):
            line = line.strip()
            if not line:
                continue
            self.ins.append(Ins(line))

    def pos(self):
        return len(self.ins)

    def add_trace(self, ranges):
        self.traces.append(ranges)

    def _trace_idx(self, ranges):
        out = []
        for a, b in ranges:
            out.extend(range(a, b))
        return out

    def fix_lgkm(self):
        changed = True
        while changed:
            changed = False
            for tr in self.traces:
                pend = []
                for i in self._trace_idx(tr):
                    c = self.ins[i]
                    if c.kind == 'none':
                        continue
                    if c.lgkm_before is not None:
                        pend = pend[len(pend) - c.lgkm_before:] if c.lgkm_before < len(pend) else pend
                        if c.lgkm_before == 0:
                            pend = []
                    if c.kind == 'wait':
                        if c.lgkm is not None:
                            if c.lgkm == 0:
                                pend = []
                            elif c.lgkm < len(pend):
                                pend = pend[len(pend) - c.lgkm:]
                        continue
                    touch = c.r | c.w
                    need = None
                    for k, (dst, smem) in enumerate(pend):
                        if dst & touch:
                            n = 0 if (smem or any(s for _, s in pend)) else len(pend) - 1 - k
                            need = n if need is None else min(need, n)
                    if need is not None:
                        need = min(need, 15)
                        if c.lgkm_before is None or need < c.lgkm_before:
                            c.lgkm_before = need
                            changed = True
                        pend = pend[len(pend) - need:] if need > 0 else []
                    if c.kind == 'ds':
                        pend.append((set(c.w), False))
                        if len(pend) > 15:
                            pass
                    elif c.kind == 'smem':
                        pend.append((set(c.w), True))

    def fix_hazards(self):
        W = 24
        changed = True
        while changed:
            changed = False
            for tr in self.traces:
                idx = [i for i in self._trace_idx(tr) if self.ins[i].kind != 'none']
                for n, i in enumerate(idx):
                    c = self.ins[i]
                    dist = c.nop_before + (1 if c.lgkm_before is not None else 0)
                    k = n - 1
                    while k >= 0 and dist < W:
                        p = self.ins[idx[k]]
                        req = need_between(p, c)
                        if req > dist:
                            c.nop_before += req - dist
                            dist = req
                            changed = True
                        dist += p.states() + p.nop_before + (1 if p.lgkm_before is not None else 0)
                        k -= 1

    def text(self):
        self.fix_lgkm()
        self.fix_hazards()
        out = []
        for c in self.ins:
            if c.lgkm_before is not None:
                out.append(f'    s_waitcnt lgkmcnt({c.lgkm_before})')
            n = c.nop_before
            while n > 0:
                k = min(n, 16)
                out.append(f'    s_nop {k - 1}')
                n -= k
            if c.is_label or c.is_dir:
                out.append(c.text)
            else:
                out.append('    ' + c.text)
        return '\n'.join(out) + '\n'


def v(a, n=1):
    return f'v{a}' if n == 1 else f'v[{a}:{a + n - 1}]'


def s(a, n=1):
    return f's{a}' if n == 1 else f's[{a}:{a + n - 1}]'
```

```python
import sys, math, struct
from asmlib import Prog, v, s

NAME = 'concat_heads__gqa_block_cached__gqa_block_cached__near_ridge'

def f32hex(x):
    return '0x%08x' % struct.unpack('<I', struct.pack('<f', x))[0]

class Opt:
    touch = True
    nt_touch = False
    nt_dma = False
    nt_kv = False
    stamps = False
    extra = []

WS_P = 0
WS_PART = 4 << 20
WS_STAMP = 64 << 20
X_BYTES = 1024 * 640 * 2
KV_BYTES = 32 * 32 * 32 * 128 * 2
W_BYTES = 640 * 4096 * 2
OUT_BYTES = 1024 * 1280 * 2

HEADER = open('cdna_kernels/%s.s.ref' % NAME).read().split('; Override launch')[0]


def kernel_header(p, name):
    p.e(f'.globl {name}\n.p2align 8\n.type {name},@function\n{name}:')


def kd(name, vgpr=256, sgpr=96):
    acc = (vgpr + 3) // 4 * 4
    return f'''.p2align 6
.amdhsa_kernel {name}
  .amdhsa_next_free_vgpr {vgpr}
  .amdhsa_next_free_sgpr {sgpr}
  .amdhsa_accum_offset {acc}
  .amdhsa_group_segment_fixed_size 0
  .amdhsa_kernarg_size 104
  .amdhsa_user_sgpr_count 2
  .amdhsa_user_sgpr_kernarg_segment_ptr 1
  .amdhsa_system_sgpr_workgroup_id_x 1
.end_amdhsa_kernel
'''


def srd(p, d, base_lo, base_hi, off_s, size_total):
    p.e(f's_add_u32 {s(d)}, {s(base_lo)}, {s(off_s)}')
    p.e(f's_addc_u32 {s(d+1)}, {s(base_hi)}, 0')
    p.e(f's_sub_u32 {s(d+2)}, {size_total}, {s(off_s)}')
    p.e(f's_mov_b32 {s(d+3)}, 0x20000')


def stamp(p, o, slot, sreg=84):
    if o.stamps:
        p.e(f's_memtime {s(sreg + 2 * 0, 2)}')
        p.e('s_waitcnt lgkmcnt(0)')
        p.e(f'v_writelane_b32 v255, {s(sreg)}, {slot}')


def gen_k1(p, o):
    name = 'k1_kernel'
    kernel_header(p, name)
    t0 = p.pos()
    S_BR, S_XQ, S_BG, S_HP, S_WV, S_T = 26, 27, 28, 29, 30, 31
    SRD_X, SRD_W, SRD_K, SRD_P = 32, 36, 40, 44
    S_SLOT, S_SX, S_SW, S_CNT, S_DELTA, S_C = 48, 49, 50, 51, 52, 53
    p.e('s_cmp_ge_u32 s2, 256')
    p.e('s_cbranch_scc1 L_k1_end')
    p.e('s_load_dwordx8 s[8:15], s[0:1], 0')
    p.e('s_load_dwordx8 s[16:23], s[0:1], 40')
    p.e('s_load_dwordx2 s[24:25], s[0:1], 96')
    p.e('v_lshrrev_b32 v1, 6, v0')
    p.e('v_and_b32 v2, 63, v0')
    p.e(f'v_readfirstlane_b32 {s(S_WV)}, v1')
    p.e(f's_and_b32 {s(S_T)}, s2, 7')
    p.e(f's_lshr_b32 {s(S_BR)}, {s(S_T)}, 2')
    p.e(f's_and_b32 {s(S_XQ)}, {s(S_T)}, 3')
    p.e(f's_lshr_b32 {s(S_BG)}, s2, 5')
    p.e(f's_lshr_b32 {s(S_T)}, s2, 3')
    p.e(f's_and_b32 {s(S_HP)}, {s(S_T)}, 3')
    p.e('s_waitcnt lgkmcnt(0)')
    p.e(f's_cmp_eq_u32 {s(S_BR)}, 0')
    p.e('s_cselect_b64 s[8:9], s[8:9], s[16:17]')
    p.e('s_cselect_b64 s[10:11], s[10:11], s[18:19]')
    p.e('s_cselect_b64 s[14:15], s[14:15], s[22:23]')
    p.e(f's_mul_i32 {s(S_T)}, {s(S_BG)}, {128 * 1280}')
    srd(p, SRD_X, 8, 9, S_T, X_BYTES)
    p.e(f's_lshl_b32 s54, {s(S_XQ)}, 3')
    p.e(f's_lshl_b32 {s(S_T)}, {s(S_HP)}, 1')
    p.e(f's_add_u32 s54, s54, {s(S_T)}')
    p.e(f's_lshl_b32 {s(S_T)}, s54, 8')
    srd(p, SRD_W, 14, 15, S_T, W_BYTES)
    p.e(f's_lshl_b32 s55, {s(S_BG)}, 7')
    p.e('s_add_u32 s55, s55, s54')
    p.e(f's_lshl_b32 {s(S_T)}, s55, 13')
    srd(p, SRD_K, 10, 11, S_T, KV_BYTES)
    p.e(f's_lshl_b32 {s(S_T)}, {s(S_BR)}, 10')
    p.e(f's_add_u32 {s(S_T)}, {s(S_T)}, s55')
    p.e(f's_lshl_b32 {s(S_T)}, {s(S_T)}, 11')
    srd(p, SRD_P, 24, 25, S_T, 4 << 20)
    p.e(f's_cmp_ge_u32 {s(S_WV)}, 4')
    p.e('s_cbranch_scc1 L_k1_loader')
    t1 = p.pos()

    SLOT = 49152
    ACC = 0; AF = 128; BF = 160; AA = 176; BA = 180; KA = 184; KF1 = 192; SA0 = 224; SA1 = 240
    TMP = 192
    lane = 'v2'
    nt_t = ' nt' if o.nt_touch else ''
    p.e('v_mov_b32 v200, v2')
    L = 'v200'
    if o.touch:
        p.e(f's_cmp_eq_u32 {s(S_WV)}, 0')
        p.e('s_cbranch_scc0 L_k1_t1')
        p.e(f'v_lshrrev_b32 v201, 5, {L}')
        p.e('v_lshlrev_b32 v201, 6, v201')
        p.e(f'v_bfe_u32 v202, {L}, 2, 3')
        p.e('v_add_u32 v201, v201, v202')
        p.e(f's_lshl_b32 {s(S_T)}, {s(S_BG)}, 3')
        p.e(f'v_add_u32 v201, {s(S_T)}, v201')
        p.e('v_lshlrev_b32 v201, 13, v201')
        p.e(f'v_and_b32 v202, 3, {L}')
        p.e('v_lshl_add_u32 v201, v202, 7, v201')
        for i in range(5):
            p.e(f's_mov_b32 {s(S_T)}, {i * 128 * 8192}')
            p.e(f'buffer_load_dword v{204 + i}, v201, {s(SRD_W, 4)}, {s(S_T)} offen{nt_t}')
        p.e('s_branch L_k1_tdone')
        p.e('L_k1_t1:')
        p.e(f's_cmp_eq_u32 {s(S_WV)}, 1')
        p.e('s_cbranch_scc0 L_k1_t2')
        p.e(f'v_and_b32 v201, 31, {L}')
        p.e(f's_lshl_b32 {s(S_T)}, {s(S_HP)}, 5')
        p.e(f'v_add_u32 v201, {s(S_T)}, v201')
        p.e('v_mul_u32_u24 v201, 1280, v201')
        p.e(f'v_lshrrev_b32 v202, 5, {L}')
        p.e('v_lshl_add_u32 v201, v202, 7, v201')
        for i in range(5):
            p.e(f'buffer_load_dword v{204 + i}, v201, {s(SRD_X, 4)}, 0 offen offset:{i * 256}{nt_t}')
        p.e('s_branch L_k1_tdone')
        p.e('L_k1_t2:')
        p.e(f'v_lshlrev_b32 v201, 7, {L}')
        p.e(f's_sub_u32 {s(S_T)}, {s(S_WV)}, 2')
        p.e(f's_lshl_b32 {s(S_T)}, {s(S_T)}, 19')
        p.e(f'v_add_u32 v201, {s(S_T)}, v201')
        p.e('s_sleep 8')
        for i in range(4):
            p.e(f's_mov_b32 {s(S_T)}, {((i >> 1) * 32 + (i & 1)) * 8192}')
            p.e(f'buffer_load_dword v{204 + i}, v201, {s(SRD_K, 4)}, {s(S_T)} offen{nt_t}')
        p.e('L_k1_tdone:')

    p.e(f's_and_b32 s56, {s(S_WV)}, 1')
    p.e(f's_lshr_b32 s57, {s(S_WV)}, 1')
    p.e(f'v_bfe_u32 v210, {L}, 2, 2')
    p.e(f'v_lshrrev_b32 v211, 5, {L}')
    p.e('v_lshl_add_u32 v212, v211, 3, v210')
    p.e('v_lshlrev_b32 v212, 9, v212')
    p.e(f'v_bfe_u32 v213, {L}, 4, 1')
    p.e('v_lshl_add_u32 v212, v213, 5, v212')
    p.e(f'v_and_b32 v213, 1, {L}')
    p.e('v_lshl_add_u32 v212, v213, 4, v212')
    p.e(f'v_bfe_u32 v213, {L}, 1, 1')
    p.e('v_lshl_add_u32 v212, v213, 3, v212')
    p.e('s_lshl_b32 s58, s56, 8')
    p.e('s_add_u32 s58, s58, 16384')
    p.e('v_add_u32 v212, s58, v212')
    for j in range(4):
        p.e(f'v_xor_b32 v213, {j}, v210')
        p.e(f'v_lshl_add_u32 {v(AA + j)}, v213, 6, v212')
    p.e(f'v_and_b32 v213, 31, {L}')
    p.e('v_bfe_u32 v214, v213, 1, 3')
    p.e('v_xor_b32 v214, v214, v211')
    p.e('v_lshlrev_b32 v214, 4, v214')
    p.e('v_lshl_add_u32 v214, v213, 7, v214')
    p.e('s_lshl_b32 s58, s57, 13')
    p.e('v_add_u32 v214, s58, v214')
    for t in range(4):
        p.e(f'v_xor_b32 {v(BA + t)}, {t * 32}, v214')
    p.e('v_and_b32 v214, 15, v213')
    p.e('v_xor_b32 v214, v214, v211')
    p.e('v_lshlrev_b32 v214, 4, v214')
    p.e('v_lshl_add_u32 v214, v213, 8, v214')
    p.e(f's_lshl_b32 s58, {s(S_WV)}, 13')
    p.e(f's_add_u32 s58, s58, {SLOT}')
    p.e('v_add_u32 v214, s58, v214')
    for t in range(8):
        p.e(f'v_xor_b32 {v(KA + t)}, {t * 32}, v214')
    p.e(f'v_lshlrev_b32 v223, 4, {L}')
    for r in range(128):
        p.e(f'v_mov_b32 {v(ACC + r)}, 0')
    p.e(f's_mov_b32 {s(S_CNT)}, 0')
    p.e(f's_mov_b32 {s(S_SLOT)}, 0')
    p.e(f's_mov_b32 s70, {SLOT}')

    def acc(j, bb):
        return ACC + (j * 2 + bb) * 16

    def reads(t, buf):
        out = []
        out.append(f'ds_read_b128 {v(BF + buf * 8, 4)}, {v(BA + t)}')
        for j in range(4):
            for u in range(2):
                out.append(f'ds_read_b64_tr_b16 {v(AF + buf * 16 + j * 4 + u * 2, 2)}, {v(AA + j)} offset:{(16 * t + 4 * u) * 512}')
            if j == 0:
                out.append(f'ds_read_b128 {v(BF + buf * 8 + 4, 4)}, {v(BA + t)} offset:4096')
        return out

    def mfmas(buf):
        return [f'v_mfma_f32_32x32x16_bf16 {v(acc(j, bb), 16)}, {v(AF + buf * 16 + j * 4, 4)}, {v(BF + buf * 8 + bb * 4, 4)}, {v(acc(j, bb), 16)}'
                for j in range(4) for bb in range(2)]

    def interleave(ms, rs, per_gap=2):
        rs = list(rs)
        for m in ms:
            p.e(m)
            for _ in range(per_gap):
                if rs:
                    p.e(rs.pop(0))
        for r in rs:
            p.e(r)

    p.e('s_barrier')
    for r in reads(0, 0):
        p.e(r)
    t2 = p.pos()
    p.e('L_k1_loop:')
    interleave(mfmas(0), reads(1, 1))
    interleave(mfmas(1), reads(2, 0))
    ms = mfmas(0); rs = reads(3, 1)
    adv = [f'v_add_u32 {v(AA + j)}, {s(S_DELTA)}, {v(AA + j)}' for j in range(4)] + \
          [f'v_add_u32 {v(BA + t)}, {s(S_DELTA)}, {v(BA + t)}' for t in range(4)]
    sal = [f's_add_u32 {s(S_SLOT)}, {s(S_SLOT)}, 1', f's_cmp_eq_u32 {s(S_SLOT)}, 3',
           f's_cselect_b32 {s(S_DELTA)}, {-2 * SLOT & 0xffffffff}, s70', f's_cselect_b32 {s(S_SLOT)}, 0, {s(S_SLOT)}']
    for i, m in enumerate(ms):
        p.e(m)
        if i < 5:
            p.e(rs[2 * i]); p.e(rs[2 * i + 1])
            if i == 4:
                for x in sal:
                    p.e(x)
        elif i == 5:
            for x in adv[:4]:
                p.e(x)
        elif i == 6:
            for x in adv[4:]:
                p.e(x)
    p.e('s_waitcnt lgkmcnt(0)')
    p.e('s_barrier')
    ms = mfmas(1); rs = reads(0, 0)
    p.e(rs[0]); p.e(rs[1]); p.e(rs[2])
    interleave(ms, rs[3:])
    p.e(f's_add_u32 {s(S_CNT)}, {s(S_CNT)}, 1')
    p.e(f's_cmp_lt_u32 {s(S_CNT)}, 10')
    p.e('s_cbranch_scc1 L_k1_loop')
    t3 = p.pos()
    p.e('s_waitcnt vmcnt(0) lgkmcnt(0)')
    p.e('v_mov_b32 v176, v223')
    for t in range(8):
        p.e(f'ds_read_b128 {v(AF + 4 * t, 4)}, {v(KA + t)}')

    def cvtq(bb):
        out = []
        for j in range(4):
            b = acc(j, bb)
            for r in range(8):
                out.append(f'v_cvt_pk_bf16_f32 {v(b + r)}, {v(b + 2 * r)}, {v(b + 2 * r + 1)}')
        return out

    def smf(bb, kf, sa):
        out = []
        for t in range(8):
            q = acc(t >> 1, bb) + 4 * (t & 1)
            c = '0' if t == 0 else v(sa, 16)
            out.append(f'v_mfma_f32_32x32x16_bf16 {v(sa, 16)}, {v(kf + 4 * t, 4)}, {v(q, 4)}, {c}')
        return out

    for x in cvtq(0):
        p.e(x)
    p.e('s_barrier')
    for t in range(8):
        p.e(f'ds_read_b128 {v(KF1 + 4 * t, 4)}, {v(KA + t)} offset:{SLOT}')
    interleave(smf(0, AF, SA0), cvtq(1), per_gap=4)
    c = (128 ** -0.5) * math.log2(math.e)
    p.e(f's_mov_b32 {s(S_C)}, {f32hex(c)}')

    def softmax(sa, ta):
        o_ = []
        S = lambda r: v(sa + r)
        T = lambda r: v(ta + r)
        o_.append(f'v_max3_f32 {T(0)}, {S(0)}, {S(1)}, {S(2)}')
        o_.append(f'v_max3_f32 {T(1)}, {S(3)}, {S(4)}, {S(5)}')
        o_.append(f'v_max3_f32 {T(2)}, {S(6)}, {S(7)}, {S(8)}')
        o_.append(f'v_max3_f32 {T(3)}, {S(9)}, {S(10)}, {S(11)}')
        o_.append(f'v_max3_f32 {T(0)}, {T(0)}, {S(12)}, {S(13)}')
        o_.append(f'v_max3_f32 {T(1)}, {T(1)}, {S(14)}, {S(15)}')
        o_.append(f'v_max3_f32 {T(0)}, {T(0)}, {T(2)}, {T(3)}')
        o_.append(f'v_max_f32 {T(0)}, {T(0)}, {T(1)}')
        o_.append(f'v_mov_b32 {T(1)}, {T(0)}')
        o_.append(f'v_permlane32_swap_b32 {T(0)}, {T(1)}')
        o_.append(f'v_max_f32 {T(0)}, {T(0)}, {T(1)}')
        o_.append(f'v_mul_f32 {T(0)}, {s(S_C)}, {T(0)}')
        for r in range(16):
            o_.append(f'v_fma_f32 {S(r)}, {S(r)}, {s(S_C)}, -{T(0)}')
        for r in range(16):
            o_.append(f'v_exp_f32 {S(r)}, {S(r)}')
        o_.append(f'v_add_f32 {T(0)}, {S(0)}, {S(1)}')
        o_.append(f'v_add_f32 {T(1)}, {S(2)}, {S(3)}')
        o_.append(f'v_add_f32 {T(2)}, {S(4)}, {S(5)}')
        o_.append(f'v_add_f32 {T(3)}, {S(6)}, {S(7)}')
        for r in range(8, 16):
            o_.append(f'v_add_f32 {T(r & 3)}, {T(r & 3)}, {S(r)}')
        o_.append(f'v_add_f32 {T(0)}, {T(0)}, {T(1)}')
        o_.append(f'v_add_f32 {T(2)}, {T(2)}, {T(3)}')
        o_.append(f'v_add_f32 {T(0)}, {T(0)}, {T(2)}')
        o_.append(f'v_mov_b32 {T(1)}, {T(0)}')
        o_.append(f'v_permlane32_swap_b32 {T(0)}, {T(1)}')
        o_.append(f'v_add_f32 {T(0)}, {T(0)}, {T(1)}')
        o_.append(f'v_rcp_f32 {T(0)}, {T(0)}')
        for r in range(16):
            o_.append(f'v_mul_f32 {S(r)}, {S(r)}, {T(0)}')
        for r in range(8):
            o_.append(f'v_cvt_pk_bf16_f32 {S(r)}, {S(2 * r)}, {S(2 * r + 1)}')
        return o_

    p.e('s_lshl_b32 s58, s57, 6')
    p.e('s_add_u32 s58, s58, s56')
    p.e('s_lshl_b32 s58, s58, 11')
    p.e(f's_add_u32 s59, s58, {32 * 2048}')
    sm1 = smf(1, KF1, SA1)
    sm0 = softmax(SA0, 160)
    p.e(sm1[0]); p.e(sm1[1])
    interleave(sm1[2:], sm0, per_gap=5)
    p.e(f'buffer_store_dwordx4 {v(SA0, 4)}, v176, {s(SRD_P, 4)}, s58 offen')
    p.e(f'buffer_store_dwordx4 {v(SA0 + 4, 4)}, v176, {s(SRD_P, 4)}, s58 offen offset:1024')
    for x in softmax(SA1, 164):
        p.e(x)
    p.e(f'buffer_store_dwordx4 {v(SA1, 4)}, v176, {s(SRD_P, 4)}, s59 offen')
    p.e(f'buffer_store_dwordx4 {v(SA1 + 4, 4)}, v176, {s(SRD_P, 4)}, s59 offen offset:1024')
    p.e('s_endpgm')
    t4 = p.pos()
    p.add_trace([(t0, t1), (t1, t2), (t2, t3), (t2, t3), (t3, t4)])

    p.e('L_k1_loader:')
    l0 = p.pos()
    XO = 10; WO = 14; KO = 22
    nt_d = ' nt' if o.nt_dma else ''
    nt_k = ' nt' if o.nt_kv else ''
    p.e(f's_sub_u32 s56, {s(S_WV)}, 4')
    p.e('v_lshrrev_b32 v3, 3, v2')
    p.e('s_lshl_b32 s57, s56, 5')
    p.e('v_add_u32 v3, s57, v3')
    p.e('v_and_b32 v4, 7, v2')
    for j in range(4):
        p.e(f'v_add_u32 v5, {8 * j}, v3')
        p.e('v_bfe_u32 v6, v5, 1, 3')
        p.e('v_xor_b32 v6, v6, v4')
        p.e('v_mul_u32_u24 v5, 1280, v5')
        p.e('v_lshl_add_u32 v5, v6, 4, v5')
        p.e(f'v_subrev_u32 {v(XO + j)}, {1024 * j}, v5')
    p.e('v_lshrrev_b32 v3, 5, v2')
    p.e('s_lshl_b32 s57, s56, 4')
    p.e('v_add_u32 v3, s57, v3')
    p.e('v_and_b32 v4, 31, v2')
    for j in range(8):
        p.e(f'v_add_u32 v5, {2 * j}, v3')
        p.e('v_and_b32 v6, 3, v5')
        p.e('v_lshlrev_b32 v6, 2, v6')
        p.e('v_xor_b32 v6, v6, v4')
        p.e('v_lshlrev_b32 v5, 13, v5')
        p.e('v_lshl_add_u32 v5, v6, 4, v5')
        p.e(f'v_subrev_u32 {v(WO + j)}, {1024 * (j & 3)}, v5')
    p.e('s_lshl_b32 s60, s56, 12')
    p.e('s_lshl_b32 s61, s56, 13')
    p.e('s_add_u32 s61, s61, 16384')
    p.e(f's_mov_b32 {s(S_SLOT)}, 0')
    p.e(f's_mov_b32 {s(S_SX)}, 0')
    p.e(f's_mov_b32 {s(S_SW)}, 0')
    p.e(f's_mov_b32 {s(S_CNT)}, 0')
    l1 = p.pos()
    p.e('L_k1_lloop:')
    p.e(f's_cmp_lt_u32 {s(S_CNT)}, 3')
    p.e('s_cbranch_scc1 L_k1_lissue')
    p.e(f's_cmp_eq_u32 {s(S_CNT)}, 3')
    p.e('s_cbranch_scc0 L_k1_lw')
    p.e('s_waitcnt vmcnt(24)')
    p.e('s_barrier')
    p.e('L_k1_lw:')
    p.e('s_waitcnt vmcnt(12)')
    p.e('s_barrier')
    p.e('L_k1_lissue:')
    p.e(f's_add_u32 m0, {s(S_SLOT)}, s61')
    for j in range(4):
        p.e(f'buffer_load_dwordx4 {v(WO + j)}, {s(SRD_W, 4)}, {s(S_SW)} offen offset:{1024 * j} lds{nt_d}')
    p.e(f's_add_u32 m0, {s(S_SLOT)}, s60')
    for j in range(4):
        p.e(f'buffer_load_dwordx4 {v(XO + j)}, {s(SRD_X, 4)}, {s(S_SX)} offen offset:{1024 * j} lds{nt_d}')
    p.e(f's_add_u32 s62, {s(S_SLOT)}, s61')
    p.e('s_add_u32 m0, s62, 4096')
    for j in range(4):
        p.e(f'buffer_load_dwordx4 {v(WO + 4 + j)}, {s(SRD_W, 4)}, {s(S_SW)} offen offset:{1024 * j} lds{nt_d}')
    p.e(f's_add_u32 {s(S_SX)}, {s(S_SX)}, 128')
    p.e(f's_add_u32 {s(S_SW)}, {s(S_SW)}, {64 * 8192}')
    p.e(f's_add_u32 {s(S_SLOT)}, {s(S_SLOT)}, {SLOT}')
    p.e(f's_cmp_eq_u32 {s(S_SLOT)}, {3 * SLOT}')
    p.e(f's_cselect_b32 {s(S_SLOT)}, 0, {s(S_SLOT)}')
    p.e(f's_add_u32 {s(S_CNT)}, {s(S_CNT)}, 1')
    p.e(f's_cmp_lt_u32 {s(S_CNT)}, 10')
    p.e('s_cbranch_scc1 L_k1_lloop')
    l2 = p.pos()
    p.e('v_lshrrev_b32 v3, 4, v2')
    p.e('v_and_b32 v4, 15, v2')
    for jj in range(4):
        p.e(f'v_add_u32 v5, {4 * jj}, v3')
        p.e('v_xor_b32 v6, v5, v4')
        p.e('v_lshlrev_b32 v6, 4, v6')
        p.e(f'v_lshl_add_u32 {v(KO + jj)}, v3, 8, v6')
    p.e('s_and_b32 s57, s56, 1')
    p.e('s_lshr_b32 s58, s56, 1')
    p.e('s_lshl_b32 s58, s58, 6')
    p.e('s_add_u32 s58, s58, s57')
    p.e('s_lshl_b32 s58, s58, 13')
    p.e('s_lshl_b32 s59, s56, 13')

    def kload(slot_base, extra):
        for half in range(2):
            p.e(f's_add_u32 m0, s59, {slot_base + half * 4096}')
            p.e(f's_add_u32 s62, s58, {extra + half * 4096}')
            for jj in range(4):
                p.e(f'buffer_load_dwordx4 {v(KO + jj)}, {s(SRD_K, 4)}, s62 offen offset:{1024 * jj} lds{nt_k}')

    p.e('s_waitcnt vmcnt(12)')
    p.e('s_barrier')
    kload(SLOT, 0)
    p.e('s_waitcnt vmcnt(8)')
    p.e('s_barrier')
    kload(2 * SLOT, 32 * 8192)
    p.e('s_waitcnt vmcnt(8)')
    p.e('s_barrier')
    p.e('s_waitcnt vmcnt(0)')
    p.e('s_barrier')
    p.e('L_k1_end:')
    p.e('s_endpgm')
    l3 = p.pos()
    p.add_trace([(t0, t1), (l0, l1), (l1, l2), (l1, l2), (l2, l3)])
    return name


def gen_k2(p, o):
    name = 'k2_kernel'
    kernel_header(p, name)
    t0 = p.pos()
    S_BR, S_XQ, S_BG, S_CT, S_WV, S_T = 26, 27, 28, 29, 30, 31
    SRD_V, SRD_W, SRD_P, SRD_O = 32, 36, 40, 44
    S_CNT, S_DELTA = 51, 52
    STG = 36864; VOFF = 20480; PBUF = 4 * STG
    p.e('s_cmp_ge_u32 s2, 256')
    p.e('s_cbranch_scc1 L_k2_end')
    p.e('s_load_dwordx2 s[8:9], s[0:1], 16')
    p.e('s_load_dwordx2 s[10:11], s[0:1], 32')
    p.e('s_load_dwordx2 s[16:17], s[0:1], 56')
    p.e('s_load_dwordx2 s[18:19], s[0:1], 72')
    p.e('s_load_dwordx2 s[24:25], s[0:1], 96')
    p.e('v_lshrrev_b32 v1, 6, v0')
    p.e('v_and_b32 v2, 63, v0')
    p.e(f'v_readfirstlane_b32 {s(S_WV)}, v1')
    p.e(f's_and_b32 {s(S_T)}, s2, 7')
    p.e(f's_lshr_b32 {s(S_BR)}, {s(S_T)}, 2')
    p.e(f's_and_b32 {s(S_XQ)}, {s(S_T)}, 3')
    p.e(f's_lshr_b32 {s(S_BG)}, s2, 5')
    p.e(f's_lshr_b32 {s(S_T)}, s2, 3')
    p.e(f's_and_b32 {s(S_CT)}, {s(S_T)}, 3')
    p.e('s_waitcnt lgkmcnt(0)')
    p.e(f's_cmp_eq_u32 {s(S_BR)}, 0')
    p.e('s_cselect_b64 s[8:9], s[8:9], s[16:17]')
    p.e('s_cselect_b64 s[10:11], s[10:11], s[18:19]')
    p.e(f's_lshl_b32 s55, {s(S_BG)}, 7')
    p.e(f's_lshl_b32 {s(S_T)}, {s(S_XQ)}, 3')
    p.e(f's_add_u32 s55, s55, {s(S_T)}')
    p.e(f's_lshl_b32 {s(S_T)}, s55, 13')
    srd(p, SRD_V, 8, 9, S_T, KV_BYTES)
    p.e(f's_mul_i32 {s(S_T)}, {s(S_XQ)}, {1024 * 1280}')
    p.e(f's_mul_i32 s54, {s(S_CT)}, 320')
    p.e(f's_add_u32 {s(S_T)}, {s(S_T)}, s54')
    srd(p, SRD_W, 10, 11, S_T, W_BYTES)
    p.e(f's_lshl_b32 {s(S_T)}, {s(S_BR)}, 10')
    p.e(f's_add_u32 {s(S_T)}, {s(S_T)}, s55')
    p.e(f's_lshl_b32 {s(S_T)}, {s(S_T)}, 11')
    srd(p, SRD_P, 24, 25, S_T, 4 << 20)
    p.e(f's_lshl_b32 {s(S_T)}, {s(S_BR)}, 3')
    p.e(f's_add_u32 {s(S_T)}, {s(S_T)}, {s(S_BG)}')
    p.e(f's_lshl_b32 {s(S_T)}, {s(S_T)}, 2')
    p.e(f's_add_u32 {s(S_T)}, {s(S_T)}, {s(S_CT)}')
    p.e(f's_lshl_b32 {s(S_T)}, {s(S_T)}, 2')
    p.e(f's_and_b32 s54, {s(S_WV)}, 3')
    p.e(f's_add_u32 {s(S_T)}, {s(S_T)}, s54')
    p.e(f's_lshl_b32 {s(S_T)}, {s(S_T)}, 2')
    p.e(f's_add_u32 {s(S_T)}, {s(S_T)}, {s(S_XQ)}')
    p.e(f's_mul_i32 {s(S_T)}, {s(S_T)}, 20480')
    p.e(f's_add_u32 {s(S_T)}, {s(S_T)}, {WS_PART}')
    srd(p, SRD_O, 24, 25, S_T, WS_PART + 1024 * 20480)
    p.e(f's_cmp_ge_u32 {s(S_WV)}, 4')
    p.e('s_cbranch_scc1 L_k2_loader')
    t1 = p.pos()

    ACC = 0; OA = 80; OB = 112; FR = 144; NR = 12; PF = 192; WA = 200; VA = 201; PA = 203; LN16 = 204
    L = 'v210'
    nt_t = ' nt' if o.nt_touch else ''
    p.e(f'v_mov_b32 {L}, v2')
    if o.touch:
        p.e(f's_cmp_ge_u32 {s(S_WV)}, 2')
        p.e('s_cbranch_scc1 L_k2_t1')
        p.e(f'v_lshlrev_b32 v211, 7, {L}')
        p.e(f's_lshl_b32 {s(S_T)}, {s(S_CT)}, 18')
        p.e(f's_lshl_b32 s54, {s(S_WV)}, 13')
        p.e(f's_add_u32 {s(S_T)}, {s(S_T)}, s54')
        p.e(f'v_add_u32 v211, {s(S_T)}, v211')
        for i in range(4):
            p.e(f's_mov_b32 {s(S_T)}, {i * 2 * 8192}')
            p.e(f'buffer_load_dword v{214 + i}, v211, {s(SRD_V, 4)}, {s(S_T)} offen{nt_t}')
        p.e('s_branch L_k2_tdone')
        p.e('L_k2_t1:')
        p.e(f'v_lshrrev_b32 v211, 2, {L}')
        p.e(f's_lshl_b32 {s(S_T)}, {s(S_BG)}, 4')
        p.e(f's_sub_u32 s54, {s(S_WV)}, 2')
        p.e('s_lshl_b32 s54, s54, 7')
        p.e(f's_add_u32 {s(S_T)}, {s(S_T)}, s54')
        p.e(f'v_add_u32 v211, {s(S_T)}, v211')
        p.e('v_mul_u32_u24 v211, 1280, v211')
        p.e(f'v_and_b32 v212, 3, {L}')
        p.e('v_lshlrev_b32 v212, 7, v212')
        p.e('v_min_u32 v212, 316, v212')
        p.e('v_add_u32 v211, v211, v212')
        for i in range(4):
            p.e(f's_mov_b32 {s(S_T)}, {i * 256 * 1280}')
            p.e(f'buffer_load_dword v{214 + i}, v211, {s(SRD_W, 4)}, {s(S_T)} offen{nt_t}')
        p.e('L_k2_tdone:')
    p.e(f'v_bfe_u32 v220, {L}, 2, 2')
    p.e(f'v_lshrrev_b32 v221, 5, {L}')
    p.e('v_lshl_add_u32 v222, v221, 2, v220')
    p.e(f'v_bfe_u32 v223, {L}, 4, 1')
    p.e(f'v_and_b32 v224, 3, {L}')
    p.e('v_lshl_add_u32 v224, v223, 2, v224')
    p.e(f'v_mul_u32_u24 {v(WA)}, 320, v222')
    p.e('v_and_b32 v225, 1, v224')
    p.e(f'v_lshl_add_u32 {v(WA)}, v225, 5, {v(WA)}')
    p.e('v_lshrrev_b32 v225, 1, v224')
    p.e(f'v_lshl_add_u32 {v(WA)}, v225, 3, {v(WA)}')
    p.e('v_lshlrev_b32 v225, 7, v222')
    p.e('v_lshl_add_u32 v225, v224, 3, v225')
    p.e(f's_lshl_b32 {s(S_T)}, {s(S_WV)}, 12')
    p.e(f's_add_u32 {s(S_T)}, {s(S_T)}, {VOFF}')
    p.e(f'v_add_u32 v225, {s(S_T)}, v225')
    p.e('v_lshrrev_b32 v226, 1, v220')
    p.e(f'v_lshl_add_u32 {v(VA)}, v226, 6, v225')
    p.e('v_xor_b32 v226, 1, v226')
    p.e(f'v_lshl_add_u32 {v(VA + 1)}, v226, 6, v225')
    p.e(f'v_lshlrev_b32 {v(LN16)}, 4, {L}')
    p.e(f's_lshl_b32 {s(S_T)}, {s(S_WV)}, 11')
    p.e(f's_add_u32 {s(S_T)}, {s(S_T)}, {PBUF}')
    p.e(f'v_add_u32 {v(PA)}, {s(S_T)}, {v(LN16)}')
    for r in range(80):
        p.e(f'v_mov_b32 {v(ACC + r)}, 0')
    p.e(f's_mov_b32 {s(S_CNT)}, 0')

    def fr(i):
        return FR + (i % NR) * 4

    def wo_reads(n, ks, dst, base):
        return [f'ds_read_b64_tr_b16 {v(dst + 2 * u, 2)}, {v(WA)} offset:{base + (16 * ks + 8 * u) * 320 + n * 64}' for u in range(2)]

    def v_reads(jj, sk, dst, base):
        return [f'ds_read_b64_tr_b16 {v(dst + 2 * u, 2)}, {v(VA + jj)} offset:{base + (16 * sk + 8 * u) * 128}' for u in range(2)]

    def p_reads():
        return [f'ds_read_b128 {v(PF + 4 * sk, 4)}, {v(PA)} offset:{1024 * sk}' for sk in range(2)]

    def cvts(ob):
        out = []
        for jj in range(2):
            for r in range(8):
                out.append(f'v_cvt_pk_bf16_f32 {v(ob + jj * 8 + r)}, {v(OA + jj * 16 + 2 * r)}, {v(OA + jj * 16 + 2 * r + 1)}')
        return out

    def interval(i0, base, ob_cur):
        items = []
        order = [('w', 0, n) for n in range(5)] + [('v', 0, 0), ('v', 0, 1), ('v', 1, 0), ('v', 1, 1)] + \
                [('w', ks, n) for ks in range(1, 4) for n in range(5)]
        for k, (kind, a, b) in enumerate(order):
            d = fr(i0 + k)
            if kind == 'w':
                m = f'v_mfma_f32_32x32x16_bf16 {v(ACC + 16 * b, 16)}, {v(d, 4)}, {v(ob_cur + 4 * a, 4)}, {v(ACC + 16 * b, 16)}'
                rd = wo_reads(b, a, d, base)
            else:
                c = '0' if a == 0 else v(OA + 16 * b, 16)
                m = f'v_mfma_f32_32x32x16_bf16 {v(OA + 16 * b, 16)}, {v(d, 4)}, {v(PF + 4 * a, 4)}, {c}'
                rd = v_reads(b, a, d, base)
            items.append((m, rd))
        return items

    p.e('s_barrier')
    for r in p_reads():
        p.e(r)
    for k, (sk, jj) in enumerate([(0, 0), (0, 1), (1, 0), (1, 1)]):
        for r in v_reads(jj, sk, FR + 4 * k, 0):
            p.e(r)
    for k, (sk, jj) in enumerate([(0, 0), (0, 1), (1, 0), (1, 1)]):
        c = '0' if sk == 0 else v(OA + 16 * jj, 16)
        p.e(f'v_mfma_f32_32x32x16_bf16 {v(OA + 16 * jj, 16)}, {v(FR + 4 * k, 4)}, {v(PF + 4 * sk, 4)}, {c}')
    D = 5
    Q = 3
    p.e(f's_mov_b32 s53, 1')
    p.e(f's_mov_b32 s70, {STG}')
    for a in (WA, VA, VA + 1):
        p.e(f'v_add_u32 {v(a)}, {STG}, {v(a)}')
    p.e(f'v_xor_b32 {v(PA)}, 8192, {v(PA)}')
    itA = interval(0, 0, OB)
    itB = interval(24, 0, OB + 16)
    p.e('s_waitcnt lgkmcnt(0)')
    p.e('s_barrier')

    def plan(items, with_p):
        rs = []
        for k, (m, rd) in enumerate(items):
            if with_p and k == 5:
                rs += p_reads()
            rs += rd
        return rs

    ngaps = 24 - Q
    def distribute(rs):
        n = 24 - Q + 1
        out = [[] for _ in range(n)]
        per = len(rs) / n
        acc_ = 0.0; k = 0
        for g in range(n):
            acc_ += per
            while k < len(rs) and (k < math.ceil(acc_ - 1e-9)):
                out[g].append(rs[k]); k += 1
        return out

    gA = distribute(plan(itA, False))
    gB = distribute(plan(itB, True))
    for g in range(D + 1):
        for r in gA[g]:
            p.e(r)
    for x in cvts(OB):
        p.e(x)
    t2 = p.pos()
    p.e('L_k2_loop:')

    def body(items, g, nxt_g, ob_next, toggle_p):
        cv = cvts(ob_next)
        sal = ['s_add_u32 s53, s53, 1', 's_cmp_eq_u32 s53, 4',
               f's_cselect_b32 {s(S_DELTA)}, {(-3 * STG) & 0xffffffff}, s70', 's_cselect_b32 s53, 0, s53']
        adv = [f'v_add_u32 {v(a)}, {s(S_DELTA)}, {v(a)}' for a in (WA, VA, VA + 1)]
        if toggle_p:
            adv.append(f'v_xor_b32 {v(PA)}, 8192, {v(PA)}')
        for k in range(24 - D):
            p.e(items[k][0])
            gi = D + 1 + k
            if gi < len(g):
                for r in g[gi]:
                    p.e(r)
            if 11 <= k < 19:
                p.e(cv.pop(0)); p.e(cv.pop(0))
            if k == 2:
                for x in sal:
                    p.e(x)
            if k == 24 - D - 1:
                for x in adv:
                    p.e(x)
        assert not cv
        p.e('s_waitcnt lgkmcnt(0)')
        p.e('s_barrier')
        for r in nxt_g[0]:
            p.e(r)
        for k in range(24 - D, 24):
            p.e(items[k][0])
            for r in nxt_g[k - (24 - D) + 1]:
                p.e(r)

    body(itA, gA, gB, OB + 16, False)
    body(itB, gB, gA, OB, True)
    p.e(f's_add_u32 {s(S_CNT)}, {s(S_CNT)}, 1')
    p.e(f's_cmp_lt_u32 {s(S_CNT)}, 8')
    p.e('s_cbranch_scc1 L_k2_loop')
    t3 = p.pos()
    p.e('s_waitcnt lgkmcnt(0)')
    for q in range(20):
        so = (q // 4) * 4096
        if q % 4 == 0:
            p.e(f's_mov_b32 {s(S_T)}, {so}')
        p.e(f'buffer_store_dwordx4 {v(ACC + 4 * q, 4)}, {v(LN16)}, {s(SRD_O, 4)}, {s(S_T)} offen offset:{(q % 4) * 1024}')
    p.e('s_endpgm')
    t4 = p.pos()
    p.add_trace([(t0, t1), (t1, t2), (t2, t3), (t2, t3), (t3, t4)])

    p.e('L_k2_loader:')
    l0 = p.pos()
    WO = 10; VO = 16; PO = 17
    nt_d = ' nt' if o.nt_dma else ''
    nt_k = ' nt' if o.nt_kv else ''
    S_SLOT, S_SV, S_SW, S_SP, S_PL = 60, 61, 62, 63, 64
    p.e(f's_sub_u32 s56, {s(S_WV)}, 4')
    p.e('s_mul_i32 s57, s56, 20480')
    p.e('s_mov_b32 s58, 52429')
    for j in range(5):
        p.e(f'v_add_u32 v3, {64 * j}, v2')
        p.e('v_mul_u32_u24 v4, s58, v3')
        p.e('v_lshrrev_b32 v4, 20, v4')
        p.e('v_mul_u32_u24 v5, 20, v4')
        p.e('v_sub_u32 v5, v3, v5')
        p.e('v_mul_u32_u24 v4, 1280, v4')
        p.e('v_lshl_add_u32 v4, v5, 4, v4')
        p.e('v_add_u32 v4, s57, v4')
        p.e(f'v_subrev_u32 {v(WO + j)}, {1024 * (j & 3)}, v4')
    p.e('v_lshrrev_b32 v3, 3, v2')
    p.e('v_bfe_u32 v4, v2, 4, 1')
    p.e('v_lshlrev_b32 v4, 2, v4')
    p.e('v_and_b32 v5, 7, v2')
    p.e('v_xor_b32 v4, v4, v5')
    p.e('v_lshlrev_b32 v4, 4, v4')
    p.e('v_lshl_add_u32 v4, v3, 8, v4')
    p.e('s_lshl_b32 s57, s56, 18')
    p.e('v_add_u32 v4, s57, v4')
    for j in range(4):
        p.e(f'v_add_u32 {v(20 + j)}, {1024 * j}, v4')
    p.e('v_lshlrev_b32 v3, 4, v2')
    p.e('s_lshl_b32 s57, s56, 16')
    p.e(f'v_add_u32 {v(PO)}, s57, v3')
    p.e('s_mul_i32 s65, s56, 5120')
    p.e('s_lshl_b32 s66, s56, 12')
    p.e(f's_add_u32 s66, s66, {VOFF}')
    p.e('s_lshl_b32 s67, s56, 11')
    p.e(f's_add_u32 {s(S_PL)}, s67, {PBUF}')
    p.e(f's_mov_b32 {s(S_SLOT)}, 0')
    p.e(f's_mov_b32 {s(S_SV)}, 0')
    p.e(f's_mov_b32 {s(S_SW)}, 0')
    p.e(f's_mov_b32 {s(S_SP)}, 0')

    def iss_p():
        p.e(f's_mov_b32 m0, {s(S_PL)}')
        for j in range(2):
            p.e(f'buffer_load_dwordx4 {v(PO)}, {s(SRD_P, 4)}, {s(S_SP)} offen offset:{1024 * j} lds')
        p.e(f's_add_u32 {s(S_SP)}, {s(S_SP)}, 2048')
        p.e(f's_xor_b32 {s(S_PL)}, {s(S_PL)}, 8192')

    def iss_v(odd):
        p.e(f's_add_u32 m0, {s(S_SLOT)}, s66')
        for j in range(4):
            p.e(f'buffer_load_dwordx4 {v(20 + j)}, {s(SRD_V, 4)}, {s(S_SV)} offen offset:{1024 * j} lds{nt_k}')
        p.e(f's_add_u32 {s(S_SV)}, {s(S_SV)}, {8192 - 128 if odd else 128}')

    def iss_w():
        p.e(f's_add_u32 m0, {s(S_SLOT)}, s65')
        for j in range(4):
            p.e(f'buffer_load_dwordx4 {v(WO + j)}, {s(SRD_W, 4)}, {s(S_SW)} offen offset:{1024 * j} lds{nt_d}')
        p.e('s_add_u32 m0, m0, 4096')
        p.e(f'buffer_load_dwordx4 {v(WO + 4)}, {s(SRD_W, 4)}, {s(S_SW)} offen lds{nt_d}')
        p.e(f's_add_u32 {s(S_SW)}, {s(S_SW)}, {64 * 1280}')

    def adv():
        p.e(f's_add_u32 {s(S_SLOT)}, {s(S_SLOT)}, {STG}')
        p.e(f's_cmp_eq_u32 {s(S_SLOT)}, {4 * STG}')
        p.e(f's_cselect_b32 {s(S_SLOT)}, 0, {s(S_SLOT)}')

    iss_p(); iss_v(False); adv()
    iss_v(True); iss_w(); adv()
    iss_p(); iss_v(False); iss_w(); adv()
    iss_v(True); iss_w(); adv()
    p.e('s_waitcnt vmcnt(29)')
    p.e('s_barrier')
    p.e(f's_mov_b32 {s(S_CNT)}, 0')
    l1 = p.pos()
    p.e('L_k2_lloop:')
    p.e('s_waitcnt vmcnt(20)')
    p.e('s_barrier')
    iss_p(); iss_v(False); iss_w(); adv()
    p.e('s_waitcnt vmcnt(20)')
    p.e('s_barrier')
    iss_v(True); iss_w(); adv()
    p.e(f's_add_u32 {s(S_CNT)}, {s(S_CNT)}, 1')
    p.e(f's_cmp_lt_u32 {s(S_CNT)}, 6')
    p.e('s_cbranch_scc1 L_k2_lloop')
    l2 = p.pos()
    p.e('s_waitcnt vmcnt(20)')
    p.e('s_barrier')
    iss_w()
    p.e('s_waitcnt vmcnt(14)')
    p.e('s_barrier')
    p.e('s_waitcnt vmcnt(5)')
    p.e('s_barrier')
    p.e('s_waitcnt vmcnt(0)')
    p.e('s_barrier')
    p.e('s_barrier')
    p.e('L_k2_end:')
    p.e('s_endpgm')
    l3 = p.pos()
    p.add_trace([(t0, t1), (l0, l1), (l1, l2), (l1, l2), (l2, l3)])
    return name


def gen_k3(p, o):
    name = 'k3_kernel'
    kernel_header(p, name)
    t0 = p.pos()
    p.e('s_cmp_ge_u32 s2, 256')
    p.e('s_cbranch_scc1 L_k3_end')
    p.e('s_load_dwordx2 s[4:5], s[0:1], 80')
    p.e('s_load_dwordx2 s[6:7], s[0:1], 96')
    p.e('v_lshrrev_b32 v1, 6, v0')
    p.e('v_and_b32 v2, 63, v0')
    p.e('v_lshlrev_b32 v3, 4, v2')
    p.e('v_lshl_add_u32 v3, v1, 12, v3')
    p.e(f's_mul_i32 s8, s2, {4 * 20480}')
    p.e(f's_add_u32 s8, s8, {WS_PART}')
    p.e('s_waitcnt lgkmcnt(0)')
    srd(p, 12, 6, 7, 8, WS_PART + 1024 * 20480)
    for xq in range(4):
        p.e(f's_mov_b32 s9, {xq * 20480}')
        for q in range(4):
            p.e(f'buffer_load_dwordx4 {v(8 + xq * 16 + q * 4, 4)}, v3, s[12:15], s9 offen offset:{q * 1024}')
    p.e('s_lshr_b32 s16, s2, 7')
    p.e('s_bfe_u32 s17, s2, 0x30004')
    p.e('s_bfe_u32 s18, s2, 0x20002')
    p.e('s_and_b32 s19, s2, 3')
    p.e('s_lshl_b32 s17, s17, 7')
    p.e('s_lshl_b32 s19, s19, 5')
    p.e('s_add_u32 s17, s17, s19')
    p.e('s_mul_i32 s17, s17, 2560')
    p.e('s_mul_i32 s16, s16, 1280')
    p.e('s_mul_i32 s18, s18, 320')
    p.e('s_add_u32 s17, s17, s16')
    p.e('s_add_u32 s17, s17, s18')
    srd(p, 20, 4, 5, 17, OUT_BYTES)
    p.e('v_and_b32 v4, 31, v2')
    p.e('v_mul_u32_u24 v4, 2560, v4')
    p.e('v_lshrrev_b32 v5, 5, v2')
    p.e('v_lshl_add_u32 v4, v5, 5, v4')
    p.e('v_lshl_add_u32 v4, v1, 6, v4')
    p.e('s_waitcnt vmcnt(8)')
    for r in range(16):
        p.e(f'v_add_f32 {v(8 + r)}, {v(8 + r)}, {v(24 + r)}')
    p.e('s_waitcnt vmcnt(0)')
    for r in range(16):
        p.e(f'v_add_f32 {v(40 + r)}, {v(40 + r)}, {v(56 + r)}')
    for r in range(16):
        p.e(f'v_add_f32 {v(8 + r)}, {v(8 + r)}, {v(40 + r)}')
    for r in range(8):
        p.e(f'v_cvt_pk_bf16_f32 {v(8 + r)}, {v(8 + 2 * r)}, {v(8 + 2 * r + 1)}')
    p.e('buffer_store_dwordx4 v[8:11], v4, s[20:23], 0 offen')
    p.e('buffer_store_dwordx4 v[12:15], v4, s[20:23], 0 offen offset:16')
    p.e('L_k3_end:')
    p.e('s_endpgm')
    p.add_trace([(t0, p.pos())])
    return name


def build(o):
    p = Prog()
    gen_k1(p, o); gen_k2(p, o); gen_k3(p, o)
    launches = ['; @launch kernel=k1_kernel grid=(256,1,1) block=(512,1,1) lds=147456',
                '; @launch kernel=k2_kernel grid=(256,1,1) block=(512,1,1) lds=163840',
                '; @launch kernel=k3_kernel grid=(256,1,1) block=(320,1,1) lds=0']
    txt = HEADER + '\n'.join(launches) + '\n.amdgcn_target "amdgcn-amd-amdhsa--gfx950"\n.text\n'
    txt += p.text()
    txt += '.section .rodata,"a"\n' + kd('k1_kernel') + kd('k2_kernel') + kd('k3_kernel', 72, 32)
    return txt


if __name__ == '__main__':
    o = Opt()
    out = sys.argv[1]
    for a in sys.argv[2:]:
        k, val = a.split('=')
        setattr(o, k, eval(val))
    open(out, 'w').write(build(o))
```

```python
import sys, math, struct
from asmlib import Prog, v, s

NAME = 'concat_heads__gqa_block_cached__gqa_block_cached__near_ridge'

def f32hex(x):
    return '0x%08x' % struct.unpack('<I', struct.pack('<f', x))[0]

class Opt:
    touch = True
    nt_touch = False
    nt_dma = False
    nt_kv = False
    stamps = False
    order = '123'

WS_P = 0
WS_PART = 4 << 20
WS_STAMP = 64 << 20
X_BYTES = 1024 * 640 * 2
KV_BYTES = 32 * 32 * 32 * 128 * 2
W_BYTES = 640 * 4096 * 2
OUT_BYTES = 1024 * 1280 * 2

HEADER = open('cdna_kernels/%s.s.ref' % NAME).read().split('; Override launch')[0]


def kernel_header(p, name):
    p.e(f'.globl {name}\n.p2align 8\n.type {name},@function\n{name}:')


def kd(name, vgpr=256, sgpr=96):
    acc = (vgpr + 3) // 4 * 4
    return f'''.p2align 6
.amdhsa_kernel {name}
  .amdhsa_next_free_vgpr {vgpr}
  .amdhsa_next_free_sgpr {sgpr}
  .amdhsa_accum_offset {acc}
  .amdhsa_group_segment_fixed_size 0
  .amdhsa_kernarg_size 104
  .amdhsa_user_sgpr_count 2
  .amdhsa_user_sgpr_kernarg_segment_ptr 1
  .amdhsa_system_sgpr_workgroup_id_x 1
.end_amdhsa_kernel
'''


def srd(p, d, base_lo, base_hi, off_s, size_total):
    p.e(f's_add_u32 {s(d)}, {s(base_lo)}, {s(off_s)}')
    p.e(f's_addc_u32 {s(d+1)}, {s(base_hi)}, 0')
    p.e(f's_sub_u32 {s(d+2)}, {size_total}, {s(off_s)}')
    p.e(f's_mov_b32 {s(d+3)}, 0x20000')


def stamp(p, o, slot, sreg=84):
    if o.stamps:
        p.e(f's_memtime {s(sreg + 2 * 0, 2)}')
        p.e('s_waitcnt lgkmcnt(0)')
        p.e(f'v_writelane_b32 v255, {s(sreg)}, {slot}')


def gen_k1(p, o):
    name = 'k1_kernel'
    kernel_header(p, name)
    t0 = p.pos()
    S_BR, S_XQ, S_BG, S_HP, S_WV, S_T = 26, 27, 28, 29, 30, 31
    SRD_X, SRD_W, SRD_K, SRD_P = 32, 36, 40, 44
    S_SLOT, S_SX, S_SW, S_CNT, S_DELTA, S_C = 48, 49, 50, 51, 52, 53
    p.e('s_cmp_ge_u32 s2, 256')
    p.e('s_cbranch_scc1 L_k1_end')
    p.e('s_load_dwordx8 s[8:15], s[0:1], 0')
    p.e('s_load_dwordx8 s[16:23], s[0:1], 40')
    p.e('s_load_dwordx2 s[24:25], s[0:1], 96')
    p.e('v_lshrrev_b32 v1, 6, v0')
    p.e('v_and_b32 v2, 63, v0')
    p.e(f'v_readfirstlane_b32 {s(S_WV)}, v1')
    p.e(f's_and_b32 {s(S_T)}, s2, 7')
    p.e(f's_lshr_b32 {s(S_BR)}, {s(S_T)}, 2')
    p.e(f's_and_b32 {s(S_XQ)}, {s(S_T)}, 3')
    p.e(f's_lshr_b32 {s(S_BG)}, s2, 5')
    p.e(f's_lshr_b32 {s(S_T)}, s2, 3')
    p.e(f's_and_b32 {s(S_HP)}, {s(S_T)}, 3')
    p.e('s_waitcnt lgkmcnt(0)')
    p.e(f's_cmp_eq_u32 {s(S_BR)}, 0')
    p.e('s_cselect_b64 s[8:9], s[8:9], s[16:17]')
    p.e('s_cselect_b64 s[10:11], s[10:11], s[18:19]')
    p.e('s_cselect_b64 s[14:15], s[14:15], s[22:23]')
    p.e(f's_mul_i32 {s(S_T)}, {s(S_BG)}, {128 * 1280}')
    srd(p, SRD_X, 8, 9, S_T, X_BYTES)
    p.e(f's_lshl_b32 s54, {s(S_XQ)}, 3')
    p.e(f's_lshl_b32 {s(S_T)}, {s(S_HP)}, 1')
    p.e(f's_add_u32 s54, s54, {s(S_T)}')
    p.e(f's_lshl_b32 {s(S_T)}, s54, 8')
    srd(p, SRD_W, 14, 15, S_T, W_BYTES)
    p.e(f's_lshl_b32 s55, {s(S_BG)}, 7')
    p.e('s_add_u32 s55, s55, s54')
    p.e(f's_lshl_b32 {s(S_T)}, s55, 13')
    srd(p, SRD_K, 10, 11, S_T, KV_BYTES)
    p.e(f's_lshl_b32 {s(S_T)}, {s(S_BR)}, 10')
    p.e(f's_add_u32 {s(S_T)}, {s(S_T)}, s55')
    p.e(f's_lshl_b32 {s(S_T)}, {s(S_T)}, 11')
    srd(p, SRD_P, 24, 25, S_T, 4 << 20)
    p.e(f's_cmp_ge_u32 {s(S_WV)}, 4')
    p.e('s_cbranch_scc1 L_k1_loader')
    t1 = p.pos()

    SLOT = 49152
    ACC = 0; AF = 128; BF = 160; AA = 176; BA = 180; KA = 184; KF1 = 192; SA0 = 224; SA1 = 240
    TMP = 192
    lane = 'v2'
    nt_t = ' nt' if o.nt_touch else ''
    p.e('v_mov_b32 v200, v2')
    L = 'v200'
    if o.touch:
        p.e(f's_cmp_eq_u32 {s(S_WV)}, 0')
        p.e('s_cbranch_scc0 L_k1_t1')
        p.e(f'v_lshrrev_b32 v201, 5, {L}')
        p.e('v_lshlrev_b32 v201, 6, v201')
        p.e(f'v_bfe_u32 v202, {L}, 2, 3')
        p.e('v_add_u32 v201, v201, v202')
        p.e(f's_lshl_b32 {s(S_T)}, {s(S_BG)}, 3')
        p.e(f'v_add_u32 v201, {s(S_T)}, v201')
        p.e('v_lshlrev_b32 v201, 13, v201')
        p.e(f'v_and_b32 v202, 3, {L}')
        p.e('v_lshl_add_u32 v201, v202, 7, v201')
        for i in range(5):
            p.e(f's_mov_b32 {s(S_T)}, {i * 128 * 8192}')
            p.e(f'buffer_load_dword v{204 + i}, v201, {s(SRD_W, 4)}, {s(S_T)} offen{nt_t}')
        p.e('s_branch L_k1_tdone')
        p.e('L_k1_t1:')
        p.e(f's_cmp_eq_u32 {s(S_WV)}, 1')
        p.e('s_cbranch_scc0 L_k1_t2')
        p.e(f'v_and_b32 v201, 31, {L}')
        p.e(f's_lshl_b32 {s(S_T)}, {s(S_HP)}, 5')
        p.e(f'v_add_u32 v201, {s(S_T)}, v201')
        p.e('v_mul_u32_u24 v201, 1280, v201')
        p.e(f'v_lshrrev_b32 v202, 5, {L}')
        p.e('v_lshl_add_u32 v201, v202, 7, v201')
        for i in range(5):
            p.e(f'buffer_load_dword v{204 + i}, v201, {s(SRD_X, 4)}, 0 offen offset:{i * 256}{nt_t}')
        p.e('s_branch L_k1_tdone')
        p.e('L_k1_t2:')
        p.e(f'v_lshlrev_b32 v201, 7, {L}')
        p.e(f's_sub_u32 {s(S_T)}, {s(S_WV)}, 2')
        p.e(f's_lshl_b32 {s(S_T)}, {s(S_T)}, 19')
        p.e(f'v_add_u32 v201, {s(S_T)}, v201')
        p.e('s_sleep 8')
        for i in range(4):
            p.e(f's_mov_b32 {s(S_T)}, {((i >> 1) * 32 + (i & 1)) * 8192}')
            p.e(f'buffer_load_dword v{204 + i}, v201, {s(SRD_K, 4)}, {s(S_T)} offen{nt_t}')
        p.e('L_k1_tdone:')

    p.e(f's_and_b32 s56, {s(S_WV)}, 1')
    p.e(f's_lshr_b32 s57, {s(S_WV)}, 1')
    p.e(f'v_bfe_u32 v210, {L}, 2, 2')
    p.e(f'v_lshrrev_b32 v211, 5, {L}')
    p.e('v_lshl_add_u32 v212, v211, 3, v210')
    p.e('v_lshlrev_b32 v212, 9, v212')
    p.e(f'v_bfe_u32 v213, {L}, 4, 1')
    p.e('v_lshl_add_u32 v212, v213, 5, v212')
    p.e(f'v_and_b32 v213, 1, {L}')
    p.e('v_lshl_add_u32 v212, v213, 4, v212')
    p.e(f'v_bfe_u32 v213, {L}, 1, 1')
    p.e('v_lshl_add_u32 v212, v213, 3, v212')
    p.e('s_lshl_b32 s58, s56, 8')
    p.e('s_add_u32 s58, s58, 16384')
    p.e('v_add_u32 v212, s58, v212')
    for j in range(4):
        p.e(f'v_xor_b32 v213, {j}, v210')
        p.e(f'v_lshl_add_u32 {v(AA + j)}, v213, 6, v212')
    p.e(f'v_and_b32 v213, 31, {L}')
    p.e('v_bfe_u32 v214, v213, 1, 3')
    p.e('v_xor_b32 v214, v214, v211')
    p.e('v_lshlrev_b32 v214, 4, v214')
    p.e('v_lshl_add_u32 v214, v213, 7, v214')
    p.e('s_lshl_b32 s58, s57, 13')
    p.e('v_add_u32 v214, s58, v214')
    for t in range(4):
        p.e(f'v_xor_b32 {v(BA + t)}, {t * 32}, v214')
    p.e('v_and_b32 v214, 15, v213')
    p.e('v_xor_b32 v214, v214, v211')
    p.e('v_lshlrev_b32 v214, 4, v214')
    p.e('v_lshl_add_u32 v214, v213, 8, v214')
    p.e(f's_lshl_b32 s58, {s(S_WV)}, 13')
    p.e(f's_add_u32 s58, s58, {SLOT}')
    p.e('v_add_u32 v214, s58, v214')
    for t in range(8):
        p.e(f'v_xor_b32 {v(KA + t)}, {t * 32}, v214')
    p.e(f'v_lshlrev_b32 v223, 4, {L}')
    for r in range(128):
        p.e(f'v_mov_b32 {v(ACC + r)}, 0')
    p.e(f's_mov_b32 {s(S_CNT)}, 0')
    p.e(f's_mov_b32 {s(S_SLOT)}, 0')
    p.e(f's_mov_b32 s70, {SLOT}')

    def acc(j, bb):
        return ACC + (j * 2 + bb) * 16

    def reads(t, buf):
        out = []
        out.append(f'ds_read_b128 {v(BF + buf * 8, 4)}, {v(BA + t)}')
        for j in range(4):
            for u in range(2):
                out.append(f'ds_read_b64_tr_b16 {v(AF + buf * 16 + j * 4 + u * 2, 2)}, {v(AA + j)} offset:{(16 * t + 4 * u) * 512}')
            if j == 0:
                out.append(f'ds_read_b128 {v(BF + buf * 8 + 4, 4)}, {v(BA + t)} offset:4096')
        return out

    def mfmas(buf):
        return [f'v_mfma_f32_32x32x16_bf16 {v(acc(j, bb), 16)}, {v(AF + buf * 16 + j * 4, 4)}, {v(BF + buf * 8 + bb * 4, 4)}, {v(acc(j, bb), 16)}'
                for j in range(4) for bb in range(2)]

    def interleave(ms, rs, per_gap=2):
        rs = list(rs)
        for m in ms:
            p.e(m)
            for _ in range(per_gap):
                if rs:
                    p.e(rs.pop(0))
        for r in rs:
            p.e(r)

    p.e('s_barrier')
    for r in reads(0, 0):
        p.e(r)
    t2 = p.pos()
    p.e('L_k1_loop:')
    interleave(mfmas(0), reads(1, 1))
    interleave(mfmas(1), reads(2, 0))
    ms = mfmas(0); rs = reads(3, 1)
    adv = [f'v_add_u32 {v(AA + j)}, {s(S_DELTA)}, {v(AA + j)}' for j in range(4)] + \
          [f'v_add_u32 {v(BA + t)}, {s(S_DELTA)}, {v(BA + t)}' for t in range(4)]
    sal = [f's_add_u32 {s(S_SLOT)}, {s(S_SLOT)}, 1', f's_cmp_eq_u32 {s(S_SLOT)}, 3',
           f's_cselect_b32 {s(S_DELTA)}, {-2 * SLOT & 0xffffffff}, s70', f's_cselect_b32 {s(S_SLOT)}, 0, {s(S_SLOT)}']
    for i, m in enumerate(ms):
        p.e(m)
        if i < 5:
            p.e(rs[2 * i]); p.e(rs[2 * i + 1])
            if i == 4:
                for x in sal:
                    p.e(x)
        elif i == 5:
            for x in adv[:4]:
                p.e(x)
        elif i == 6:
            for x in adv[4:]:
                p.e(x)
    p.e('s_waitcnt lgkmcnt(0)')
    p.e('s_barrier')
    ms = mfmas(1); rs = reads(0, 0)
    p.e(rs[0]); p.e(rs[1]); p.e(rs[2])
    interleave(ms, rs[3:])
    p.e(f's_add_u32 {s(S_CNT)}, {s(S_CNT)}, 1')
    p.e(f's_cmp_lt_u32 {s(S_CNT)}, 10')
    p.e('s_cbranch_scc1 L_k1_loop')
    t3 = p.pos()
    p.e('s_waitcnt vmcnt(0) lgkmcnt(0)')
    p.e('v_mov_b32 v176, v223')
    for t in range(8):
        p.e(f'ds_read_b128 {v(AF + 4 * t, 4)}, {v(KA + t)}')

    def cvtq(bb):
        out = []
        for j in range(4):
            b = acc(j, bb)
            for r in range(8):
                out.append(f'v_cvt_pk_bf16_f32 {v(b + r)}, {v(b + 2 * r)}, {v(b + 2 * r + 1)}')
        return out

    def smf(bb, kf, sa):
        out = []
        for t in range(8):
            q = acc(t >> 1, bb) + 4 * (t & 1)
            c = '0' if t == 0 else v(sa, 16)
            out.append(f'v_mfma_f32_32x32x16_bf16 {v(sa, 16)}, {v(kf + 4 * t, 4)}, {v(q, 4)}, {c}')
        return out

    for x in cvtq(0):
        p.e(x)
    p.e('s_barrier')
    for t in range(8):
        p.e(f'ds_read_b128 {v(KF1 + 4 * t, 4)}, {v(KA + t)} offset:{SLOT}')
    interleave(smf(0, AF, SA0), cvtq(1), per_gap=4)
    c = (128 ** -0.5) * math.log2(math.e)
    p.e(f's_mov_b32 {s(S_C)}, {f32hex(c)}')

    def softmax(sa, ta):
        o_ = []
        S = lambda r: v(sa + r)
        T = lambda r: v(ta + r)
        o_.append(f'v_max3_f32 {T(0)}, {S(0)}, {S(1)}, {S(2)}')
        o_.append(f'v_max3_f32 {T(1)}, {S(3)}, {S(4)}, {S(5)}')
        o_.append(f'v_max3_f32 {T(2)}, {S(6)}, {S(7)}, {S(8)}')
        o_.append(f'v_max3_f32 {T(3)}, {S(9)}, {S(10)}, {S(11)}')
        o_.append(f'v_max3_f32 {T(0)}, {T(0)}, {S(12)}, {S(13)}')
        o_.append(f'v_max3_f32 {T(1)}, {T(1)}, {S(14)}, {S(15)}')
        o_.append(f'v_max3_f32 {T(0)}, {T(0)}, {T(2)}, {T(3)}')
        o_.append(f'v_max_f32 {T(0)}, {T(0)}, {T(1)}')
        o_.append(f'v_mov_b32 {T(1)}, {T(0)}')
        o_.append(f'v_permlane32_swap_b32 {T(0)}, {T(1)}')
        o_.append(f'v_max_f32 {T(0)}, {T(0)}, {T(1)}')
        o_.append(f'v_mul_f32 {T(0)}, {s(S_C)}, {T(0)}')
        for r in range(16):
            o_.append(f'v_fma_f32 {S(r)}, {S(r)}, {s(S_C)}, -{T(0)}')
        for r in range(16):
            o_.append(f'v_exp_f32 {S(r)}, {S(r)}')
        o_.append(f'v_add_f32 {T(0)}, {S(0)}, {S(1)}')
        o_.append(f'v_add_f32 {T(1)}, {S(2)}, {S(3)}')
        o_.append(f'v_add_f32 {T(2)}, {S(4)}, {S(5)}')
        o_.append(f'v_add_f32 {T(3)}, {S(6)}, {S(7)}')
        for r in range(8, 16):
            o_.append(f'v_add_f32 {T(r & 3)}, {T(r & 3)}, {S(r)}')
        o_.append(f'v_add_f32 {T(0)}, {T(0)}, {T(1)}')
        o_.append(f'v_add_f32 {T(2)}, {T(2)}, {T(3)}')
        o_.append(f'v_add_f32 {T(0)}, {T(0)}, {T(2)}')
        o_.append(f'v_mov_b32 {T(1)}, {T(0)}')
        o_.append(f'v_permlane32_swap_b32 {T(0)}, {T(1)}')
        o_.append(f'v_add_f32 {T(0)}, {T(0)}, {T(1)}')
        o_.append(f'v_rcp_f32 {T(0)}, {T(0)}')
        for r in range(16):
            o_.append(f'v_mul_f32 {S(r)}, {S(r)}, {T(0)}')
        for r in range(8):
            o_.append(f'v_cvt_pk_bf16_f32 {S(r)}, {S(2 * r)}, {S(2 * r + 1)}')
        return o_

    p.e('s_lshl_b32 s58, s57, 6')
    p.e('s_add_u32 s58, s58, s56')
    p.e('s_lshl_b32 s58, s58, 11')
    p.e(f's_add_u32 s59, s58, {32 * 2048}')
    sm1 = smf(1, KF1, SA1)
    sm0 = softmax(SA0, 160)
    p.e(sm1[0]); p.e(sm1[1])
    interleave(sm1[2:], sm0, per_gap=5)
    p.e(f'buffer_store_dwordx4 {v(SA0, 4)}, v176, {s(SRD_P, 4)}, s58 offen')
    p.e(f'buffer_store_dwordx4 {v(SA0 + 4, 4)}, v176, {s(SRD_P, 4)}, s58 offen offset:1024')
    for x in softmax(SA1, 164):
        p.e(x)
    p.e(f'buffer_store_dwordx4 {v(SA1, 4)}, v176, {s(SRD_P, 4)}, s59 offen')
    p.e(f'buffer_store_dwordx4 {v(SA1 + 4, 4)}, v176, {s(SRD_P, 4)}, s59 offen offset:1024')
    p.e('s_endpgm')
    t4 = p.pos()
    p.add_trace([(t0, t1), (t1, t2), (t2, t3), (t2, t3), (t3, t4)])

    p.e('L_k1_loader:')
    l0 = p.pos()
    XO = 10; WO = 14; KO = 22
    nt_d = ' nt' if o.nt_dma else ''
    nt_k = ' nt' if o.nt_kv else ''
    p.e(f's_sub_u32 s56, {s(S_WV)}, 4')
    p.e('v_lshrrev_b32 v3, 3, v2')
    p.e('s_lshl_b32 s57, s56, 5')
    p.e('v_add_u32 v3, s57, v3')
    p.e('v_and_b32 v4, 7, v2')
    for j in range(4):
        p.e(f'v_add_u32 v5, {8 * j}, v3')
        p.e('v_bfe_u32 v6, v5, 1, 3')
        p.e('v_xor_b32 v6, v6, v4')
        p.e('v_mul_u32_u24 v5, 1280, v5')
        p.e('v_lshl_add_u32 v5, v6, 4, v5')
        p.e(f'v_subrev_u32 {v(XO + j)}, {1024 * j}, v5')
    p.e('v_lshrrev_b32 v3, 5, v2')
    p.e('s_lshl_b32 s57, s56, 4')
    p.e('v_add_u32 v3, s57, v3')
    p.e('v_and_b32 v4, 31, v2')
    for j in range(8):
        p.e(f'v_add_u32 v5, {2 * j}, v3')
        p.e('v_and_b32 v6, 3, v5')
        p.e('v_lshlrev_b32 v6, 2, v6')
        p.e('v_xor_b32 v6, v6, v4')
        p.e('v_lshlrev_b32 v5, 13, v5')
        p.e('v_lshl_add_u32 v5, v6, 4, v5')
        p.e(f'v_subrev_u32 {v(WO + j)}, {1024 * (j & 3)}, v5')
    p.e('s_lshl_b32 s60, s56, 12')
    p.e('s_lshl_b32 s61, s56, 13')
    p.e('s_add_u32 s61, s61, 16384')
    p.e(f's_mov_b32 {s(S_SLOT)}, 0')
    p.e(f's_mov_b32 {s(S_SX)}, 0')
    p.e(f's_mov_b32 {s(S_SW)}, 0')
    p.e(f's_mov_b32 {s(S_CNT)}, 0')
    l1 = p.pos()
    p.e('L_k1_lloop:')
    p.e(f's_cmp_lt_u32 {s(S_CNT)}, 3')
    p.e('s_cbranch_scc1 L_k1_lissue')
    p.e(f's_cmp_eq_u32 {s(S_CNT)}, 3')
    p.e('s_cbranch_scc0 L_k1_lw')
    p.e('s_waitcnt vmcnt(24)')
    p.e('s_barrier')
    p.e('L_k1_lw:')
    p.e('s_waitcnt vmcnt(12)')
    p.e('s_barrier')
    p.e('L_k1_lissue:')
    p.e(f's_add_u32 m0, {s(S_SLOT)}, s61')
    for j in range(4):
        p.e(f'buffer_load_dwordx4 {v(WO + j)}, {s(SRD_W, 4)}, {s(S_SW)} offen offset:{1024 * j}{nt_d} lds')
    p.e(f's_add_u32 m0, {s(S_SLOT)}, s60')
    for j in range(4):
        p.e(f'buffer_load_dwordx4 {v(XO + j)}, {s(SRD_X, 4)}, {s(S_SX)} offen offset:{1024 * j}{nt_d} lds')
    p.e(f's_add_u32 s62, {s(S_SLOT)}, s61')
    p.e('s_add_u32 m0, s62, 4096')
    for j in range(4):
        p.e(f'buffer_load_dwordx4 {v(WO + 4 + j)}, {s(SRD_W, 4)}, {s(S_SW)} offen offset:{1024 * j}{nt_d} lds')
    p.e(f's_add_u32 {s(S_SX)}, {s(S_SX)}, 128')
    p.e(f's_add_u32 {s(S_SW)}, {s(S_SW)}, {64 * 8192}')
    p.e(f's_add_u32 {s(S_SLOT)}, {s(S_SLOT)}, {SLOT}')
    p.e(f's_cmp_eq_u32 {s(S_SLOT)}, {3 * SLOT}')
    p.e(f's_cselect_b32 {s(S_SLOT)}, 0, {s(S_SLOT)}')
    p.e(f's_add_u32 {s(S_CNT)}, {s(S_CNT)}, 1')
    p.e(f's_cmp_lt_u32 {s(S_CNT)}, 10')
    p.e('s_cbranch_scc1 L_k1_lloop')
    l2 = p.pos()
    p.e('v_lshrrev_b32 v3, 4, v2')
    p.e('v_and_b32 v4, 15, v2')
    for jj in range(4):
        p.e(f'v_add_u32 v5, {4 * jj}, v3')
        p.e('v_xor_b32 v6, v5, v4')
        p.e('v_lshlrev_b32 v6, 4, v6')
        p.e(f'v_lshl_add_u32 {v(KO + jj)}, v3, 8, v6')
    p.e('s_and_b32 s57, s56, 1')
    p.e('s_lshr_b32 s58, s56, 1')
    p.e('s_lshl_b32 s58, s58, 6')
    p.e('s_add_u32 s58, s58, s57')
    p.e('s_lshl_b32 s58, s58, 13')
    p.e('s_lshl_b32 s59, s56, 13')

    def kload(slot_base, extra):
        for half in range(2):
            p.e(f's_add_u32 m0, s59, {slot_base + half * 4096}')
            p.e(f's_add_u32 s62, s58, {extra + half * 4096}')
            for jj in range(4):
                p.e(f'buffer_load_dwordx4 {v(KO + jj)}, {s(SRD_K, 4)}, s62 offen offset:{1024 * jj}{nt_k} lds')

    p.e('s_waitcnt vmcnt(12)')
    p.e('s_barrier')
    kload(SLOT, 0)
    p.e('s_waitcnt vmcnt(8)')
    p.e('s_barrier')
    kload(2 * SLOT, 32 * 8192)
    p.e('s_waitcnt vmcnt(8)')
    p.e('s_barrier')
    p.e('s_waitcnt vmcnt(0)')
    p.e('s_barrier')
    p.e('L_k1_end:')
    p.e('s_endpgm')
    l3 = p.pos()
    p.add_trace([(t0, t1), (l0, l1), (l1, l2), (l1, l2), (l2, l3)])
    return name


def gen_k2(p, o):
    name = 'k2_kernel'
    kernel_header(p, name)
    t0 = p.pos()
    S_BR, S_XQ, S_BG, S_CT, S_WV, S_T = 26, 27, 28, 29, 30, 31
    SRD_V, SRD_W, SRD_P, SRD_O = 32, 36, 40, 44
    S_CNT, S_DELTA = 51, 52
    STG = 36864; VOFF = 20480; PBUF = 4 * STG
    p.e('s_cmp_ge_u32 s2, 256')
    p.e('s_cbranch_scc1 L_k2_end')
    p.e('s_load_dwordx2 s[8:9], s[0:1], 16')
    p.e('s_load_dwordx2 s[10:11], s[0:1], 32')
    p.e('s_load_dwordx2 s[16:17], s[0:1], 56')
    p.e('s_load_dwordx2 s[18:19], s[0:1], 72')
    p.e('s_load_dwordx2 s[24:25], s[0:1], 96')
    p.e('v_lshrrev_b32 v1, 6, v0')
    p.e('v_and_b32 v2, 63, v0')
    p.e(f'v_readfirstlane_b32 {s(S_WV)}, v1')
    p.e(f's_and_b32 {s(S_T)}, s2, 7')
    p.e(f's_lshr_b32 {s(S_BR)}, {s(S_T)}, 2')
    p.e(f's_and_b32 {s(S_XQ)}, {s(S_T)}, 3')
    p.e(f's_lshr_b32 {s(S_BG)}, s2, 5')
    p.e(f's_lshr_b32 {s(S_T)}, s2, 3')
    p.e(f's_and_b32 {s(S_CT)}, {s(S_T)}, 3')
    p.e('s_waitcnt lgkmcnt(0)')
    p.e(f's_cmp_eq_u32 {s(S_BR)}, 0')
    p.e('s_cselect_b64 s[8:9], s[8:9], s[16:17]')
    p.e('s_cselect_b64 s[10:11], s[10:11], s[18:19]')
    p.e(f's_lshl_b32 s55, {s(S_BG)}, 7')
    p.e(f's_lshl_b32 {s(S_T)}, {s(S_XQ)}, 3')
    p.e(f's_add_u32 s55, s55, {s(S_T)}')
    p.e(f's_lshl_b32 {s(S_T)}, s55, 13')
    srd(p, SRD_V, 8, 9, S_T, KV_BYTES)
    p.e(f's_mul_i32 {s(S_T)}, {s(S_XQ)}, {1024 * 1280}')
    p.e(f's_mul_i32 s54, {s(S_CT)}, 320')
    p.e(f's_add_u32 {s(S_T)}, {s(S_T)}, s54')
    srd(p, SRD_W, 10, 11, S_T, W_BYTES)
    p.e(f's_lshl_b32 {s(S_T)}, {s(S_BR)}, 10')
    p.e(f's_add_u32 {s(S_T)}, {s(S_T)}, s55')
    p.e(f's_lshl_b32 {s(S_T)}, {s(S_T)}, 11')
    srd(p, SRD_P, 24, 25, S_T, 4 << 20)
    p.e(f's_lshl_b32 {s(S_T)}, {s(S_BR)}, 3')
    p.e(f's_add_u32 {s(S_T)}, {s(S_T)}, {s(S_BG)}')
    p.e(f's_lshl_b32 {s(S_T)}, {s(S_T)}, 2')
    p.e(f's_add_u32 {s(S_T)}, {s(S_T)}, {s(S_CT)}')
    p.e(f's_lshl_b32 {s(S_T)}, {s(S_T)}, 2')
    p.e(f's_and_b32 s54, {s(S_WV)}, 3')
    p.e(f's_add_u32 {s(S_T)}, {s(S_T)}, s54')
    p.e(f's_lshl_b32 {s(S_T)}, {s(S_T)}, 2')
    p.e(f's_add_u32 {s(S_T)}, {s(S_T)}, {s(S_XQ)}')
    p.e(f's_mul_i32 {s(S_T)}, {s(S_T)}, 20480')
    p.e(f's_add_u32 {s(S_T)}, {s(S_T)}, {WS_PART}')
    srd(p, SRD_O, 24, 25, S_T, WS_PART + 1024 * 20480)
    p.e(f's_cmp_ge_u32 {s(S_WV)}, 4')
    p.e('s_cbranch_scc1 L_k2_loader')
    t1 = p.pos()

    ACC = 0; OA = 80; OB = 112; FR = 144; NR = 12; PF = 192; WA = 200; VA = 201; PA = 203; LN16 = 204
    L = 'v210'
    nt_t = ' nt' if o.nt_touch else ''
    p.e(f'v_mov_b32 {L}, v2')
    if o.touch:
        p.e(f's_cmp_ge_u32 {s(S_WV)}, 2')
        p.e('s_cbranch_scc1 L_k2_t1')
        p.e(f'v_lshlrev_b32 v211, 7, {L}')
        p.e(f's_lshl_b32 {s(S_T)}, {s(S_CT)}, 18')
        p.e(f's_lshl_b32 s54, {s(S_WV)}, 13')
        p.e(f's_add_u32 {s(S_T)}, {s(S_T)}, s54')
        p.e(f'v_add_u32 v211, {s(S_T)}, v211')
        for i in range(4):
            p.e(f's_mov_b32 {s(S_T)}, {i * 2 * 8192}')
            p.e(f'buffer_load_dword v{214 + i}, v211, {s(SRD_V, 4)}, {s(S_T)} offen{nt_t}')
        p.e('s_branch L_k2_tdone')
        p.e('L_k2_t1:')
        p.e(f'v_lshrrev_b32 v211, 2, {L}')
        p.e(f's_lshl_b32 {s(S_T)}, {s(S_BG)}, 4')
        p.e(f's_sub_u32 s54, {s(S_WV)}, 2')
        p.e('s_lshl_b32 s54, s54, 7')
        p.e(f's_add_u32 {s(S_T)}, {s(S_T)}, s54')
        p.e(f'v_add_u32 v211, {s(S_T)}, v211')
        p.e('v_mul_u32_u24 v211, 1280, v211')
        p.e(f'v_and_b32 v212, 3, {L}')
        p.e('v_lshlrev_b32 v212, 7, v212')
        p.e('v_min_u32 v212, 316, v212')
        p.e('v_add_u32 v211, v211, v212')
        for i in range(4):
            p.e(f's_mov_b32 {s(S_T)}, {i * 256 * 1280}')
            p.e(f'buffer_load_dword v{214 + i}, v211, {s(SRD_W, 4)}, {s(S_T)} offen{nt_t}')
        p.e('L_k2_tdone:')
    p.e(f'v_bfe_u32 v220, {L}, 2, 2')
    p.e(f'v_lshrrev_b32 v221, 5, {L}')
    p.e('v_lshl_add_u32 v222, v221, 2, v220')
    p.e(f'v_bfe_u32 v223, {L}, 4, 1')
    p.e(f'v_and_b32 v224, 3, {L}')
    p.e('v_lshl_add_u32 v224, v223, 2, v224')
    p.e(f'v_mul_u32_u24 {v(WA)}, 320, v222')
    p.e('v_and_b32 v225, 1, v224')
    p.e(f'v_lshl_add_u32 {v(WA)}, v225, 5, {v(WA)}')
    p.e('v_lshrrev_b32 v225, 1, v224')
    p.e(f'v_lshl_add_u32 {v(WA)}, v225, 3, {v(WA)}')
    p.e('v_lshlrev_b32 v225, 7, v222')
    p.e('v_lshl_add_u32 v225, v224, 3, v225')
    p.e(f's_lshl_b32 {s(S_T)}, {s(S_WV)}, 12')
    p.e(f's_add_u32 {s(S_T)}, {s(S_T)}, {VOFF}')
    p.e(f'v_add_u32 v225, {s(S_T)}, v225')
    p.e('v_lshrrev_b32 v226, 1, v220')
    p.e(f'v_lshl_add_u32 {v(VA)}, v226, 6, v225')
    p.e('v_xor_b32 v226, 1, v226')
    p.e(f'v_lshl_add_u32 {v(VA + 1)}, v226, 6, v225')
    p.e(f'v_lshlrev_b32 {v(LN16)}, 4, {L}')
    p.e(f's_lshl_b32 {s(S_T)}, {s(S_WV)}, 11')
    p.e(f's_add_u32 {s(S_T)}, {s(S_T)}, {PBUF}')
    p.e(f'v_add_u32 {v(PA)}, {s(S_T)}, {v(LN16)}')
    for r in range(80):
        p.e(f'v_mov_b32 {v(ACC + r)}, 0')
    p.e(f's_mov_b32 {s(S_CNT)}, 0')

    def fr(i):
        return FR + (i % NR) * 4

    def wo_reads(n, ks, dst, base):
        return [f'ds_read_b64_tr_b16 {v(dst + 2 * u, 2)}, {v(WA)} offset:{base + (16 * ks + 8 * u) * 320 + n * 64}' for u in range(2)]

    def v_reads(jj, sk, dst, base):
        return [f'ds_read_b64_tr_b16 {v(dst + 2 * u, 2)}, {v(VA + jj)} offset:{base + (16 * sk + 8 * u) * 128}' for u in range(2)]

    def p_reads():
        return [f'ds_read_b128 {v(PF + 4 * sk, 4)}, {v(PA)} offset:{1024 * sk}' for sk in range(2)]

    def cvts(ob):
        out = []
        for jj in range(2):
            for r in range(8):
                out.append(f'v_cvt_pk_bf16_f32 {v(ob + jj * 8 + r)}, {v(OA + jj * 16 + 2 * r)}, {v(OA + jj * 16 + 2 * r + 1)}')
        return out

    def interval(i0, base, ob_cur):
        items = []
        order = [('w', 0, n) for n in range(5)] + [('v', 0, 0), ('v', 0, 1), ('v', 1, 0), ('v', 1, 1)] + \
                [('w', ks, n) for ks in range(1, 4) for n in range(5)]
        for k, (kind, a, b) in enumerate(order):
            d = fr(i0 + k)
            if kind == 'w':
                m = f'v_mfma_f32_32x32x16_bf16 {v(ACC + 16 * b, 16)}, {v(d, 4)}, {v(ob_cur + 4 * a, 4)}, {v(ACC + 16 * b, 16)}'
                rd = wo_reads(b, a, d, base)
            else:
                c = '0' if a == 0 else v(OA + 16 * b, 16)
                m = f'v_mfma_f32_32x32x16_bf16 {v(OA + 16 * b, 16)}, {v(d, 4)}, {v(PF + 4 * a, 4)}, {c}'
                rd = v_reads(b, a, d, base)
            items.append((m, rd))
        return items

    p.e('s_barrier')
    for r in p_reads():
        p.e(r)
    for k, (sk, jj) in enumerate([(0, 0), (0, 1), (1, 0), (1, 1)]):
        for r in v_reads(jj, sk, FR + 4 * k, 0):
            p.e(r)
    for k, (sk, jj) in enumerate([(0, 0), (0, 1), (1, 0), (1, 1)]):
        c = '0' if sk == 0 else v(OA + 16 * jj, 16)
        p.e(f'v_mfma_f32_32x32x16_bf16 {v(OA + 16 * jj, 16)}, {v(FR + 4 * k, 4)}, {v(PF + 4 * sk, 4)}, {c}')
    D = 5
    Q = 3
    p.e(f's_mov_b32 s53, 1')
    p.e(f's_mov_b32 s70, {STG}')
    for a in (WA, VA, VA + 1):
        p.e(f'v_add_u32 {v(a)}, {STG}, {v(a)}')
    p.e(f'v_xor_b32 {v(PA)}, 8192, {v(PA)}')
    itA = interval(0, 0, OB)
    itB = interval(24, 0, OB + 16)
    p.e('s_waitcnt lgkmcnt(0)')
    p.e('s_barrier')

    def plan(items, with_p):
        rs = []
        for k, (m, rd) in enumerate(items):
            if with_p and k == 5:
                rs += p_reads()
            rs += rd
        return rs

    ngaps = 24 - Q
    def distribute(rs):
        n = 24 - Q + 1
        out = [[] for _ in range(n)]
        per = len(rs) / n
        acc_ = 0.0; k = 0
        for g in range(n):
            acc_ += per
            while k < len(rs) and (k < math.ceil(acc_ - 1e-9)):
                out[g].append(rs[k]); k += 1
        return out

    gA = distribute(plan(itA, False))
    gB = distribute(plan(itB, True))
    for g in range(D + 1):
        for r in gA[g]:
            p.e(r)
    for x in cvts(OB):
        p.e(x)
    t2 = p.pos()
    p.e('L_k2_loop:')

    def body(items, g, nxt_g, ob_next, toggle_p):
        cv = cvts(ob_next)
        sal = ['s_add_u32 s53, s53, 1', 's_cmp_eq_u32 s53, 4',
               f's_cselect_b32 {s(S_DELTA)}, {(-3 * STG) & 0xffffffff}, s70', 's_cselect_b32 s53, 0, s53']
        adv = [f'v_add_u32 {v(a)}, {s(S_DELTA)}, {v(a)}' for a in (WA, VA, VA + 1)]
        if toggle_p:
            adv.append(f'v_xor_b32 {v(PA)}, 8192, {v(PA)}')
        for k in range(24 - D):
            p.e(items[k][0])
            gi = D + 1 + k
            if gi < len(g):
                for r in g[gi]:
                    p.e(r)
            if 11 <= k < 19:
                p.e(cv.pop(0)); p.e(cv.pop(0))
            if k == 2:
                for x in sal:
                    p.e(x)
            if k == 24 - D - 1:
                for x in adv:
                    p.e(x)
        assert not cv
        p.e('s_waitcnt lgkmcnt(0)')
        p.e('s_barrier')
        for r in nxt_g[0]:
            p.e(r)
        for k in range(24 - D, 24):
            p.e(items[k][0])
            for r in nxt_g[k - (24 - D) + 1]:
                p.e(r)

    body(itA, gA, gB, OB + 16, False)
    body(itB, gB, gA, OB, True)
    p.e(f's_add_u32 {s(S_CNT)}, {s(S_CNT)}, 1')
    p.e(f's_cmp_lt_u32 {s(S_CNT)}, 8')
    p.e('s_cbranch_scc1 L_k2_loop')
    t3 = p.pos()
    p.e('s_waitcnt lgkmcnt(0)')
    for q in range(20):
        so = (q // 4) * 4096
        if q % 4 == 0:
            p.e(f's_mov_b32 {s(S_T)}, {so}')
        p.e(f'buffer_store_dwordx4 {v(ACC + 4 * q, 4)}, {v(LN16)}, {s(SRD_O, 4)}, {s(S_T)} offen offset:{(q % 4) * 1024}')
    p.e('s_endpgm')
    t4 = p.pos()
    p.add_trace([(t0, t1), (t1, t2), (t2, t3), (t2, t3), (t3, t4)])

    p.e('L_k2_loader:')
    l0 = p.pos()
    WO = 10; VO = 16; PO = 17
    nt_d = ' nt' if o.nt_dma else ''
    nt_k = ' nt' if o.nt_kv else ''
    S_SLOT, S_SV, S_SW, S_SP, S_PL = 60, 61, 62, 63, 64
    p.e(f's_sub_u32 s56, {s(S_WV)}, 4')
    p.e('s_mul_i32 s57, s56, 20480')
    p.e('s_mov_b32 s58, 52429')
    for j in range(5):
        p.e(f'v_add_u32 v3, {64 * j}, v2')
        p.e('v_mul_u32_u24 v4, s58, v3')
        p.e('v_lshrrev_b32 v4, 20, v4')
        p.e('v_mul_u32_u24 v5, 20, v4')
        p.e('v_sub_u32 v5, v3, v5')
        p.e('v_mul_u32_u24 v4, 1280, v4')
        p.e('v_lshl_add_u32 v4, v5, 4, v4')
        p.e('v_add_u32 v4, s57, v4')
        p.e(f'v_subrev_u32 {v(WO + j)}, {1024 * (j & 3)}, v4')
    p.e('v_lshrrev_b32 v3, 3, v2')
    p.e('v_bfe_u32 v4, v2, 4, 1')
    p.e('v_lshlrev_b32 v4, 2, v4')
    p.e('v_and_b32 v5, 7, v2')
    p.e('v_xor_b32 v4, v4, v5')
    p.e('v_lshlrev_b32 v4, 4, v4')
    p.e('v_lshl_add_u32 v4, v3, 8, v4')
    p.e('s_lshl_b32 s57, s56, 18')
    p.e('v_add_u32 v4, s57, v4')
    for j in range(4):
        p.e(f'v_add_u32 {v(20 + j)}, {1024 * j}, v4')
    p.e('v_lshlrev_b32 v3, 4, v2')
    p.e('s_lshl_b32 s57, s56, 16')
    p.e(f'v_add_u32 {v(PO)}, s57, v3')
    p.e('s_mul_i32 s65, s56, 5120')
    p.e('s_lshl_b32 s66, s56, 12')
    p.e(f's_add_u32 s66, s66, {VOFF}')
    p.e('s_lshl_b32 s67, s56, 11')
    p.e(f's_add_u32 {s(S_PL)}, s67, {PBUF}')
    p.e(f's_mov_b32 {s(S_SLOT)}, 0')
    p.e(f's_mov_b32 {s(S_SV)}, 0')
    p.e(f's_mov_b32 {s(S_SW)}, 0')
    p.e(f's_mov_b32 {s(S_SP)}, 0')

    def iss_p():
        p.e(f's_mov_b32 m0, {s(S_PL)}')
        for j in range(2):
            p.e(f'buffer_load_dwordx4 {v(PO)}, {s(SRD_P, 4)}, {s(S_SP)} offen offset:{1024 * j} lds')
        p.e(f's_add_u32 {s(S_SP)}, {s(S_SP)}, 2048')
        p.e(f's_xor_b32 {s(S_PL)}, {s(S_PL)}, 8192')

    def iss_v(odd):
        p.e(f's_add_u32 m0, {s(S_SLOT)}, s66')
        for j in range(4):
            p.e(f'buffer_load_dwordx4 {v(20 + j)}, {s(SRD_V, 4)}, {s(S_SV)} offen offset:{1024 * j}{nt_k} lds')
        p.e(f's_add_u32 {s(S_SV)}, {s(S_SV)}, {8192 - 128 if odd else 128}')

    def iss_w():
        p.e(f's_add_u32 m0, {s(S_SLOT)}, s65')
        for j in range(4):
            p.e(f'buffer_load_dwordx4 {v(WO + j)}, {s(SRD_W, 4)}, {s(S_SW)} offen offset:{1024 * j}{nt_d} lds')
        p.e('s_add_u32 m0, m0, 4096')
        p.e(f'buffer_load_dwordx4 {v(WO + 4)}, {s(SRD_W, 4)}, {s(S_SW)} offen{nt_d} lds')
        p.e(f's_add_u32 {s(S_SW)}, {s(S_SW)}, {64 * 1280}')

    def adv():
        p.e(f's_add_u32 {s(S_SLOT)}, {s(S_SLOT)}, {STG}')
        p.e(f's_cmp_eq_u32 {s(S_SLOT)}, {4 * STG}')
        p.e(f's_cselect_b32 {s(S_SLOT)}, 0, {s(S_SLOT)}')

    iss_p(); iss_v(False); adv()
    iss_v(True); iss_w(); adv()
    iss_p(); iss_v(False); iss_w(); adv()
    iss_v(True); iss_w(); adv()
    p.e('s_waitcnt vmcnt(29)')
    p.e('s_barrier')
    p.e(f's_mov_b32 {s(S_CNT)}, 0')
    l1 = p.pos()
    p.e('L_k2_lloop:')
    p.e('s_waitcnt vmcnt(20)')
    p.e('s_barrier')
    iss_p(); iss_v(False); iss_w(); adv()
    p.e('s_waitcnt vmcnt(20)')
    p.e('s_barrier')
    iss_v(True); iss_w(); adv()
    p.e(f's_add_u32 {s(S_CNT)}, {s(S_CNT)}, 1')
    p.e(f's_cmp_lt_u32 {s(S_CNT)}, 6')
    p.e('s_cbranch_scc1 L_k2_lloop')
    l2 = p.pos()
    p.e('s_waitcnt vmcnt(20)')
    p.e('s_barrier')
    iss_w()
    p.e('s_waitcnt vmcnt(14)')
    p.e('s_barrier')
    p.e('s_waitcnt vmcnt(5)')
    p.e('s_barrier')
    p.e('s_waitcnt vmcnt(0)')
    p.e('s_barrier')
    p.e('s_barrier')
    p.e('L_k2_end:')
    p.e('s_endpgm')
    l3 = p.pos()
    p.add_trace([(t0, t1), (l0, l1), (l1, l2), (l1, l2), (l2, l3)])
    return name


def gen_k3(p, o):
    name = 'k3_kernel'
    kernel_header(p, name)
    t0 = p.pos()
    p.e('s_cmp_ge_u32 s2, 256')
    p.e('s_cbranch_scc1 L_k3_end')
    p.e('s_load_dwordx2 s[4:5], s[0:1], 80')
    p.e('s_load_dwordx2 s[6:7], s[0:1], 96')
    p.e('v_lshrrev_b32 v1, 6, v0')
    p.e('v_and_b32 v2, 63, v0')
    p.e('v_lshlrev_b32 v3, 4, v2')
    p.e('v_lshl_add_u32 v3, v1, 12, v3')
    p.e(f's_mul_i32 s8, s2, {4 * 20480}')
    p.e(f's_add_u32 s8, s8, {WS_PART}')
    p.e('s_waitcnt lgkmcnt(0)')
    srd(p, 12, 6, 7, 8, WS_PART + 1024 * 20480)
    for xq in range(4):
        p.e(f's_mov_b32 s9, {xq * 20480}')
        for q in range(4):
            p.e(f'buffer_load_dwordx4 {v(8 + xq * 16 + q * 4, 4)}, v3, s[12:15], s9 offen offset:{q * 1024}')
    p.e('s_lshr_b32 s16, s2, 7')
    p.e('s_bfe_u32 s17, s2, 0x30004')
    p.e('s_bfe_u32 s18, s2, 0x20002')
    p.e('s_and_b32 s19, s2, 3')
    p.e('s_lshl_b32 s17, s17, 7')
    p.e('s_lshl_b32 s19, s19, 5')
    p.e('s_add_u32 s17, s17, s19')
    p.e('s_mul_i32 s17, s17, 2560')
    p.e('s_mul_i32 s16, s16, 1280')
    p.e('s_mul_i32 s18, s18, 320')
    p.e('s_add_u32 s17, s17, s16')
    p.e('s_add_u32 s17, s17, s18')
    srd(p, 20, 4, 5, 17, OUT_BYTES)
    p.e('v_and_b32 v4, 31, v2')
    p.e('v_mul_u32_u24 v4, 2560, v4')
    p.e('v_lshrrev_b32 v5, 5, v2')
    p.e('v_lshl_add_u32 v4, v5, 5, v4')
    p.e('v_lshl_add_u32 v4, v1, 6, v4')
    p.e('s_waitcnt vmcnt(8)')
    for r in range(16):
        p.e(f'v_add_f32 {v(8 + r)}, {v(8 + r)}, {v(24 + r)}')
    p.e('s_waitcnt vmcnt(0)')
    for r in range(16):
        p.e(f'v_add_f32 {v(40 + r)}, {v(40 + r)}, {v(56 + r)}')
    for r in range(16):
        p.e(f'v_add_f32 {v(8 + r)}, {v(8 + r)}, {v(40 + r)}')
    for r in range(8):
        p.e(f'v_cvt_pk_bf16_f32 {v(8 + r)}, {v(8 + 2 * r)}, {v(8 + 2 * r + 1)}')
    p.e('buffer_store_dwordx4 v[8:11], v4, s[20:23], 0 offen')
    p.e('buffer_store_dwordx4 v[12:15], v4, s[20:23], 0 offen offset:16')
    p.e('L_k3_end:')
    p.e('s_endpgm')
    p.add_trace([(t0, p.pos())])
    return name


def build(o):
    p = Prog()
    gen_k1(p, o); gen_k2(p, o); gen_k3(p, o)
    LL = {'1': '; @launch kernel=k1_kernel grid=(256,1,1) block=(512,1,1) lds=147456',
          '2': '; @launch kernel=k2_kernel grid=(256,1,1) block=(512,1,1) lds=163840',
          '3': '; @launch kernel=k3_kernel grid=(256,1,1) block=(320,1,1) lds=0',
          'e': '; @launch kernel=e_kernel grid=(256,1,1) block=(64,1,1) lds=0'}
    launches = [LL[c] for c in o.order]
    if 'e' in o.order:
        kernel_header(p, 'e_kernel')
        p.e('s_endpgm')
    txt = HEADER + '\n'.join(launches) + '\n.amdgcn_target "amdgcn-amd-amdhsa--gfx950"\n.text\n'
    txt += p.text()
    txt += '.section .rodata,"a"\n' + kd('k1_kernel') + kd('k2_kernel') + kd('k3_kernel', 72, 32)
    if 'e' in o.order:
        txt += kd('e_kernel', 8, 16)
    return txt


if __name__ == '__main__':
    o = Opt()
    out = sys.argv[1]
    for a in sys.argv[2:]:
        k, val = a.split('=')
        setattr(o, k, eval(val))
    open(out, 'w').write(build(o))
    from chk import check
    check(out)
```

```python
import sys, math, struct
from asmlib import Prog, v, s

NAME = 'concat_heads__gqa_block_cached__gqa_block_cached__near_ridge'

def f32hex(x):
    return '0x%08x' % struct.unpack('<I', struct.pack('<f', x))[0]

class Opt:
    touch = True
    nt_touch = False
    nt_dma = False
    nt_kv = False
    stamps = False
    order = '123'

WS_P = 0
WS_PART = 4 << 20
WS_STAMP = 64 << 20
X_BYTES = 1024 * 640 * 2
KV_BYTES = 32 * 32 * 32 * 128 * 2
W_BYTES = 640 * 4096 * 2
OUT_BYTES = 1024 * 1280 * 2

HEADER = open('cdna_kernels/%s.s.ref' % NAME).read().split('; Override launch')[0]


def kernel_header(p, name):
    p.e(f'.globl {name}\n.p2align 8\n.type {name},@function\n{name}:')


def kd(name, vgpr=256, sgpr=100):
    acc = (vgpr + 3) // 4 * 4
    return f'''.p2align 6
.amdhsa_kernel {name}
  .amdhsa_next_free_vgpr {vgpr}
  .amdhsa_next_free_sgpr {sgpr}
  .amdhsa_accum_offset {acc}
  .amdhsa_group_segment_fixed_size 0
  .amdhsa_kernarg_size 104
  .amdhsa_user_sgpr_count 2
  .amdhsa_user_sgpr_kernarg_segment_ptr 1
  .amdhsa_system_sgpr_workgroup_id_x 1
.end_amdhsa_kernel
'''


def srd(p, d, base_lo, base_hi, off_s, size_total):
    p.e(f's_add_u32 {s(d)}, {s(base_lo)}, {s(off_s)}')
    p.e(f's_addc_u32 {s(d+1)}, {s(base_hi)}, 0')
    p.e(f's_sub_u32 {s(d+2)}, {size_total}, {s(off_s)}')
    p.e(f's_mov_b32 {s(d+3)}, 0x20000')


class Stamper:
    def __init__(self, p, o, kslot, S_WV):
        self.p, self.o, self.kslot, self.S_WV = p, o, kslot, S_WV
        self.n = 0

    def start(self):
        if not self.o.stamps: return
        self.p.e('s_memrealtime s[92:93]')
        self.p.e('s_memtime s[94:95]')
        self.p.e('s_mov_b32 s90, 3')

    def dyn(self, vr):
        if not self.o.stamps: return
        p = self.p
        p.e('s_memtime s[88:89]')
        p.e('s_waitcnt lgkmcnt(0)')
        p.e('s_mov_b32 m0, s90'); p.e('s_nop 1'); p.e(f'v_writelane_b32 v{vr}, s88, m0')
        p.e('s_add_u32 s90, s90, 1')

    def stat(self):
        if not self.o.stamps: return
        self.p.e(f's_memtime s[{72 + 2 * self.n}:{73 + 2 * self.n}]')
        self.n += 1
        assert self.n <= 8

    def flush(self, vr, vtmp, static):
        if not self.o.stamps: return
        p = self.p
        p.e('s_memtime s[88:89]')
        p.e('s_memrealtime s[96:97]')
        p.e('s_waitcnt vmcnt(0) lgkmcnt(0)')
        if static:
            for i in range(self.n):
                p.e(f'v_writelane_b32 v{vr}, s{72 + 2 * i}, {3 + i}')
            p.e(f's_mov_b32 s90, {3 + self.n}')
        p.e('s_mov_b32 m0, s90'); p.e('s_nop 1'); p.e(f'v_writelane_b32 v{vr}, s88, m0')
        p.e(f'v_writelane_b32 v{vr}, s92, 0')
        p.e(f'v_writelane_b32 v{vr}, s96, 1')
        p.e(f'v_writelane_b32 v{vr}, s94, 2')
        p.e(f'v_writelane_b32 v{vr}, s90, 63')
        p.e('s_getreg_b32 s88, hwreg(HW_REG_XCC_ID)')
        p.e(f'v_writelane_b32 v{vr}, s88, 62')
        p.e('s_getreg_b32 s88, hwreg(HW_REG_HW_ID)')
        p.e(f'v_writelane_b32 v{vr}, s88, 61')
        p.e(f's_add_u32 s88, s2, {self.kslot * 256}')
        p.e('s_lshl_b32 s88, s88, 3')
        p.e(f's_add_u32 s88, s88, {s(self.S_WV)}')
        p.e('s_lshl_b32 s88, s88, 8')
        p.e(f's_add_u32 s88, s88, {WS_STAMP}')
        p.e('s_add_u32 s72, s24, s88')
        p.e('s_addc_u32 s73, s25, 0')
        p.e('s_mov_b32 s74, 256')
        p.e('s_mov_b32 s75, 0x20000')
        p.e(f'v_mbcnt_lo_u32_b32 v{vtmp}, -1, 0')
        p.e(f'v_mbcnt_hi_u32_b32 v{vtmp}, -1, v{vtmp}')
        p.e(f'v_lshlrev_b32 v{vtmp}, 2, v{vtmp}')
        p.e(f'buffer_store_dword v{vr}, v{vtmp}, s[72:75], 0 offen')


def gen_k1(p, o):
    name = 'k1_kernel'
    kernel_header(p, name)
    t0 = p.pos()
    S_BR, S_XQ, S_BG, S_HP, S_WV, S_T = 26, 27, 28, 29, 30, 31
    SRD_X, SRD_W, SRD_K, SRD_P = 32, 36, 40, 44
    S_SLOT, S_SX, S_SW, S_CNT, S_DELTA, S_C = 48, 49, 50, 51, 52, 53
    p.e('s_cmp_ge_u32 s2, 256')
    p.e('s_cbranch_scc1 L_k1_end')
    st = Stamper(p, o, 0, S_WV); st.start()
    p.e('s_load_dwordx8 s[8:15], s[0:1], 0')
    p.e('s_load_dwordx8 s[16:23], s[0:1], 40')
    p.e('s_load_dwordx2 s[24:25], s[0:1], 96')
    p.e('v_lshrrev_b32 v1, 6, v0')
    p.e('v_and_b32 v2, 63, v0')
    p.e(f'v_readfirstlane_b32 {s(S_WV)}, v1')
    p.e(f's_and_b32 {s(S_T)}, s2, 7')
    p.e(f's_lshr_b32 {s(S_BR)}, {s(S_T)}, 2')
    p.e(f's_and_b32 {s(S_XQ)}, {s(S_T)}, 3')
    p.e(f's_lshr_b32 {s(S_BG)}, s2, 5')
    p.e(f's_lshr_b32 {s(S_T)}, s2, 3')
    p.e(f's_and_b32 {s(S_HP)}, {s(S_T)}, 3')
    p.e('s_waitcnt lgkmcnt(0)')
    p.e(f's_cmp_eq_u32 {s(S_BR)}, 0')
    p.e('s_cselect_b64 s[8:9], s[8:9], s[16:17]')
    p.e('s_cselect_b64 s[10:11], s[10:11], s[18:19]')
    p.e('s_cselect_b64 s[14:15], s[14:15], s[22:23]')
    p.e(f's_mul_i32 {s(S_T)}, {s(S_BG)}, {128 * 1280}')
    srd(p, SRD_X, 8, 9, S_T, X_BYTES)
    p.e(f's_lshl_b32 s54, {s(S_XQ)}, 3')
    p.e(f's_lshl_b32 {s(S_T)}, {s(S_HP)}, 1')
    p.e(f's_add_u32 s54, s54, {s(S_T)}')
    p.e(f's_lshl_b32 {s(S_T)}, s54, 8')
    srd(p, SRD_W, 14, 15, S_T, W_BYTES)
    p.e(f's_lshl_b32 s55, {s(S_BG)}, 7')
    p.e('s_add_u32 s55, s55, s54')
    p.e(f's_lshl_b32 {s(S_T)}, s55, 13')
    srd(p, SRD_K, 10, 11, S_T, KV_BYTES)
    p.e(f's_lshl_b32 {s(S_T)}, {s(S_BR)}, 10')
    p.e(f's_add_u32 {s(S_T)}, {s(S_T)}, s55')
    p.e(f's_lshl_b32 {s(S_T)}, {s(S_T)}, 11')
    srd(p, SRD_P, 24, 25, S_T, 4 << 20)
    p.e(f's_cmp_ge_u32 {s(S_WV)}, 4')
    p.e('s_cbranch_scc1 L_k1_loader')
    t1 = p.pos()

    SLOT = 49152
    ACC = 0; AF = 128; BF = 160; AA = 176; BA = 180; KA = 184; KF1 = 192; SA0 = 224; SA1 = 240
    TMP = 192
    lane = 'v2'
    nt_t = ' nt' if o.nt_touch else ''
    p.e('v_mov_b32 v200, v2')
    L = 'v200'
    if o.touch:
        p.e(f's_cmp_eq_u32 {s(S_WV)}, 0')
        p.e('s_cbranch_scc0 L_k1_t1')
        p.e(f'v_lshrrev_b32 v201, 5, {L}')
        p.e('v_lshlrev_b32 v201, 6, v201')
        p.e(f'v_bfe_u32 v202, {L}, 2, 3')
        p.e('v_add_u32 v201, v201, v202')
        p.e(f's_lshl_b32 {s(S_T)}, {s(S_BG)}, 3')
        p.e(f'v_add_u32 v201, {s(S_T)}, v201')
        p.e('v_lshlrev_b32 v201, 13, v201')
        p.e(f'v_and_b32 v202, 3, {L}')
        p.e('v_lshl_add_u32 v201, v202, 7, v201')
        for i in range(5):
            p.e(f's_mov_b32 {s(S_T)}, {i * 128 * 8192}')
            p.e(f'buffer_load_dword v{204 + i}, v201, {s(SRD_W, 4)}, {s(S_T)} offen{nt_t}')
        p.e('s_branch L_k1_tdone')
        p.e('L_k1_t1:')
        p.e(f's_cmp_eq_u32 {s(S_WV)}, 1')
        p.e('s_cbranch_scc0 L_k1_t2')
        p.e(f'v_and_b32 v201, 31, {L}')
        p.e(f's_lshl_b32 {s(S_T)}, {s(S_HP)}, 5')
        p.e(f'v_add_u32 v201, {s(S_T)}, v201')
        p.e('v_mul_u32_u24 v201, 1280, v201')
        p.e(f'v_lshrrev_b32 v202, 5, {L}')
        p.e('v_lshl_add_u32 v201, v202, 7, v201')
        for i in range(5):
            p.e(f'buffer_load_dword v{204 + i}, v201, {s(SRD_X, 4)}, 0 offen offset:{i * 256}{nt_t}')
        p.e('s_branch L_k1_tdone')
        p.e('L_k1_t2:')
        p.e(f'v_lshlrev_b32 v201, 7, {L}')
        p.e(f's_sub_u32 {s(S_T)}, {s(S_WV)}, 2')
        p.e(f's_lshl_b32 {s(S_T)}, {s(S_T)}, 19')
        p.e(f'v_add_u32 v201, {s(S_T)}, v201')
        p.e('s_sleep 8')
        for i in range(4):
            p.e(f's_mov_b32 {s(S_T)}, {((i >> 1) * 32 + (i & 1)) * 8192}')
            p.e(f'buffer_load_dword v{204 + i}, v201, {s(SRD_K, 4)}, {s(S_T)} offen{nt_t}')
        p.e('L_k1_tdone:')

    p.e(f's_and_b32 s56, {s(S_WV)}, 1')
    p.e(f's_lshr_b32 s57, {s(S_WV)}, 1')
    p.e(f'v_bfe_u32 v210, {L}, 2, 2')
    p.e(f'v_lshrrev_b32 v211, 5, {L}')
    p.e('v_lshl_add_u32 v212, v211, 3, v210')
    p.e('v_lshlrev_b32 v212, 9, v212')
    p.e(f'v_bfe_u32 v213, {L}, 4, 1')
    p.e('v_lshl_add_u32 v212, v213, 5, v212')
    p.e(f'v_and_b32 v213, 1, {L}')
    p.e('v_lshl_add_u32 v212, v213, 4, v212')
    p.e(f'v_bfe_u32 v213, {L}, 1, 1')
    p.e('v_lshl_add_u32 v212, v213, 3, v212')
    p.e('s_lshl_b32 s58, s56, 8')
    p.e('s_add_u32 s58, s58, 16384')
    p.e('v_add_u32 v212, s58, v212')
    for j in range(4):
        p.e(f'v_xor_b32 v213, {j}, v210')
        p.e(f'v_lshl_add_u32 {v(AA + j)}, v213, 6, v212')
    p.e(f'v_and_b32 v213, 31, {L}')
    p.e('v_bfe_u32 v214, v213, 1, 3')
    p.e('v_xor_b32 v214, v214, v211')
    p.e('v_lshlrev_b32 v214, 4, v214')
    p.e('v_lshl_add_u32 v214, v213, 7, v214')
    p.e('s_lshl_b32 s58, s57, 13')
    p.e('v_add_u32 v214, s58, v214')
    for t in range(4):
        p.e(f'v_xor_b32 {v(BA + t)}, {t * 32}, v214')
    p.e('v_and_b32 v214, 15, v213')
    p.e('v_xor_b32 v214, v214, v211')
    p.e('v_lshlrev_b32 v214, 4, v214')
    p.e('v_lshl_add_u32 v214, v213, 8, v214')
    p.e(f's_lshl_b32 s58, {s(S_WV)}, 13')
    p.e(f's_add_u32 s58, s58, {SLOT}')
    p.e('v_add_u32 v214, s58, v214')
    for t in range(8):
        p.e(f'v_xor_b32 {v(KA + t)}, {t * 32}, v214')
    p.e(f'v_lshlrev_b32 v223, 4, {L}')
    for r in range(128):
        p.e(f'v_mov_b32 {v(ACC + r)}, 0')
    p.e(f's_mov_b32 {s(S_CNT)}, 0')
    p.e(f's_mov_b32 {s(S_SLOT)}, 0')
    p.e(f's_mov_b32 s70, {SLOT}')

    def acc(j, bb):
        return ACC + (j * 2 + bb) * 16

    def reads(t, buf):
        out = []
        out.append(f'ds_read_b128 {v(BF + buf * 8, 4)}, {v(BA + t)}')
        for j in range(4):
            for u in range(2):
                out.append(f'ds_read_b64_tr_b16 {v(AF + buf * 16 + j * 4 + u * 2, 2)}, {v(AA + j)} offset:{(16 * t + 4 * u) * 512}')
            if j == 0:
                out.append(f'ds_read_b128 {v(BF + buf * 8 + 4, 4)}, {v(BA + t)} offset:4096')
        return out

    def mfmas(buf):
        return [f'v_mfma_f32_32x32x16_bf16 {v(acc(j, bb), 16)}, {v(AF + buf * 16 + j * 4, 4)}, {v(BF + buf * 8 + bb * 4, 4)}, {v(acc(j, bb), 16)}'
                for j in range(4) for bb in range(2)]

    def interleave(ms, rs, per_gap=2):
        rs = list(rs)
        for m in ms:
            p.e(m)
            for _ in range(per_gap):
                if rs:
                    p.e(rs.pop(0))
        for r in rs:
            p.e(r)

    st.stat()
    p.e('s_barrier')
    st.stat()
    for r in reads(0, 0):
        p.e(r)
    t2 = p.pos()
    p.e('L_k1_loop:')
    interleave(mfmas(0), reads(1, 1))
    interleave(mfmas(1), reads(2, 0))
    ms = mfmas(0); rs = reads(3, 1)
    adv = [f'v_add_u32 {v(AA + j)}, {s(S_DELTA)}, {v(AA + j)}' for j in range(4)] + \
          [f'v_add_u32 {v(BA + t)}, {s(S_DELTA)}, {v(BA + t)}' for t in range(4)]
    sal = [f's_add_u32 {s(S_SLOT)}, {s(S_SLOT)}, 1', f's_cmp_eq_u32 {s(S_SLOT)}, 3',
           f's_cselect_b32 {s(S_DELTA)}, {-2 * SLOT & 0xffffffff}, s70', f's_cselect_b32 {s(S_SLOT)}, 0, {s(S_SLOT)}']
    for i, m in enumerate(ms):
        p.e(m)
        if i < 5:
            p.e(rs[2 * i]); p.e(rs[2 * i + 1])
            if i == 4:
                for x in sal:
                    p.e(x)
        elif i == 5:
            for x in adv[:4]:
                p.e(x)
        elif i == 6:
            for x in adv[4:]:
                p.e(x)
    p.e('s_waitcnt lgkmcnt(0)')
    p.e('s_barrier')
    ms = mfmas(1); rs = reads(0, 0)
    p.e(rs[0]); p.e(rs[1]); p.e(rs[2])
    interleave(ms, rs[3:])
    p.e(f's_add_u32 {s(S_CNT)}, {s(S_CNT)}, 1')
    p.e(f's_cmp_lt_u32 {s(S_CNT)}, 10')
    p.e('s_cbranch_scc1 L_k1_loop')
    t3 = p.pos()
    st.stat()
    p.e('s_waitcnt vmcnt(0) lgkmcnt(0)')
    p.e('v_mov_b32 v176, v223')
    for t in range(8):
        p.e(f'ds_read_b128 {v(AF + 4 * t, 4)}, {v(KA + t)}')

    def cvtq(bb):
        out = []
        for j in range(4):
            b = acc(j, bb)
            for r in range(8):
                out.append(f'v_cvt_pk_bf16_f32 {v(b + r)}, {v(b + 2 * r)}, {v(b + 2 * r + 1)}')
        return out

    def smf(bb, kf, sa):
        out = []
        for t in range(8):
            q = acc(t >> 1, bb) + 4 * (t & 1)
            c = '0' if t == 0 else v(sa, 16)
            out.append(f'v_mfma_f32_32x32x16_bf16 {v(sa, 16)}, {v(kf + 4 * t, 4)}, {v(q, 4)}, {c}')
        return out

    for x in cvtq(0):
        p.e(x)
    p.e('s_barrier')
    st.stat()
    for t in range(8):
        p.e(f'ds_read_b128 {v(KF1 + 4 * t, 4)}, {v(KA + t)} offset:{SLOT}')
    interleave(smf(0, AF, SA0), cvtq(1), per_gap=4)
    c = (128 ** -0.5) * math.log2(math.e)
    p.e(f's_mov_b32 {s(S_C)}, {f32hex(c)}')

    def softmax(sa, ta):
        o_ = []
        S = lambda r: v(sa + r)
        T = lambda r: v(ta + r)
        o_.append(f'v_max3_f32 {T(0)}, {S(0)}, {S(1)}, {S(2)}')
        o_.append(f'v_max3_f32 {T(1)}, {S(3)}, {S(4)}, {S(5)}')
        o_.append(f'v_max3_f32 {T(2)}, {S(6)}, {S(7)}, {S(8)}')
        o_.append(f'v_max3_f32 {T(3)}, {S(9)}, {S(10)}, {S(11)}')
        o_.append(f'v_max3_f32 {T(0)}, {T(0)}, {S(12)}, {S(13)}')
        o_.append(f'v_max3_f32 {T(1)}, {T(1)}, {S(14)}, {S(15)}')
        o_.append(f'v_max3_f32 {T(0)}, {T(0)}, {T(2)}, {T(3)}')
        o_.append(f'v_max_f32 {T(0)}, {T(0)}, {T(1)}')
        o_.append(f'v_mov_b32 {T(1)}, {T(0)}')
        o_.append(f'v_permlane32_swap_b32 {T(0)}, {T(1)}')
        o_.append(f'v_max_f32 {T(0)}, {T(0)}, {T(1)}')
        o_.append(f'v_mul_f32 {T(0)}, {s(S_C)}, {T(0)}')
        for r in range(16):
            o_.append(f'v_fma_f32 {S(r)}, {S(r)}, {s(S_C)}, -{T(0)}')
        for r in range(16):
            o_.append(f'v_exp_f32 {S(r)}, {S(r)}')
        o_.append(f'v_add_f32 {T(0)}, {S(0)}, {S(1)}')
        o_.append(f'v_add_f32 {T(1)}, {S(2)}, {S(3)}')
        o_.append(f'v_add_f32 {T(2)}, {S(4)}, {S(5)}')
        o_.append(f'v_add_f32 {T(3)}, {S(6)}, {S(7)}')
        for r in range(8, 16):
            o_.append(f'v_add_f32 {T(r & 3)}, {T(r & 3)}, {S(r)}')
        o_.append(f'v_add_f32 {T(0)}, {T(0)}, {T(1)}')
        o_.append(f'v_add_f32 {T(2)}, {T(2)}, {T(3)}')
        o_.append(f'v_add_f32 {T(0)}, {T(0)}, {T(2)}')
        o_.append(f'v_mov_b32 {T(1)}, {T(0)}')
        o_.append(f'v_permlane32_swap_b32 {T(0)}, {T(1)}')
        o_.append(f'v_add_f32 {T(0)}, {T(0)}, {T(1)}')
        o_.append(f'v_rcp_f32 {T(0)}, {T(0)}')
        for r in range(16):
            o_.append(f'v_mul_f32 {S(r)}, {S(r)}, {T(0)}')
        for r in range(8):
            o_.append(f'v_cvt_pk_bf16_f32 {S(r)}, {S(2 * r)}, {S(2 * r + 1)}')
        return o_

    p.e('s_lshl_b32 s58, s57, 6')
    p.e('s_add_u32 s58, s58, s56')
    p.e('s_lshl_b32 s58, s58, 11')
    p.e(f's_add_u32 s59, s58, {32 * 2048}')
    sm1 = smf(1, KF1, SA1)
    sm0 = softmax(SA0, 160)
    p.e(sm1[0]); p.e(sm1[1])
    interleave(sm1[2:], sm0, per_gap=5)
    p.e(f'buffer_store_dwordx4 {v(SA0, 4)}, v176, {s(SRD_P, 4)}, s58 offen')
    p.e(f'buffer_store_dwordx4 {v(SA0 + 4, 4)}, v176, {s(SRD_P, 4)}, s58 offen offset:1024')
    for x in softmax(SA1, 164):
        p.e(x)
    p.e(f'buffer_store_dwordx4 {v(SA1, 4)}, v176, {s(SRD_P, 4)}, s59 offen')
    p.e(f'buffer_store_dwordx4 {v(SA1 + 4, 4)}, v176, {s(SRD_P, 4)}, s59 offen offset:1024')
    st.stat()
    st.flush(0, 1, True)
    p.e('s_endpgm')
    t4 = p.pos()
    p.add_trace([(t0, t1), (t1, t2), (t2, t3), (t2, t3), (t3, t4)])

    p.e('L_k1_loader:')
    l0 = p.pos()
    XO = 10; WO = 14; KO = 22
    nt_d = ' nt' if o.nt_dma else ''
    nt_k = ' nt' if o.nt_kv else ''
    p.e(f's_sub_u32 s56, {s(S_WV)}, 4')
    p.e('v_lshrrev_b32 v3, 3, v2')
    p.e('s_lshl_b32 s57, s56, 5')
    p.e('v_add_u32 v3, s57, v3')
    p.e('v_and_b32 v4, 7, v2')
    for j in range(4):
        p.e(f'v_add_u32 v5, {8 * j}, v3')
        p.e('v_bfe_u32 v6, v5, 1, 3')
        p.e('v_xor_b32 v6, v6, v4')
        p.e('v_mul_u32_u24 v5, 1280, v5')
        p.e('v_lshl_add_u32 v5, v6, 4, v5')
        p.e(f'v_subrev_u32 {v(XO + j)}, {1024 * j}, v5')
    p.e('v_lshrrev_b32 v3, 5, v2')
    p.e('s_lshl_b32 s57, s56, 4')
    p.e('v_add_u32 v3, s57, v3')
    p.e('v_and_b32 v4, 31, v2')
    for j in range(8):
        p.e(f'v_add_u32 v5, {2 * j}, v3')
        p.e('v_and_b32 v6, 3, v5')
        p.e('v_lshlrev_b32 v6, 2, v6')
        p.e('v_xor_b32 v6, v6, v4')
        p.e('v_lshlrev_b32 v5, 13, v5')
        p.e('v_lshl_add_u32 v5, v6, 4, v5')
        p.e(f'v_subrev_u32 {v(WO + j)}, {1024 * (j & 3)}, v5')
    p.e('s_lshl_b32 s60, s56, 12')
    p.e('s_lshl_b32 s61, s56, 13')
    p.e('s_add_u32 s61, s61, 16384')
    p.e(f's_mov_b32 {s(S_SLOT)}, 0')
    p.e(f's_mov_b32 {s(S_SX)}, 0')
    p.e(f's_mov_b32 {s(S_SW)}, 0')
    p.e(f's_mov_b32 {s(S_CNT)}, 0')
    l1 = p.pos()
    p.e('L_k1_lloop:')
    p.e(f's_cmp_lt_u32 {s(S_CNT)}, 3')
    p.e('s_cbranch_scc1 L_k1_lissue')
    p.e(f's_cmp_eq_u32 {s(S_CNT)}, 3')
    p.e('s_cbranch_scc0 L_k1_lw')
    p.e('s_waitcnt vmcnt(24)')
    st.dyn(100)
    p.e('s_barrier')
    p.e('L_k1_lw:')
    p.e('s_waitcnt vmcnt(12)')
    st.dyn(100)
    p.e('s_barrier')
    p.e('L_k1_lissue:')
    st.dyn(100)
    p.e(f's_add_u32 m0, {s(S_SLOT)}, s61')
    for j in range(4):
        p.e(f'buffer_load_dwordx4 {v(WO + j)}, {s(SRD_W, 4)}, {s(S_SW)} offen offset:{1024 * j}{nt_d} lds')
    p.e(f's_add_u32 m0, {s(S_SLOT)}, s60')
    for j in range(4):
        p.e(f'buffer_load_dwordx4 {v(XO + j)}, {s(SRD_X, 4)}, {s(S_SX)} offen offset:{1024 * j}{nt_d} lds')
    p.e(f's_add_u32 s62, {s(S_SLOT)}, s61')
    p.e('s_add_u32 m0, s62, 4096')
    for j in range(4):
        p.e(f'buffer_load_dwordx4 {v(WO + 4 + j)}, {s(SRD_W, 4)}, {s(S_SW)} offen offset:{1024 * j}{nt_d} lds')
    st.dyn(100)
    p.e(f's_add_u32 {s(S_SX)}, {s(S_SX)}, 128')
    p.e(f's_add_u32 {s(S_SW)}, {s(S_SW)}, {64 * 8192}')
    p.e(f's_add_u32 {s(S_SLOT)}, {s(S_SLOT)}, {SLOT}')
    p.e(f's_cmp_eq_u32 {s(S_SLOT)}, {3 * SLOT}')
    p.e(f's_cselect_b32 {s(S_SLOT)}, 0, {s(S_SLOT)}')
    p.e(f's_add_u32 {s(S_CNT)}, {s(S_CNT)}, 1')
    p.e(f's_cmp_lt_u32 {s(S_CNT)}, 10')
    p.e('s_cbranch_scc1 L_k1_lloop')
    l2 = p.pos()
    p.e('v_lshrrev_b32 v3, 4, v2')
    p.e('v_and_b32 v4, 15, v2')
    for jj in range(4):
        p.e(f'v_add_u32 v5, {4 * jj}, v3')
        p.e('v_xor_b32 v6, v5, v4')
        p.e('v_lshlrev_b32 v6, 4, v6')
        p.e(f'v_lshl_add_u32 {v(KO + jj)}, v3, 8, v6')
    p.e('s_and_b32 s57, s56, 1')
    p.e('s_lshr_b32 s58, s56, 1')
    p.e('s_lshl_b32 s58, s58, 6')
    p.e('s_add_u32 s58, s58, s57')
    p.e('s_lshl_b32 s58, s58, 13')
    p.e('s_lshl_b32 s59, s56, 13')

    def kload(slot_base, extra):
        for half in range(2):
            p.e(f's_add_u32 m0, s59, {slot_base + half * 4096}')
            p.e(f's_add_u32 s62, s58, {extra + half * 4096}')
            for jj in range(4):
                p.e(f'buffer_load_dwordx4 {v(KO + jj)}, {s(SRD_K, 4)}, s62 offen offset:{1024 * jj}{nt_k} lds')

    p.e('s_waitcnt vmcnt(12)')
    st.dyn(100)
    p.e('s_barrier')
    st.dyn(100)
    kload(SLOT, 0)
    p.e('s_waitcnt vmcnt(8)')
    st.dyn(100)
    p.e('s_barrier')
    st.dyn(100)
    kload(2 * SLOT, 32 * 8192)
    p.e('s_waitcnt vmcnt(8)')
    st.dyn(100)
    p.e('s_barrier')
    st.dyn(100)
    p.e('s_waitcnt vmcnt(0)')
    st.dyn(100)
    p.e('s_barrier')
    st.flush(100, 101, False)
    p.e('L_k1_end:')
    p.e('s_endpgm')
    l3 = p.pos()
    p.add_trace([(t0, t1), (l0, l1), (l1, l2), (l1, l2), (l2, l3)])
    return name


def gen_k2(p, o):
    name = 'k2_kernel'
    kernel_header(p, name)
    t0 = p.pos()
    S_BR, S_XQ, S_BG, S_CT, S_WV, S_T = 26, 27, 28, 29, 30, 31
    SRD_V, SRD_W, SRD_P, SRD_O = 32, 36, 40, 44
    S_CNT, S_DELTA = 51, 52
    STG = 36864; VOFF = 20480; PBUF = 4 * STG
    p.e('s_cmp_ge_u32 s2, 256')
    p.e('s_cbranch_scc1 L_k2_end')
    st = Stamper(p, o, 1, S_WV); st.start()
    p.e('s_load_dwordx2 s[8:9], s[0:1], 16')
    p.e('s_load_dwordx2 s[10:11], s[0:1], 32')
    p.e('s_load_dwordx2 s[16:17], s[0:1], 56')
    p.e('s_load_dwordx2 s[18:19], s[0:1], 72')
    p.e('s_load_dwordx2 s[24:25], s[0:1], 96')
    p.e('v_lshrrev_b32 v1, 6, v0')
    p.e('v_and_b32 v2, 63, v0')
    p.e(f'v_readfirstlane_b32 {s(S_WV)}, v1')
    p.e(f's_and_b32 {s(S_T)}, s2, 7')
    p.e(f's_lshr_b32 {s(S_BR)}, {s(S_T)}, 2')
    p.e(f's_and_b32 {s(S_XQ)}, {s(S_T)}, 3')
    p.e(f's_lshr_b32 {s(S_BG)}, s2, 5')
    p.e(f's_lshr_b32 {s(S_T)}, s2, 3')
    p.e(f's_and_b32 {s(S_CT)}, {s(S_T)}, 3')
    p.e('s_waitcnt lgkmcnt(0)')
    p.e(f's_cmp_eq_u32 {s(S_BR)}, 0')
    p.e('s_cselect_b64 s[8:9], s[8:9], s[16:17]')
    p.e('s_cselect_b64 s[10:11], s[10:11], s[18:19]')
    p.e(f's_lshl_b32 s55, {s(S_BG)}, 7')
    p.e(f's_lshl_b32 {s(S_T)}, {s(S_XQ)}, 3')
    p.e(f's_add_u32 s55, s55, {s(S_T)}')
    p.e(f's_lshl_b32 {s(S_T)}, s55, 13')
    srd(p, SRD_V, 8, 9, S_T, KV_BYTES)
    p.e(f's_mul_i32 {s(S_T)}, {s(S_XQ)}, {1024 * 1280}')
    p.e(f's_mul_i32 s54, {s(S_CT)}, 320')
    p.e(f's_add_u32 {s(S_T)}, {s(S_T)}, s54')
    srd(p, SRD_W, 10, 11, S_T, W_BYTES)
    p.e(f's_lshl_b32 {s(S_T)}, {s(S_BR)}, 10')
    p.e(f's_add_u32 {s(S_T)}, {s(S_T)}, s55')
    p.e(f's_lshl_b32 {s(S_T)}, {s(S_T)}, 11')
    srd(p, SRD_P, 24, 25, S_T, 4 << 20)
    p.e(f's_lshl_b32 {s(S_T)}, {s(S_BR)}, 3')
    p.e(f's_add_u32 {s(S_T)}, {s(S_T)}, {s(S_BG)}')
    p.e(f's_lshl_b32 {s(S_T)}, {s(S_T)}, 2')
    p.e(f's_add_u32 {s(S_T)}, {s(S_T)}, {s(S_CT)}')
    p.e(f's_lshl_b32 {s(S_T)}, {s(S_T)}, 2')
    p.e(f's_and_b32 s54, {s(S_WV)}, 3')
    p.e(f's_add_u32 {s(S_T)}, {s(S_T)}, s54')
    p.e(f's_lshl_b32 {s(S_T)}, {s(S_T)}, 2')
    p.e(f's_add_u32 {s(S_T)}, {s(S_T)}, {s(S_XQ)}')
    p.e(f's_mul_i32 {s(S_T)}, {s(S_T)}, 20480')
    p.e(f's_add_u32 {s(S_T)}, {s(S_T)}, {WS_PART}')
    srd(p, SRD_O, 24, 25, S_T, WS_PART + 1024 * 20480)
    p.e(f's_cmp_ge_u32 {s(S_WV)}, 4')
    p.e('s_cbranch_scc1 L_k2_loader')
    t1 = p.pos()

    ACC = 0; OA = 80; OB = 112; FR = 144; NR = 12; PF = 192; WA = 200; VA = 201; PA = 203; LN16 = 204
    L = 'v210'
    nt_t = ' nt' if o.nt_touch else ''
    p.e(f'v_mov_b32 {L}, v2')
    if o.touch:
        p.e(f's_cmp_ge_u32 {s(S_WV)}, 2')
        p.e('s_cbranch_scc1 L_k2_t1')
        p.e(f'v_lshlrev_b32 v211, 7, {L}')
        p.e(f's_lshl_b32 {s(S_T)}, {s(S_CT)}, 18')
        p.e(f's_lshl_b32 s54, {s(S_WV)}, 13')
        p.e(f's_add_u32 {s(S_T)}, {s(S_T)}, s54')
        p.e(f'v_add_u32 v211, {s(S_T)}, v211')
        for i in range(4):
            p.e(f's_mov_b32 {s(S_T)}, {i * 2 * 8192}')
            p.e(f'buffer_load_dword v{214 + i}, v211, {s(SRD_V, 4)}, {s(S_T)} offen{nt_t}')
        p.e('s_branch L_k2_tdone')
        p.e('L_k2_t1:')
        p.e(f'v_lshrrev_b32 v211, 2, {L}')
        p.e(f's_lshl_b32 {s(S_T)}, {s(S_BG)}, 4')
        p.e(f's_sub_u32 s54, {s(S_WV)}, 2')
        p.e('s_lshl_b32 s54, s54, 7')
        p.e(f's_add_u32 {s(S_T)}, {s(S_T)}, s54')
        p.e(f'v_add_u32 v211, {s(S_T)}, v211')
        p.e('v_mul_u32_u24 v211, 1280, v211')
        p.e(f'v_and_b32 v212, 3, {L}')
        p.e('v_lshlrev_b32 v212, 7, v212')
        p.e('v_min_u32 v212, 316, v212')
        p.e('v_add_u32 v211, v211, v212')
        for i in range(4):
            p.e(f's_mov_b32 {s(S_T)}, {i * 256 * 1280}')
            p.e(f'buffer_load_dword v{214 + i}, v211, {s(SRD_W, 4)}, {s(S_T)} offen{nt_t}')
        p.e('L_k2_tdone:')
    p.e(f'v_bfe_u32 v220, {L}, 2, 2')
    p.e(f'v_lshrrev_b32 v221, 5, {L}')
    p.e('v_lshl_add_u32 v222, v221, 2, v220')
    p.e(f'v_bfe_u32 v223, {L}, 4, 1')
    p.e(f'v_and_b32 v224, 3, {L}')
    p.e('v_lshl_add_u32 v224, v223, 2, v224')
    p.e(f'v_mul_u32_u24 {v(WA)}, 320, v222')
    p.e('v_and_b32 v225, 1, v224')
    p.e(f'v_lshl_add_u32 {v(WA)}, v225, 5, {v(WA)}')
    p.e('v_lshrrev_b32 v225, 1, v224')
    p.e(f'v_lshl_add_u32 {v(WA)}, v225, 3, {v(WA)}')
    p.e('v_lshlrev_b32 v225, 7, v222')
    p.e('v_lshl_add_u32 v225, v224, 3, v225')
    p.e(f's_lshl_b32 {s(S_T)}, {s(S_WV)}, 12')
    p.e(f's_add_u32 {s(S_T)}, {s(S_T)}, {VOFF}')
    p.e(f'v_add_u32 v225, {s(S_T)}, v225')
    p.e('v_lshrrev_b32 v226, 1, v220')
    p.e(f'v_lshl_add_u32 {v(VA)}, v226, 6, v225')
    p.e('v_xor_b32 v226, 1, v226')
    p.e(f'v_lshl_add_u32 {v(VA + 1)}, v226, 6, v225')
    p.e(f'v_lshlrev_b32 {v(LN16)}, 4, {L}')
    p.e(f's_lshl_b32 {s(S_T)}, {s(S_WV)}, 11')
    p.e(f's_add_u32 {s(S_T)}, {s(S_T)}, {PBUF}')
    p.e(f'v_add_u32 {v(PA)}, {s(S_T)}, {v(LN16)}')
    for r in range(80):
        p.e(f'v_mov_b32 {v(ACC + r)}, 0')
    p.e(f's_mov_b32 {s(S_CNT)}, 0')

    def fr(i):
        return FR + (i % NR) * 4

    def wo_reads(n, ks, dst, base):
        return [f'ds_read_b64_tr_b16 {v(dst + 2 * u, 2)}, {v(WA)} offset:{base + (16 * ks + 8 * u) * 320 + n * 64}' for u in range(2)]

    def v_reads(jj, sk, dst, base):
        return [f'ds_read_b64_tr_b16 {v(dst + 2 * u, 2)}, {v(VA + jj)} offset:{base + (16 * sk + 8 * u) * 128}' for u in range(2)]

    def p_reads():
        return [f'ds_read_b128 {v(PF + 4 * sk, 4)}, {v(PA)} offset:{1024 * sk}' for sk in range(2)]

    def cvts(ob):
        out = []
        for jj in range(2):
            for r in range(8):
                out.append(f'v_cvt_pk_bf16_f32 {v(ob + jj * 8 + r)}, {v(OA + jj * 16 + 2 * r)}, {v(OA + jj * 16 + 2 * r + 1)}')
        return out

    def interval(i0, base, ob_cur):
        items = []
        order = [('w', 0, n) for n in range(5)] + [('v', 0, 0), ('v', 0, 1), ('v', 1, 0), ('v', 1, 1)] + \
                [('w', ks, n) for ks in range(1, 4) for n in range(5)]
        for k, (kind, a, b) in enumerate(order):
            d = fr(i0 + k)
            if kind == 'w':
                m = f'v_mfma_f32_32x32x16_bf16 {v(ACC + 16 * b, 16)}, {v(d, 4)}, {v(ob_cur + 4 * a, 4)}, {v(ACC + 16 * b, 16)}'
                rd = wo_reads(b, a, d, base)
            else:
                c = '0' if a == 0 else v(OA + 16 * b, 16)
                m = f'v_mfma_f32_32x32x16_bf16 {v(OA + 16 * b, 16)}, {v(d, 4)}, {v(PF + 4 * a, 4)}, {c}'
                rd = v_reads(b, a, d, base)
            items.append((m, rd))
        return items

    st.stat()
    p.e('s_barrier')
    st.stat()
    for r in p_reads():
        p.e(r)
    for k, (sk, jj) in enumerate([(0, 0), (0, 1), (1, 0), (1, 1)]):
        for r in v_reads(jj, sk, FR + 4 * k, 0):
            p.e(r)
    for k, (sk, jj) in enumerate([(0, 0), (0, 1), (1, 0), (1, 1)]):
        c = '0' if sk == 0 else v(OA + 16 * jj, 16)
        p.e(f'v_mfma_f32_32x32x16_bf16 {v(OA + 16 * jj, 16)}, {v(FR + 4 * k, 4)}, {v(PF + 4 * sk, 4)}, {c}')
    D = 5
    Q = 3
    p.e(f's_mov_b32 s53, 1')
    p.e(f's_mov_b32 s70, {STG}')
    for a in (WA, VA, VA + 1):
        p.e(f'v_add_u32 {v(a)}, {STG}, {v(a)}')
    p.e(f'v_xor_b32 {v(PA)}, 8192, {v(PA)}')
    itA = interval(0, 0, OB)
    itB = interval(24, 0, OB + 16)
    p.e('s_waitcnt lgkmcnt(0)')
    p.e('s_barrier')

    def plan(items, with_p):
        rs = []
        for k, (m, rd) in enumerate(items):
            if with_p and k == 5:
                rs += p_reads()
            rs += rd
        return rs

    ngaps = 24 - Q
    def distribute(rs):
        n = 24 - Q + 1
        out = [[] for _ in range(n)]
        per = len(rs) / n
        acc_ = 0.0; k = 0
        for g in range(n):
            acc_ += per
            while k < len(rs) and (k < math.ceil(acc_ - 1e-9)):
                out[g].append(rs[k]); k += 1
        return out

    gA = distribute(plan(itA, False))
    gB = distribute(plan(itB, True))
    for g in range(D + 1):
        for r in gA[g]:
            p.e(r)
    for x in cvts(OB):
        p.e(x)
    t2 = p.pos()
    p.e('L_k2_loop:')

    def body(items, g, nxt_g, ob_next, toggle_p):
        cv = cvts(ob_next)
        sal = ['s_add_u32 s53, s53, 1', 's_cmp_eq_u32 s53, 4',
               f's_cselect_b32 {s(S_DELTA)}, {(-3 * STG) & 0xffffffff}, s70', 's_cselect_b32 s53, 0, s53']
        adv = [f'v_add_u32 {v(a)}, {s(S_DELTA)}, {v(a)}' for a in (WA, VA, VA + 1)]
        if toggle_p:
            adv.append(f'v_xor_b32 {v(PA)}, 8192, {v(PA)}')
        for k in range(24 - D):
            p.e(items[k][0])
            gi = D + 1 + k
            if gi < len(g):
                for r in g[gi]:
                    p.e(r)
            if 11 <= k < 19:
                p.e(cv.pop(0)); p.e(cv.pop(0))
            if k == 2:
                for x in sal:
                    p.e(x)
            if k == 24 - D - 1:
                for x in adv:
                    p.e(x)
        assert not cv
        p.e('s_waitcnt lgkmcnt(0)')
        p.e('s_barrier')
        for r in nxt_g[0]:
            p.e(r)
        for k in range(24 - D, 24):
            p.e(items[k][0])
            for r in nxt_g[k - (24 - D) + 1]:
                p.e(r)

    body(itA, gA, gB, OB + 16, False)
    body(itB, gB, gA, OB, True)
    p.e(f's_add_u32 {s(S_CNT)}, {s(S_CNT)}, 1')
    p.e(f's_cmp_lt_u32 {s(S_CNT)}, 8')
    p.e('s_cbranch_scc1 L_k2_loop')
    t3 = p.pos()
    st.stat()
    p.e('s_waitcnt lgkmcnt(0)')
    for q in range(20):
        so = (q // 4) * 4096
        if q % 4 == 0:
            p.e(f's_mov_b32 {s(S_T)}, {so}')
        p.e(f'buffer_store_dwordx4 {v(ACC + 4 * q, 4)}, {v(LN16)}, {s(SRD_O, 4)}, {s(S_T)} offen offset:{(q % 4) * 1024}')
    st.stat()
    st.flush(100, 101, True)
    p.e('s_endpgm')
    t4 = p.pos()
    p.add_trace([(t0, t1), (t1, t2), (t2, t3), (t2, t3), (t3, t4)])

    p.e('L_k2_loader:')
    l0 = p.pos()
    WO = 10; VO = 16; PO = 17
    nt_d = ' nt' if o.nt_dma else ''
    nt_k = ' nt' if o.nt_kv else ''
    S_SLOT, S_SV, S_SW, S_SP, S_PL = 60, 61, 62, 63, 64
    p.e(f's_sub_u32 s56, {s(S_WV)}, 4')
    p.e('s_mul_i32 s57, s56, 20480')
    p.e('s_mov_b32 s58, 52429')
    for j in range(5):
        p.e(f'v_add_u32 v3, {64 * j}, v2')
        p.e('v_mul_u32_u24 v4, s58, v3')
        p.e('v_lshrrev_b32 v4, 20, v4')
        p.e('v_mul_u32_u24 v5, 20, v4')
        p.e('v_sub_u32 v5, v3, v5')
        p.e('v_mul_u32_u24 v4, 1280, v4')
        p.e('v_lshl_add_u32 v4, v5, 4, v4')
        p.e('v_add_u32 v4, s57, v4')
        p.e(f'v_subrev_u32 {v(WO + j)}, {1024 * (j & 3)}, v4')
    p.e('v_lshrrev_b32 v3, 3, v2')
    p.e('v_bfe_u32 v4, v2, 4, 1')
    p.e('v_lshlrev_b32 v4, 2, v4')
    p.e('v_and_b32 v5, 7, v2')
    p.e('v_xor_b32 v4, v4, v5')
    p.e('v_lshlrev_b32 v4, 4, v4')
    p.e('v_lshl_add_u32 v4, v3, 8, v4')
    p.e('s_lshl_b32 s57, s56, 18')
    p.e('v_add_u32 v4, s57, v4')
    for j in range(4):
        p.e(f'v_add_u32 {v(20 + j)}, {1024 * j}, v4')
    p.e('v_lshlrev_b32 v3, 4, v2')
    p.e('s_lshl_b32 s57, s56, 16')
    p.e(f'v_add_u32 {v(PO)}, s57, v3')
    p.e('s_mul_i32 s65, s56, 5120')
    p.e('s_lshl_b32 s66, s56, 12')
    p.e(f's_add_u32 s66, s66, {VOFF}')
    p.e('s_lshl_b32 s67, s56, 11')
    p.e(f's_add_u32 {s(S_PL)}, s67, {PBUF}')
    p.e(f's_mov_b32 {s(S_SLOT)}, 0')
    p.e(f's_mov_b32 {s(S_SV)}, 0')
    p.e(f's_mov_b32 {s(S_SW)}, 0')
    p.e(f's_mov_b32 {s(S_SP)}, 0')

    def iss_p():
        p.e(f's_mov_b32 m0, {s(S_PL)}')
        for j in range(2):
            p.e(f'buffer_load_dwordx4 {v(PO)}, {s(SRD_P, 4)}, {s(S_SP)} offen offset:{1024 * j} lds')
        p.e(f's_add_u32 {s(S_SP)}, {s(S_SP)}, 2048')
        p.e(f's_xor_b32 {s(S_PL)}, {s(S_PL)}, 8192')

    def iss_v(odd):
        p.e(f's_add_u32 m0, {s(S_SLOT)}, s66')
        for j in range(4):
            p.e(f'buffer_load_dwordx4 {v(20 + j)}, {s(SRD_V, 4)}, {s(S_SV)} offen offset:{1024 * j}{nt_k} lds')
        p.e(f's_add_u32 {s(S_SV)}, {s(S_SV)}, {8192 - 128 if odd else 128}')

    def iss_w():
        p.e(f's_add_u32 m0, {s(S_SLOT)}, s65')
        for j in range(4):
            p.e(f'buffer_load_dwordx4 {v(WO + j)}, {s(SRD_W, 4)}, {s(S_SW)} offen offset:{1024 * j}{nt_d} lds')
        p.e('s_add_u32 m0, m0, 4096')
        p.e(f'buffer_load_dwordx4 {v(WO + 4)}, {s(SRD_W, 4)}, {s(S_SW)} offen{nt_d} lds')
        p.e(f's_add_u32 {s(S_SW)}, {s(S_SW)}, {64 * 1280}')

    def adv():
        p.e(f's_add_u32 {s(S_SLOT)}, {s(S_SLOT)}, {STG}')
        p.e(f's_cmp_eq_u32 {s(S_SLOT)}, {4 * STG}')
        p.e(f's_cselect_b32 {s(S_SLOT)}, 0, {s(S_SLOT)}')

    iss_p(); iss_v(False); adv()
    iss_v(True); iss_w(); adv()
    iss_p(); iss_v(False); iss_w(); adv()
    iss_v(True); iss_w(); adv()
    p.e('s_waitcnt vmcnt(29)')
    st.dyn(100)
    p.e('s_barrier')
    st.dyn(100)
    p.e(f's_mov_b32 {s(S_CNT)}, 0')
    l1 = p.pos()
    p.e('L_k2_lloop:')
    p.e('s_waitcnt vmcnt(20)')
    st.dyn(100)
    p.e('s_barrier')
    st.dyn(100)
    iss_p(); iss_v(False); iss_w(); adv()
    p.e('s_waitcnt vmcnt(20)')
    st.dyn(100)
    p.e('s_barrier')
    st.dyn(100)
    iss_v(True); iss_w(); adv()
    p.e(f's_add_u32 {s(S_CNT)}, {s(S_CNT)}, 1')
    p.e(f's_cmp_lt_u32 {s(S_CNT)}, 6')
    p.e('s_cbranch_scc1 L_k2_lloop')
    l2 = p.pos()
    p.e('s_waitcnt vmcnt(20)')
    st.dyn(100)
    p.e('s_barrier')
    st.dyn(100)
    iss_w()
    p.e('s_waitcnt vmcnt(14)')
    st.dyn(100)
    p.e('s_barrier')
    st.dyn(100)
    p.e('s_waitcnt vmcnt(5)')
    st.dyn(100)
    p.e('s_barrier')
    st.dyn(100)
    p.e('s_waitcnt vmcnt(0)')
    st.dyn(100)
    p.e('s_barrier')
    st.dyn(100)
    st.dyn(100)
    p.e('s_barrier')
    st.dyn(100)
    st.flush(100, 101, False)
    p.e('L_k2_end:')
    p.e('s_endpgm')
    l3 = p.pos()
    p.add_trace([(t0, t1), (l0, l1), (l1, l2), (l1, l2), (l2, l3)])
    return name


def gen_k3(p, o):
    name = 'k3_kernel'
    kernel_header(p, name)
    t0 = p.pos()
    p.e('s_cmp_ge_u32 s2, 256')
    p.e('s_cbranch_scc1 L_k3_end')
    p.e('s_load_dwordx2 s[4:5], s[0:1], 80')
    p.e('s_load_dwordx2 s[6:7], s[0:1], 96')
    p.e('v_lshrrev_b32 v1, 6, v0')
    p.e('v_and_b32 v2, 63, v0')
    p.e('v_lshlrev_b32 v3, 4, v2')
    p.e('v_lshl_add_u32 v3, v1, 12, v3')
    p.e(f's_mul_i32 s8, s2, {4 * 20480}')
    p.e(f's_add_u32 s8, s8, {WS_PART}')
    p.e('s_waitcnt lgkmcnt(0)')
    srd(p, 12, 6, 7, 8, WS_PART + 1024 * 20480)
    for xq in range(4):
        p.e(f's_mov_b32 s9, {xq * 20480}')
        for q in range(4):
            p.e(f'buffer_load_dwordx4 {v(8 + xq * 16 + q * 4, 4)}, v3, s[12:15], s9 offen offset:{q * 1024}')
    p.e('s_lshr_b32 s16, s2, 7')
    p.e('s_bfe_u32 s17, s2, 0x30004')
    p.e('s_bfe_u32 s18, s2, 0x20002')
    p.e('s_and_b32 s19, s2, 3')
    p.e('s_lshl_b32 s17, s17, 7')
    p.e('s_lshl_b32 s19, s19, 5')
    p.e('s_add_u32 s17, s17, s19')
    p.e('s_mul_i32 s17, s17, 2560')
    p.e('s_mul_i32 s16, s16, 1280')
    p.e('s_mul_i32 s18, s18, 320')
    p.e('s_add_u32 s17, s17, s16')
    p.e('s_add_u32 s17, s17, s18')
    srd(p, 20, 4, 5, 17, OUT_BYTES)
    p.e('v_and_b32 v4, 31, v2')
    p.e('v_mul_u32_u24 v4, 2560, v4')
    p.e('v_lshrrev_b32 v5, 5, v2')
    p.e('v_lshl_add_u32 v4, v5, 5, v4')
    p.e('v_lshl_add_u32 v4, v1, 6, v4')
    p.e('s_waitcnt vmcnt(8)')
    for r in range(16):
        p.e(f'v_add_f32 {v(8 + r)}, {v(8 + r)}, {v(24 + r)}')
    p.e('s_waitcnt vmcnt(0)')
    for r in range(16):
        p.e(f'v_add_f32 {v(40 + r)}, {v(40 + r)}, {v(56 + r)}')
    for r in range(16):
        p.e(f'v_add_f32 {v(8 + r)}, {v(8 + r)}, {v(40 + r)}')
    for r in range(8):
        p.e(f'v_cvt_pk_bf16_f32 {v(8 + r)}, {v(8 + 2 * r)}, {v(8 + 2 * r + 1)}')
    p.e('buffer_store_dwordx4 v[8:11], v4, s[20:23], 0 offen')
    p.e('buffer_store_dwordx4 v[12:15], v4, s[20:23], 0 offen offset:16')
    p.e('L_k3_end:')
    p.e('s_endpgm')
    p.add_trace([(t0, p.pos())])
    return name


def gen_read(p, name, nt):
    kernel_header(p, name)
    t0 = p.pos()
    p.e('s_cmp_ge_u32 s2, 256')
    p.e(f's_cbranch_scc1 L_{name}_end')
    p.e('s_load_dwordx16 s[16:31], s[0:1], 0')
    p.e('s_load_dwordx4 s[32:35], s[0:1], 64')
    p.e('v_lshlrev_b32 v1, 4, v0')
    p.e('s_waitcnt lgkmcnt(0)')
    sizes = [X_BYTES, KV_BYTES, KV_BYTES, W_BYTES, W_BYTES] * 2
    n = 0
    for i, sz in enumerate(sizes):
        per = sz // 256
        p.e(f's_mul_i32 s4, s2, {per}')
        p.e(f's_add_u32 s8, s{16 + 2 * i}, s4')
        p.e(f's_addc_u32 s9, s{17 + 2 * i}, 0')
        p.e(f's_mov_b32 s10, {per}')
        p.e('s_mov_b32 s11, 0x20000')
        for j in range((per + 4095) // 4096):
            p.e(f's_mov_b32 s5, {j * 4096}')
            p.e(f'buffer_load_dwordx4 {v(4 + 4 * (n % 16), 4)}, v1, s[8:11], s5 offen{" nt" if nt else ""}')
            p.e('s_waitcnt vmcnt(15)')
            n += 1
    p.e('s_waitcnt vmcnt(0)')
    p.e(f'L_{name}_end:')
    p.e('s_endpgm')
    p.add_trace([(t0, p.pos())])


def build(o):
    p = Prog()
    gen_k1(p, o); gen_k2(p, o); gen_k3(p, o)
    LL = {'1': '; @launch kernel=k1_kernel grid=(256,1,1) block=(512,1,1) lds=147456',
          '2': '; @launch kernel=k2_kernel grid=(256,1,1) block=(512,1,1) lds=163840',
          '3': '; @launch kernel=k3_kernel grid=(256,1,1) block=(320,1,1) lds=0',
          'r': '; @launch kernel=r_kernel grid=(256,1,1) block=(256,1,1) lds=0',
          'n': '; @launch kernel=n_kernel grid=(256,1,1) block=(256,1,1) lds=0',
          'e': '; @launch kernel=e_kernel grid=(256,1,1) block=(64,1,1) lds=0'}
    launches = [LL[c] for c in o.order]
    if 'r' in o.order:
        gen_read(p, 'r_kernel', False)
    if 'n' in o.order:
        gen_read(p, 'n_kernel', True)
    if 'e' in o.order:
        kernel_header(p, 'e_kernel')
        p.e('s_endpgm')
    txt = HEADER + '\n'.join(launches) + '\n.amdgcn_target "amdgcn-amd-amdhsa--gfx950"\n.text\n'
    txt += p.text()
    txt += '.section .rodata,"a"\n' + kd('k1_kernel') + kd('k2_kernel') + kd('k3_kernel', 72, 32)
    if 'e' in o.order:
        txt += kd('e_kernel', 8, 16)
    if 'r' in o.order:
        txt += kd('r_kernel', 72, 48)
    if 'n' in o.order:
        txt += kd('n_kernel', 72, 48)
    return txt


if __name__ == '__main__':
    o = Opt()
    out = sys.argv[1]
    for a in sys.argv[2:]:
        k, val = a.split('=')
        setattr(o, k, eval(val))
    open(out, 'w').write(build(o))
    from chk import check
    check(out)
```

```python
import sys, math, struct
from asmlib import Prog, v, s

NAME = 'concat_heads__gqa_block_cached__gqa_block_cached__near_ridge'

def f32hex(x):
    return '0x%08x' % struct.unpack('<I', struct.pack('<f', x))[0]

class Opt:
    touch = True
    nt_touch = False
    nt_dma = False
    nt_kv = False
    stamps = False
    amp = 0
    z = (0, 0, 0, -1, 0)
    zmul = 10
    zshr = 0
    rws = False
    order = '123'

WS_P = 0
WS_PART = 4 << 20
WS_STAMP = 64 << 20
X_BYTES = 1024 * 640 * 2
KV_BYTES = 32 * 32 * 32 * 128 * 2
W_BYTES = 640 * 4096 * 2
OUT_BYTES = 1024 * 1280 * 2

HEADER = open('cdna_kernels/%s.s.ref' % NAME).read().split('; Override launch')[0]


def kernel_header(p, name):
    p.e(f'.globl {name}\n.p2align 8\n.type {name},@function\n{name}:')


def kd(name, vgpr=256, sgpr=100):
    acc = (vgpr + 3) // 4 * 4
    return f'''.p2align 6
.amdhsa_kernel {name}
  .amdhsa_next_free_vgpr {vgpr}
  .amdhsa_next_free_sgpr {sgpr}
  .amdhsa_accum_offset {acc}
  .amdhsa_group_segment_fixed_size 0
  .amdhsa_kernarg_size 104
  .amdhsa_user_sgpr_count 2
  .amdhsa_user_sgpr_kernarg_segment_ptr 1
  .amdhsa_system_sgpr_workgroup_id_x 1
.end_amdhsa_kernel
'''


def srd(p, d, base_lo, base_hi, off_s, size_total):
    p.e(f's_add_u32 {s(d)}, {s(base_lo)}, {s(off_s)}')
    p.e(f's_addc_u32 {s(d+1)}, {s(base_hi)}, 0')
    p.e(f's_sub_u32 {s(d+2)}, {size_total}, {s(off_s)}')
    p.e(f's_mov_b32 {s(d+3)}, 0x20000')


class Stamper:
    def __init__(self, p, o, kslot, S_WV):
        self.p, self.o, self.kslot, self.S_WV = p, o, kslot, S_WV
        self.n = 0

    def start(self):
        if not self.o.stamps: return
        self.p.e('s_memrealtime s[92:93]')
        self.p.e('s_memtime s[94:95]')
        self.p.e('s_mov_b32 s90, 3')

    def dyn(self, vr):
        if not self.o.stamps: return
        p = self.p
        p.e('s_memtime s[88:89]')
        p.e('s_waitcnt lgkmcnt(0)')
        p.e('s_mov_b32 m0, s90'); p.e('s_nop 1'); p.e(f'v_writelane_b32 v{vr}, s88, m0')
        p.e('s_add_u32 s90, s90, 1')

    def stat(self):
        if not self.o.stamps: return
        self.p.e(f's_memtime s[{72 + 2 * self.n}:{73 + 2 * self.n}]')
        self.n += 1
        assert self.n <= 8

    def flush(self, vr, vtmp, static):
        if not self.o.stamps: return
        p = self.p
        p.e('s_memtime s[88:89]')
        p.e('s_memrealtime s[96:97]')
        p.e('s_waitcnt vmcnt(0) lgkmcnt(0)')
        if static:
            for i in range(self.n):
                p.e(f'v_writelane_b32 v{vr}, s{72 + 2 * i}, {3 + i}')
            p.e(f's_mov_b32 s90, {3 + self.n}')
        p.e('s_mov_b32 m0, s90'); p.e('s_nop 1'); p.e(f'v_writelane_b32 v{vr}, s88, m0')
        p.e(f'v_writelane_b32 v{vr}, s92, 0')
        p.e(f'v_writelane_b32 v{vr}, s96, 1')
        p.e(f'v_writelane_b32 v{vr}, s94, 2')
        p.e(f'v_writelane_b32 v{vr}, s90, 63')
        p.e('s_getreg_b32 s88, hwreg(HW_REG_XCC_ID)')
        p.e(f'v_writelane_b32 v{vr}, s88, 62')
        p.e('s_getreg_b32 s88, hwreg(HW_REG_HW_ID)')
        p.e(f'v_writelane_b32 v{vr}, s88, 61')
        p.e(f's_add_u32 s88, s2, {self.kslot * 256}')
        p.e('s_lshl_b32 s88, s88, 3')
        p.e(f's_add_u32 s88, s88, {s(self.S_WV)}')
        p.e('s_lshl_b32 s88, s88, 8')
        p.e(f's_add_u32 s88, s88, {WS_STAMP}')
        p.e('s_add_u32 s72, s24, s88')
        p.e('s_addc_u32 s73, s25, 0')
        p.e('s_mov_b32 s74, 256')
        p.e('s_mov_b32 s75, 0x20000')
        p.e(f'v_mbcnt_lo_u32_b32 v{vtmp}, -1, 0')
        p.e(f'v_mbcnt_hi_u32_b32 v{vtmp}, -1, v{vtmp}')
        p.e(f'v_lshlrev_b32 v{vtmp}, 2, v{vtmp}')
        p.e(f'buffer_store_dword v{vr}, v{vtmp}, s[72:75], 0 offen')


def gen_k1(p, o):
    name = 'k1_kernel'
    kernel_header(p, name)
    t0 = p.pos()
    S_BR, S_XQ, S_BG, S_HP, S_WV, S_T = 26, 27, 28, 29, 30, 31
    SRD_X, SRD_W, SRD_K, SRD_P = 32, 36, 40, 44
    S_SLOT, S_SX, S_SW, S_CNT, S_DELTA, S_C = 48, 49, 50, 51, 52, 53
    p.e('s_cmp_ge_u32 s2, 256')
    p.e('s_cbranch_scc1 L_k1_end')
    st = Stamper(p, o, 0, S_WV); st.start()
    p.e('s_load_dwordx8 s[8:15], s[0:1], 0')
    p.e('s_load_dwordx8 s[16:23], s[0:1], 40')
    p.e('s_load_dwordx2 s[24:25], s[0:1], 96')
    p.e('v_lshrrev_b32 v1, 6, v0')
    p.e('v_and_b32 v2, 63, v0')
    p.e(f'v_readfirstlane_b32 {s(S_WV)}, v1')
    p.e(f's_and_b32 {s(S_T)}, s2, 7')
    p.e(f's_lshr_b32 {s(S_BR)}, {s(S_T)}, 2')
    p.e(f's_and_b32 {s(S_XQ)}, {s(S_T)}, 3')
    p.e(f's_lshr_b32 {s(S_BG)}, s2, 5')
    p.e(f's_lshr_b32 {s(S_T)}, s2, 3')
    p.e(f's_and_b32 {s(S_HP)}, {s(S_T)}, 3')
    p.e('s_waitcnt lgkmcnt(0)')
    p.e(f's_cmp_eq_u32 {s(S_BR)}, 0')
    p.e('s_cselect_b64 s[8:9], s[8:9], s[16:17]')
    p.e('s_cselect_b64 s[10:11], s[10:11], s[18:19]')
    p.e('s_cselect_b64 s[14:15], s[14:15], s[22:23]')
    p.e(f's_mul_i32 {s(S_T)}, {s(S_BG)}, {128 * 1280}')
    srd(p, SRD_X, 8, 9, S_T, X_BYTES)
    p.e(f's_lshl_b32 s54, {s(S_XQ)}, 3')
    p.e(f's_lshl_b32 {s(S_T)}, {s(S_HP)}, 1')
    p.e(f's_add_u32 s54, s54, {s(S_T)}')
    p.e(f's_lshl_b32 {s(S_T)}, s54, 8')
    srd(p, SRD_W, 14, 15, S_T, W_BYTES)
    p.e(f's_lshl_b32 s55, {s(S_BG)}, 7')
    p.e('s_add_u32 s55, s55, s54')
    p.e(f's_lshl_b32 {s(S_T)}, s55, 13')
    srd(p, SRD_K, 10, 11, S_T, KV_BYTES)
    p.e(f's_lshl_b32 {s(S_T)}, {s(S_BR)}, 10')
    p.e(f's_add_u32 {s(S_T)}, {s(S_T)}, s55')
    p.e(f's_lshl_b32 {s(S_T)}, {s(S_T)}, 11')
    srd(p, SRD_P, 24, 25, S_T, 4 << 20)
    p.e(f's_cmp_ge_u32 {s(S_WV)}, 4')
    p.e('s_cbranch_scc1 L_k1_loader')
    t1 = p.pos()

    SLOT = 49152
    ACC = 0; AF = 128; BF = 160; AA = 176; BA = 180; KA = 184; KF1 = 192; SA0 = 224; SA1 = 240
    TMP = 192
    lane = 'v2'
    nt_t = ' nt' if o.nt_touch else ''
    p.e('v_mov_b32 v200, v2')
    L = 'v200'
    if o.touch:
        p.e(f's_cmp_eq_u32 {s(S_WV)}, 0')
        p.e('s_cbranch_scc0 L_k1_t1')
        p.e(f'v_lshrrev_b32 v201, 5, {L}')
        p.e('v_lshlrev_b32 v201, 6, v201')
        p.e(f'v_bfe_u32 v202, {L}, 2, 3')
        p.e('v_add_u32 v201, v201, v202')
        p.e(f's_lshl_b32 {s(S_T)}, {s(S_BG)}, 3')
        p.e(f'v_add_u32 v201, {s(S_T)}, v201')
        p.e('v_lshlrev_b32 v201, 13, v201')
        p.e(f'v_and_b32 v202, 3, {L}')
        p.e('v_lshl_add_u32 v201, v202, 7, v201')
        for i in range(5):
            p.e(f's_mov_b32 {s(S_T)}, {i * 128 * 8192}')
            p.e(f'buffer_load_dword v{204 + i}, v201, {s(SRD_W, 4)}, {s(S_T)} offen{nt_t}')
        p.e('s_branch L_k1_tdone')
        p.e('L_k1_t1:')
        p.e(f's_cmp_eq_u32 {s(S_WV)}, 1')
        p.e('s_cbranch_scc0 L_k1_t2')
        p.e(f'v_and_b32 v201, 31, {L}')
        p.e(f's_lshl_b32 {s(S_T)}, {s(S_HP)}, 5')
        p.e(f'v_add_u32 v201, {s(S_T)}, v201')
        p.e('v_mul_u32_u24 v201, 1280, v201')
        p.e(f'v_lshrrev_b32 v202, 5, {L}')
        p.e('v_lshl_add_u32 v201, v202, 7, v201')
        for i in range(5):
            p.e(f'buffer_load_dword v{204 + i}, v201, {s(SRD_X, 4)}, 0 offen offset:{i * 256}{nt_t}')
        p.e('s_branch L_k1_tdone')
        p.e('L_k1_t2:')
        p.e(f'v_lshlrev_b32 v201, 7, {L}')
        p.e(f's_sub_u32 {s(S_T)}, {s(S_WV)}, 2')
        p.e(f's_lshl_b32 {s(S_T)}, {s(S_T)}, 19')
        p.e(f'v_add_u32 v201, {s(S_T)}, v201')
        p.e('s_sleep 8')
        for i in range(4):
            p.e(f's_mov_b32 {s(S_T)}, {((i >> 1) * 32 + (i & 1)) * 8192}')
            p.e(f'buffer_load_dword v{204 + i}, v201, {s(SRD_K, 4)}, {s(S_T)} offen{nt_t}')
        p.e('L_k1_tdone:')

    p.e(f's_and_b32 s56, {s(S_WV)}, 1')
    p.e(f's_lshr_b32 s57, {s(S_WV)}, 1')
    p.e(f'v_bfe_u32 v210, {L}, 2, 2')
    p.e(f'v_lshrrev_b32 v211, 5, {L}')
    p.e('v_lshl_add_u32 v212, v211, 3, v210')
    p.e('v_lshlrev_b32 v212, 9, v212')
    p.e(f'v_bfe_u32 v213, {L}, 4, 1')
    p.e('v_lshl_add_u32 v212, v213, 5, v212')
    p.e(f'v_and_b32 v213, 1, {L}')
    p.e('v_lshl_add_u32 v212, v213, 4, v212')
    p.e(f'v_bfe_u32 v213, {L}, 1, 1')
    p.e('v_lshl_add_u32 v212, v213, 3, v212')
    p.e('s_lshl_b32 s58, s56, 8')
    p.e('s_add_u32 s58, s58, 16384')
    p.e('v_add_u32 v212, s58, v212')
    for j in range(4):
        p.e(f'v_xor_b32 v213, {j}, v210')
        p.e(f'v_lshl_add_u32 {v(AA + j)}, v213, 6, v212')
    p.e(f'v_and_b32 v213, 31, {L}')
    p.e('v_bfe_u32 v214, v213, 1, 3')
    p.e('v_xor_b32 v214, v214, v211')
    p.e('v_lshlrev_b32 v214, 4, v214')
    p.e('v_lshl_add_u32 v214, v213, 7, v214')
    p.e('s_lshl_b32 s58, s57, 13')
    p.e('v_add_u32 v214, s58, v214')
    for t in range(4):
        p.e(f'v_xor_b32 {v(BA + t)}, {t * 32}, v214')
    p.e('v_and_b32 v214, 15, v213')
    p.e('v_xor_b32 v214, v214, v211')
    p.e('v_lshlrev_b32 v214, 4, v214')
    p.e('v_lshl_add_u32 v214, v213, 8, v214')
    p.e(f's_lshl_b32 s58, {s(S_WV)}, 13')
    p.e(f's_add_u32 s58, s58, {SLOT}')
    p.e('v_add_u32 v214, s58, v214')
    for t in range(8):
        p.e(f'v_xor_b32 {v(KA + t)}, {t * 32}, v214')
    p.e(f'v_lshlrev_b32 v223, 4, {L}')
    for r in range(128):
        p.e(f'v_mov_b32 {v(ACC + r)}, 0')
    p.e(f's_mov_b32 {s(S_CNT)}, 0')
    p.e(f's_mov_b32 {s(S_SLOT)}, 0')
    p.e(f's_mov_b32 s70, {SLOT}')

    def acc(j, bb):
        return ACC + (j * 2 + bb) * 16

    def reads(t, buf):
        out = []
        out.append(f'ds_read_b128 {v(BF + buf * 8, 4)}, {v(BA + t)}')
        for j in range(4):
            for u in range(2):
                out.append(f'ds_read_b64_tr_b16 {v(AF + buf * 16 + j * 4 + u * 2, 2)}, {v(AA + j)} offset:{(16 * t + 4 * u) * 512}')
            if j == 0:
                out.append(f'ds_read_b128 {v(BF + buf * 8 + 4, 4)}, {v(BA + t)} offset:4096')
        return out

    def mfmas(buf):
        return [f'v_mfma_f32_32x32x16_bf16 {v(acc(j, bb), 16)}, {v(AF + buf * 16 + j * 4, 4)}, {v(BF + buf * 8 + bb * 4, 4)}, {v(acc(j, bb), 16)}'
                for j in range(4) for bb in range(2)]

    def interleave(ms, rs, per_gap=2):
        rs = list(rs)
        for m in ms:
            p.e(m)
            for _ in range(per_gap):
                if rs:
                    p.e(rs.pop(0))
        for r in rs:
            p.e(r)

    st.stat()
    p.e('s_barrier')
    st.stat()
    for r in reads(0, 0):
        p.e(r)
    t2 = p.pos()
    p.e('L_k1_loop:')
    interleave(mfmas(0), reads(1, 1))
    interleave(mfmas(1), reads(2, 0))
    ms = mfmas(0); rs = reads(3, 1)
    adv = [f'v_add_u32 {v(AA + j)}, {s(S_DELTA)}, {v(AA + j)}' for j in range(4)] + \
          [f'v_add_u32 {v(BA + t)}, {s(S_DELTA)}, {v(BA + t)}' for t in range(4)]
    sal = [f's_add_u32 {s(S_SLOT)}, {s(S_SLOT)}, 1', f's_cmp_eq_u32 {s(S_SLOT)}, 3',
           f's_cselect_b32 {s(S_DELTA)}, {-2 * SLOT & 0xffffffff}, s70', f's_cselect_b32 {s(S_SLOT)}, 0, {s(S_SLOT)}']
    for i, m in enumerate(ms):
        p.e(m)
        if i < 5:
            p.e(rs[2 * i]); p.e(rs[2 * i + 1])
            if i == 4:
                for x in sal:
                    p.e(x)
        elif i == 5:
            for x in adv[:4]:
                p.e(x)
        elif i == 6:
            for x in adv[4:]:
                p.e(x)
    p.e('s_waitcnt lgkmcnt(0)')
    p.e('s_barrier')
    ms = mfmas(1); rs = reads(0, 0)
    p.e(rs[0]); p.e(rs[1]); p.e(rs[2])
    interleave(ms, rs[3:])
    p.e(f's_add_u32 {s(S_CNT)}, {s(S_CNT)}, 1')
    p.e(f's_cmp_lt_u32 {s(S_CNT)}, 10')
    p.e('s_cbranch_scc1 L_k1_loop')
    t3 = p.pos()
    st.stat()
    p.e('s_waitcnt vmcnt(0) lgkmcnt(0)')
    p.e('v_mov_b32 v176, v223')
    for t in range(8):
        p.e(f'ds_read_b128 {v(AF + 4 * t, 4)}, {v(KA + t)}')

    def cvtq(bb):
        out = []
        for j in range(4):
            b = acc(j, bb)
            for r in range(8):
                out.append(f'v_cvt_pk_bf16_f32 {v(b + r)}, {v(b + 2 * r)}, {v(b + 2 * r + 1)}')
        return out

    def smf(bb, kf, sa):
        out = []
        for t in range(8):
            q = acc(t >> 1, bb) + 4 * (t & 1)
            c = '0' if t == 0 else v(sa, 16)
            out.append(f'v_mfma_f32_32x32x16_bf16 {v(sa, 16)}, {v(kf + 4 * t, 4)}, {v(q, 4)}, {c}')
        return out

    for x in cvtq(0):
        p.e(x)
    p.e('s_barrier')
    st.stat()
    for t in range(8):
        p.e(f'ds_read_b128 {v(KF1 + 4 * t, 4)}, {v(KA + t)} offset:{SLOT}')
    interleave(smf(0, AF, SA0), cvtq(1), per_gap=4)
    c = (128 ** -0.5) * math.log2(math.e)
    p.e(f's_mov_b32 {s(S_C)}, {f32hex(c)}')

    def softmax(sa, ta):
        o_ = []
        S = lambda r: v(sa + r)
        T = lambda r: v(ta + r)
        o_.append(f'v_max3_f32 {T(0)}, {S(0)}, {S(1)}, {S(2)}')
        o_.append(f'v_max3_f32 {T(1)}, {S(3)}, {S(4)}, {S(5)}')
        o_.append(f'v_max3_f32 {T(2)}, {S(6)}, {S(7)}, {S(8)}')
        o_.append(f'v_max3_f32 {T(3)}, {S(9)}, {S(10)}, {S(11)}')
        o_.append(f'v_max3_f32 {T(0)}, {T(0)}, {S(12)}, {S(13)}')
        o_.append(f'v_max3_f32 {T(1)}, {T(1)}, {S(14)}, {S(15)}')
        o_.append(f'v_max3_f32 {T(0)}, {T(0)}, {T(2)}, {T(3)}')
        o_.append(f'v_max_f32 {T(0)}, {T(0)}, {T(1)}')
        o_.append(f'v_mov_b32 {T(1)}, {T(0)}')
        o_.append(f'v_permlane32_swap_b32 {T(0)}, {T(1)}')
        o_.append(f'v_max_f32 {T(0)}, {T(0)}, {T(1)}')
        o_.append(f'v_mul_f32 {T(0)}, {s(S_C)}, {T(0)}')
        for r in range(16):
            o_.append(f'v_fma_f32 {S(r)}, {S(r)}, {s(S_C)}, -{T(0)}')
        for r in range(16):
            o_.append(f'v_exp_f32 {S(r)}, {S(r)}')
        o_.append(f'v_add_f32 {T(0)}, {S(0)}, {S(1)}')
        o_.append(f'v_add_f32 {T(1)}, {S(2)}, {S(3)}')
        o_.append(f'v_add_f32 {T(2)}, {S(4)}, {S(5)}')
        o_.append(f'v_add_f32 {T(3)}, {S(6)}, {S(7)}')
        for r in range(8, 16):
            o_.append(f'v_add_f32 {T(r & 3)}, {T(r & 3)}, {S(r)}')
        o_.append(f'v_add_f32 {T(0)}, {T(0)}, {T(1)}')
        o_.append(f'v_add_f32 {T(2)}, {T(2)}, {T(3)}')
        o_.append(f'v_add_f32 {T(0)}, {T(0)}, {T(2)}')
        o_.append(f'v_mov_b32 {T(1)}, {T(0)}')
        o_.append(f'v_permlane32_swap_b32 {T(0)}, {T(1)}')
        o_.append(f'v_add_f32 {T(0)}, {T(0)}, {T(1)}')
        o_.append(f'v_rcp_f32 {T(0)}, {T(0)}')
        for r in range(16):
            o_.append(f'v_mul_f32 {S(r)}, {S(r)}, {T(0)}')
        for r in range(8):
            o_.append(f'v_cvt_pk_bf16_f32 {S(r)}, {S(2 * r)}, {S(2 * r + 1)}')
        return o_

    p.e('s_lshl_b32 s58, s57, 6')
    p.e('s_add_u32 s58, s58, s56')
    p.e('s_lshl_b32 s58, s58, 11')
    p.e(f's_add_u32 s59, s58, {32 * 2048}')
    sm1 = smf(1, KF1, SA1)
    sm0 = softmax(SA0, 160)
    p.e(sm1[0]); p.e(sm1[1])
    interleave(sm1[2:], sm0, per_gap=5)
    p.e(f'buffer_store_dwordx4 {v(SA0, 4)}, v176, {s(SRD_P, 4)}, s58 offen')
    p.e(f'buffer_store_dwordx4 {v(SA0 + 4, 4)}, v176, {s(SRD_P, 4)}, s58 offen offset:1024')
    for x in softmax(SA1, 164):
        p.e(x)
    p.e(f'buffer_store_dwordx4 {v(SA1, 4)}, v176, {s(SRD_P, 4)}, s59 offen')
    p.e(f'buffer_store_dwordx4 {v(SA1 + 4, 4)}, v176, {s(SRD_P, 4)}, s59 offen offset:1024')
    st.stat()
    st.flush(0, 1, True)
    p.e('s_endpgm')
    t4 = p.pos()
    p.add_trace([(t0, t1), (t1, t2), (t2, t3), (t2, t3), (t3, t4)])

    p.e('L_k1_loader:')
    l0 = p.pos()
    XO = 10; WO = 14; KO = 22
    nt_d = ' nt' if o.nt_dma else ''
    nt_k = ' nt' if o.nt_kv else ''
    p.e(f's_sub_u32 s56, {s(S_WV)}, 4')
    p.e('v_lshrrev_b32 v3, 3, v2')
    p.e('s_lshl_b32 s57, s56, 5')
    p.e('v_add_u32 v3, s57, v3')
    p.e('v_and_b32 v4, 7, v2')
    for j in range(4):
        p.e(f'v_add_u32 v5, {8 * j}, v3')
        p.e('v_bfe_u32 v6, v5, 1, 3')
        p.e('v_xor_b32 v6, v6, v4')
        p.e('v_mul_u32_u24 v5, 1280, v5')
        p.e('v_lshl_add_u32 v5, v6, 4, v5')
        p.e(f'v_subrev_u32 {v(XO + j)}, {1024 * j}, v5')
    p.e('v_lshrrev_b32 v3, 5, v2')
    p.e('s_lshl_b32 s57, s56, 4')
    p.e('v_add_u32 v3, s57, v3')
    p.e('v_and_b32 v4, 31, v2')
    for j in range(8):
        p.e(f'v_add_u32 v5, {2 * j}, v3')
        p.e('v_and_b32 v6, 3, v5')
        p.e('v_lshlrev_b32 v6, 2, v6')
        p.e('v_xor_b32 v6, v6, v4')
        p.e('v_lshlrev_b32 v5, 13, v5')
        p.e('v_lshl_add_u32 v5, v6, 4, v5')
        p.e(f'v_subrev_u32 {v(WO + j)}, {1024 * (j & 3)}, v5')
    p.e('s_lshl_b32 s60, s56, 12')
    p.e('s_lshl_b32 s61, s56, 13')
    p.e('s_add_u32 s61, s61, 16384')
    p.e(f's_mov_b32 {s(S_SLOT)}, 0')
    p.e(f's_mov_b32 {s(S_SX)}, 0')
    p.e(f's_mov_b32 {s(S_SW)}, 0')
    p.e(f's_mov_b32 {s(S_CNT)}, 0')
    l1 = p.pos()
    p.e('L_k1_lloop:')
    p.e(f's_cmp_lt_u32 {s(S_CNT)}, 3')
    p.e('s_cbranch_scc1 L_k1_lissue')
    p.e(f's_cmp_eq_u32 {s(S_CNT)}, 3')
    p.e('s_cbranch_scc0 L_k1_lw')
    p.e('s_waitcnt vmcnt(24)')
    st.dyn(100)
    p.e('s_barrier')
    p.e('L_k1_lw:')
    p.e('s_waitcnt vmcnt(12)')
    st.dyn(100)
    p.e('s_barrier')
    p.e('L_k1_lissue:')
    st.dyn(100)
    p.e(f's_add_u32 m0, {s(S_SLOT)}, s61')
    for j in range(4):
        p.e(f'buffer_load_dwordx4 {v(WO + j)}, {s(SRD_W, 4)}, {s(S_SW)} offen offset:{1024 * j}{nt_d} lds')
    p.e(f's_add_u32 m0, {s(S_SLOT)}, s60')
    for j in range(4):
        p.e(f'buffer_load_dwordx4 {v(XO + j)}, {s(SRD_X, 4)}, {s(S_SX)} offen offset:{1024 * j}{nt_d} lds')
    p.e(f's_add_u32 s62, {s(S_SLOT)}, s61')
    p.e('s_add_u32 m0, s62, 4096')
    for j in range(4):
        p.e(f'buffer_load_dwordx4 {v(WO + 4 + j)}, {s(SRD_W, 4)}, {s(S_SW)} offen offset:{1024 * j}{nt_d} lds')
    st.dyn(100)
    p.e(f's_add_u32 {s(S_SX)}, {s(S_SX)}, 128')
    p.e(f's_add_u32 {s(S_SW)}, {s(S_SW)}, {64 * 8192}')
    p.e(f's_add_u32 {s(S_SLOT)}, {s(S_SLOT)}, {SLOT}')
    p.e(f's_cmp_eq_u32 {s(S_SLOT)}, {3 * SLOT}')
    p.e(f's_cselect_b32 {s(S_SLOT)}, 0, {s(S_SLOT)}')
    p.e(f's_add_u32 {s(S_CNT)}, {s(S_CNT)}, 1')
    p.e(f's_cmp_lt_u32 {s(S_CNT)}, 10')
    p.e('s_cbranch_scc1 L_k1_lloop')
    l2 = p.pos()
    p.e('v_lshrrev_b32 v3, 4, v2')
    p.e('v_and_b32 v4, 15, v2')
    for jj in range(4):
        p.e(f'v_add_u32 v5, {4 * jj}, v3')
        p.e('v_xor_b32 v6, v5, v4')
        p.e('v_lshlrev_b32 v6, 4, v6')
        p.e(f'v_lshl_add_u32 {v(KO + jj)}, v3, 8, v6')
    p.e('s_and_b32 s57, s56, 1')
    p.e('s_lshr_b32 s58, s56, 1')
    p.e('s_lshl_b32 s58, s58, 6')
    p.e('s_add_u32 s58, s58, s57')
    p.e('s_lshl_b32 s58, s58, 13')
    p.e('s_lshl_b32 s59, s56, 13')

    def kload(slot_base, extra):
        for half in range(2):
            p.e(f's_add_u32 m0, s59, {slot_base + half * 4096}')
            p.e(f's_add_u32 s62, s58, {extra + half * 4096}')
            for jj in range(4):
                p.e(f'buffer_load_dwordx4 {v(KO + jj)}, {s(SRD_K, 4)}, s62 offen offset:{1024 * jj}{nt_k} lds')

    p.e('s_waitcnt vmcnt(12)')
    st.dyn(100)
    p.e('s_barrier')
    st.dyn(100)
    kload(SLOT, 0)
    p.e('s_waitcnt vmcnt(8)')
    st.dyn(100)
    p.e('s_barrier')
    st.dyn(100)
    kload(2 * SLOT, 32 * 8192)
    p.e('s_waitcnt vmcnt(8)')
    st.dyn(100)
    p.e('s_barrier')
    st.dyn(100)
    p.e('s_waitcnt vmcnt(0)')
    st.dyn(100)
    p.e('s_barrier')
    st.flush(100, 101, False)
    p.e('L_k1_end:')
    p.e('s_endpgm')
    l3 = p.pos()
    p.add_trace([(t0, t1), (l0, l1), (l1, l2), (l1, l2), (l2, l3)])
    return name


def gen_k2(p, o):
    name = 'k2_kernel'
    kernel_header(p, name)
    t0 = p.pos()
    S_BR, S_XQ, S_BG, S_CT, S_WV, S_T = 26, 27, 28, 29, 30, 31
    SRD_V, SRD_W, SRD_P, SRD_O = 32, 36, 40, 44
    S_CNT, S_DELTA = 51, 52
    STG = 36864; VOFF = 20480; PBUF = 4 * STG
    p.e('s_cmp_ge_u32 s2, 256')
    p.e('s_cbranch_scc1 L_k2_end')
    st = Stamper(p, o, 1, S_WV); st.start()
    p.e('s_load_dwordx2 s[8:9], s[0:1], 16')
    p.e('s_load_dwordx2 s[10:11], s[0:1], 32')
    p.e('s_load_dwordx2 s[16:17], s[0:1], 56')
    p.e('s_load_dwordx2 s[18:19], s[0:1], 72')
    p.e('s_load_dwordx2 s[24:25], s[0:1], 96')
    p.e('v_lshrrev_b32 v1, 6, v0')
    p.e('v_and_b32 v2, 63, v0')
    p.e(f'v_readfirstlane_b32 {s(S_WV)}, v1')
    p.e(f's_and_b32 {s(S_T)}, s2, 7')
    p.e(f's_lshr_b32 {s(S_BR)}, {s(S_T)}, 2')
    p.e(f's_and_b32 {s(S_XQ)}, {s(S_T)}, 3')
    p.e(f's_lshr_b32 {s(S_BG)}, s2, 5')
    p.e(f's_lshr_b32 {s(S_T)}, s2, 3')
    p.e(f's_and_b32 {s(S_CT)}, {s(S_T)}, 3')
    p.e('s_waitcnt lgkmcnt(0)')
    p.e(f's_cmp_eq_u32 {s(S_BR)}, 0')
    p.e('s_cselect_b64 s[8:9], s[8:9], s[16:17]')
    p.e('s_cselect_b64 s[10:11], s[10:11], s[18:19]')
    p.e(f's_lshl_b32 s55, {s(S_BG)}, 7')
    p.e(f's_lshl_b32 {s(S_T)}, {s(S_XQ)}, 3')
    p.e(f's_add_u32 s55, s55, {s(S_T)}')
    p.e(f's_lshl_b32 {s(S_T)}, s55, 13')
    srd(p, SRD_V, 8, 9, S_T, KV_BYTES)
    p.e(f's_mul_i32 {s(S_T)}, {s(S_XQ)}, {1024 * 1280}')
    p.e(f's_mul_i32 s54, {s(S_CT)}, 320')
    p.e(f's_add_u32 {s(S_T)}, {s(S_T)}, s54')
    srd(p, SRD_W, 10, 11, S_T, W_BYTES)
    p.e(f's_lshl_b32 {s(S_T)}, {s(S_BR)}, 10')
    p.e(f's_add_u32 {s(S_T)}, {s(S_T)}, s55')
    p.e(f's_lshl_b32 {s(S_T)}, {s(S_T)}, 11')
    srd(p, SRD_P, 24, 25, S_T, 4 << 20)
    p.e(f's_lshl_b32 {s(S_T)}, {s(S_BR)}, 3')
    p.e(f's_add_u32 {s(S_T)}, {s(S_T)}, {s(S_BG)}')
    p.e(f's_lshl_b32 {s(S_T)}, {s(S_T)}, 2')
    p.e(f's_add_u32 {s(S_T)}, {s(S_T)}, {s(S_CT)}')
    p.e(f's_lshl_b32 {s(S_T)}, {s(S_T)}, 2')
    p.e(f's_and_b32 s54, {s(S_WV)}, 3')
    p.e(f's_add_u32 {s(S_T)}, {s(S_T)}, s54')
    p.e(f's_lshl_b32 {s(S_T)}, {s(S_T)}, 2')
    p.e(f's_add_u32 {s(S_T)}, {s(S_T)}, {s(S_XQ)}')
    p.e(f's_mul_i32 {s(S_T)}, {s(S_T)}, 20480')
    p.e(f's_add_u32 {s(S_T)}, {s(S_T)}, {WS_PART}')
    srd(p, SRD_O, 24, 25, S_T, WS_PART + 1024 * 20480)
    p.e(f's_cmp_ge_u32 {s(S_WV)}, 4')
    p.e('s_cbranch_scc1 L_k2_loader')
    t1 = p.pos()

    ACC = 0; OA = 80; OB = 112; FR = 144; NR = 12; PF = 192; WA = 200; VA = 201; PA = 203; LN16 = 204
    L = 'v210'
    nt_t = ' nt' if o.nt_touch else ''
    p.e(f'v_mov_b32 {L}, v2')
    if o.touch:
        p.e(f's_cmp_ge_u32 {s(S_WV)}, 2')
        p.e('s_cbranch_scc1 L_k2_t1')
        p.e(f'v_lshlrev_b32 v211, 7, {L}')
        p.e(f's_lshl_b32 {s(S_T)}, {s(S_CT)}, 18')
        p.e(f's_lshl_b32 s54, {s(S_WV)}, 13')
        p.e(f's_add_u32 {s(S_T)}, {s(S_T)}, s54')
        p.e(f'v_add_u32 v211, {s(S_T)}, v211')
        for i in range(4):
            p.e(f's_mov_b32 {s(S_T)}, {i * 2 * 8192}')
            p.e(f'buffer_load_dword v{214 + i}, v211, {s(SRD_V, 4)}, {s(S_T)} offen{nt_t}')
        p.e('s_branch L_k2_tdone')
        p.e('L_k2_t1:')
        p.e(f'v_lshrrev_b32 v211, 2, {L}')
        p.e(f's_lshl_b32 {s(S_T)}, {s(S_BG)}, 4')
        p.e(f's_sub_u32 s54, {s(S_WV)}, 2')
        p.e('s_lshl_b32 s54, s54, 7')
        p.e(f's_add_u32 {s(S_T)}, {s(S_T)}, s54')
        p.e(f'v_add_u32 v211, {s(S_T)}, v211')
        p.e('v_mul_u32_u24 v211, 1280, v211')
        p.e(f'v_and_b32 v212, 3, {L}')
        p.e('v_lshlrev_b32 v212, 7, v212')
        p.e('v_min_u32 v212, 316, v212')
        p.e('v_add_u32 v211, v211, v212')
        for i in range(4):
            p.e(f's_mov_b32 {s(S_T)}, {i * 256 * 1280}')
            p.e(f'buffer_load_dword v{214 + i}, v211, {s(SRD_W, 4)}, {s(S_T)} offen{nt_t}')
        p.e('L_k2_tdone:')
    p.e(f'v_bfe_u32 v220, {L}, 2, 2')
    p.e(f'v_lshrrev_b32 v221, 5, {L}')
    p.e('v_lshl_add_u32 v222, v221, 2, v220')
    p.e(f'v_bfe_u32 v223, {L}, 4, 1')
    p.e(f'v_and_b32 v224, 3, {L}')
    p.e('v_lshl_add_u32 v224, v223, 2, v224')
    p.e(f'v_mul_u32_u24 {v(WA)}, 320, v222')
    p.e('v_and_b32 v225, 1, v224')
    p.e(f'v_lshl_add_u32 {v(WA)}, v225, 5, {v(WA)}')
    p.e('v_lshrrev_b32 v225, 1, v224')
    p.e(f'v_lshl_add_u32 {v(WA)}, v225, 3, {v(WA)}')
    p.e('v_lshlrev_b32 v225, 7, v222')
    p.e('v_lshl_add_u32 v225, v224, 3, v225')
    p.e(f's_lshl_b32 {s(S_T)}, {s(S_WV)}, 12')
    p.e(f's_add_u32 {s(S_T)}, {s(S_T)}, {VOFF}')
    p.e(f'v_add_u32 v225, {s(S_T)}, v225')
    p.e('v_lshrrev_b32 v226, 1, v220')
    p.e(f'v_lshl_add_u32 {v(VA)}, v226, 6, v225')
    p.e('v_xor_b32 v226, 1, v226')
    p.e(f'v_lshl_add_u32 {v(VA + 1)}, v226, 6, v225')
    p.e(f'v_lshlrev_b32 {v(LN16)}, 4, {L}')
    p.e(f's_lshl_b32 {s(S_T)}, {s(S_WV)}, 11')
    p.e(f's_add_u32 {s(S_T)}, {s(S_T)}, {PBUF}')
    p.e(f'v_add_u32 {v(PA)}, {s(S_T)}, {v(LN16)}')
    for r in range(80):
        p.e(f'v_mov_b32 {v(ACC + r)}, 0')
    p.e(f's_mov_b32 {s(S_CNT)}, 0')

    def fr(i):
        return FR + (i % NR) * 4

    def wo_reads(n, ks, dst, base):
        return [f'ds_read_b64_tr_b16 {v(dst + 2 * u, 2)}, {v(WA)} offset:{base + (16 * ks + 8 * u) * 320 + n * 64}' for u in range(2)]

    def v_reads(jj, sk, dst, base):
        return [f'ds_read_b64_tr_b16 {v(dst + 2 * u, 2)}, {v(VA + jj)} offset:{base + (16 * sk + 8 * u) * 128}' for u in range(2)]

    def p_reads():
        return [f'ds_read_b128 {v(PF + 4 * sk, 4)}, {v(PA)} offset:{1024 * sk}' for sk in range(2)]

    def cvts(ob):
        out = []
        for jj in range(2):
            for r in range(8):
                out.append(f'v_cvt_pk_bf16_f32 {v(ob + jj * 8 + r)}, {v(OA + jj * 16 + 2 * r)}, {v(OA + jj * 16 + 2 * r + 1)}')
        return out

    def interval(i0, base, ob_cur):
        items = []
        order = [('w', 0, n) for n in range(5)] + [('v', 0, 0), ('v', 0, 1), ('v', 1, 0), ('v', 1, 1)] + \
                [('w', ks, n) for ks in range(1, 4) for n in range(5)]
        for k, (kind, a, b) in enumerate(order):
            d = fr(i0 + k)
            if kind == 'w':
                m = f'v_mfma_f32_32x32x16_bf16 {v(ACC + 16 * b, 16)}, {v(d, 4)}, {v(ob_cur + 4 * a, 4)}, {v(ACC + 16 * b, 16)}'
                rd = wo_reads(b, a, d, base)
            else:
                c = '0' if a == 0 else v(OA + 16 * b, 16)
                m = f'v_mfma_f32_32x32x16_bf16 {v(OA + 16 * b, 16)}, {v(d, 4)}, {v(PF + 4 * a, 4)}, {c}'
                rd = v_reads(b, a, d, base)
            items.append((m, rd))
        return items

    st.stat()
    p.e('s_barrier')
    st.stat()
    for r in p_reads():
        p.e(r)
    for k, (sk, jj) in enumerate([(0, 0), (0, 1), (1, 0), (1, 1)]):
        for r in v_reads(jj, sk, FR + 4 * k, 0):
            p.e(r)
    for k, (sk, jj) in enumerate([(0, 0), (0, 1), (1, 0), (1, 1)]):
        c = '0' if sk == 0 else v(OA + 16 * jj, 16)
        p.e(f'v_mfma_f32_32x32x16_bf16 {v(OA + 16 * jj, 16)}, {v(FR + 4 * k, 4)}, {v(PF + 4 * sk, 4)}, {c}')
    D = 5
    Q = 3
    p.e(f's_mov_b32 s53, 1')
    p.e(f's_mov_b32 s70, {STG}')
    for a in (WA, VA, VA + 1):
        p.e(f'v_add_u32 {v(a)}, {STG}, {v(a)}')
    p.e(f'v_xor_b32 {v(PA)}, 8192, {v(PA)}')
    itA = interval(0, 0, OB)
    itB = interval(24, 0, OB + 16)
    p.e('s_waitcnt lgkmcnt(0)')
    p.e('s_barrier')

    def plan(items, with_p):
        rs = []
        for k, (m, rd) in enumerate(items):
            if with_p and k == 5:
                rs += p_reads()
            rs += rd
        return rs

    ngaps = 24 - Q
    def distribute(rs):
        n = 24 - Q + 1
        out = [[] for _ in range(n)]
        per = len(rs) / n
        acc_ = 0.0; k = 0
        for g in range(n):
            acc_ += per
            while k < len(rs) and (k < math.ceil(acc_ - 1e-9)):
                out[g].append(rs[k]); k += 1
        return out

    gA = distribute(plan(itA, False))
    gB = distribute(plan(itB, True))
    for g in range(D + 1):
        for r in gA[g]:
            p.e(r)
    for x in cvts(OB):
        p.e(x)
    t2 = p.pos()
    p.e('L_k2_loop:')

    def body(items, g, nxt_g, ob_next, toggle_p):
        cv = cvts(ob_next)
        sal = ['s_add_u32 s53, s53, 1', 's_cmp_eq_u32 s53, 4',
               f's_cselect_b32 {s(S_DELTA)}, {(-3 * STG) & 0xffffffff}, s70', 's_cselect_b32 s53, 0, s53']
        adv = [f'v_add_u32 {v(a)}, {s(S_DELTA)}, {v(a)}' for a in (WA, VA, VA + 1)]
        if toggle_p:
            adv.append(f'v_xor_b32 {v(PA)}, 8192, {v(PA)}')
        for k in range(24 - D):
            p.e(items[k][0])
            gi = D + 1 + k
            if gi < len(g):
                for r in g[gi]:
                    p.e(r)
            if 11 <= k < 19:
                p.e(cv.pop(0)); p.e(cv.pop(0))
            if k == 2:
                for x in sal:
                    p.e(x)
            if k == 24 - D - 1:
                for x in adv:
                    p.e(x)
        assert not cv
        p.e('s_waitcnt lgkmcnt(0)')
        p.e('s_barrier')
        for r in nxt_g[0]:
            p.e(r)
        for k in range(24 - D, 24):
            p.e(items[k][0])
            for r in nxt_g[k - (24 - D) + 1]:
                p.e(r)

    body(itA, gA, gB, OB + 16, False)
    body(itB, gB, gA, OB, True)
    p.e(f's_add_u32 {s(S_CNT)}, {s(S_CNT)}, 1')
    p.e(f's_cmp_lt_u32 {s(S_CNT)}, 8')
    p.e('s_cbranch_scc1 L_k2_loop')
    t3 = p.pos()
    st.stat()
    p.e('s_waitcnt lgkmcnt(0)')
    for q in range(20):
        so = (q // 4) * 4096
        if q % 4 == 0:
            p.e(f's_mov_b32 {s(S_T)}, {so}')
        p.e(f'buffer_store_dwordx4 {v(ACC + 4 * q, 4)}, {v(LN16)}, {s(SRD_O, 4)}, {s(S_T)} offen offset:{(q % 4) * 1024}')
    st.stat()
    st.flush(100, 101, True)
    p.e('s_endpgm')
    t4 = p.pos()
    p.add_trace([(t0, t1), (t1, t2), (t2, t3), (t2, t3), (t3, t4)])

    p.e('L_k2_loader:')
    l0 = p.pos()
    WO = 10; VO = 16; PO = 17
    nt_d = ' nt' if o.nt_dma else ''
    nt_k = ' nt' if o.nt_kv else ''
    S_SLOT, S_SV, S_SW, S_SP, S_PL = 60, 61, 62, 63, 64
    p.e(f's_sub_u32 s56, {s(S_WV)}, 4')
    p.e('s_mul_i32 s57, s56, 20480')
    p.e('s_mov_b32 s58, 52429')
    for j in range(5):
        p.e(f'v_add_u32 v3, {64 * j}, v2')
        p.e('v_mul_u32_u24 v4, s58, v3')
        p.e('v_lshrrev_b32 v4, 20, v4')
        p.e('v_mul_u32_u24 v5, 20, v4')
        p.e('v_sub_u32 v5, v3, v5')
        p.e('v_mul_u32_u24 v4, 1280, v4')
        p.e('v_lshl_add_u32 v4, v5, 4, v4')
        p.e('v_add_u32 v4, s57, v4')
        p.e(f'v_subrev_u32 {v(WO + j)}, {1024 * (j & 3)}, v4')
    p.e('v_lshrrev_b32 v3, 3, v2')
    p.e('v_bfe_u32 v4, v2, 4, 1')
    p.e('v_lshlrev_b32 v4, 2, v4')
    p.e('v_and_b32 v5, 7, v2')
    p.e('v_xor_b32 v4, v4, v5')
    p.e('v_lshlrev_b32 v4, 4, v4')
    p.e('v_lshl_add_u32 v4, v3, 8, v4')
    p.e('s_lshl_b32 s57, s56, 18')
    p.e('v_add_u32 v4, s57, v4')
    for j in range(4):
        p.e(f'v_add_u32 {v(20 + j)}, {1024 * j}, v4')
    p.e('v_lshlrev_b32 v3, 4, v2')
    p.e('s_lshl_b32 s57, s56, 16')
    p.e(f'v_add_u32 {v(PO)}, s57, v3')
    p.e('s_mul_i32 s65, s56, 5120')
    p.e('s_lshl_b32 s66, s56, 12')
    p.e(f's_add_u32 s66, s66, {VOFF}')
    p.e('s_lshl_b32 s67, s56, 11')
    p.e(f's_add_u32 {s(S_PL)}, s67, {PBUF}')
    p.e(f's_mov_b32 {s(S_SLOT)}, 0')
    p.e(f's_mov_b32 {s(S_SV)}, 0')
    p.e(f's_mov_b32 {s(S_SW)}, 0')
    p.e(f's_mov_b32 {s(S_SP)}, 0')

    def iss_p():
        p.e(f's_mov_b32 m0, {s(S_PL)}')
        for j in range(2):
            p.e(f'buffer_load_dwordx4 {v(PO)}, {s(SRD_P, 4)}, {s(S_SP)} offen offset:{1024 * j} lds')
        p.e(f's_add_u32 {s(S_SP)}, {s(S_SP)}, 2048')
        p.e(f's_xor_b32 {s(S_PL)}, {s(S_PL)}, 8192')

    def iss_v(odd):
        p.e(f's_add_u32 m0, {s(S_SLOT)}, s66')
        for j in range(4):
            p.e(f'buffer_load_dwordx4 {v(20 + j)}, {s(SRD_V, 4)}, {s(S_SV)} offen offset:{1024 * j}{nt_k} lds')
        p.e(f's_add_u32 {s(S_SV)}, {s(S_SV)}, {8192 - 128 if odd else 128}')

    def iss_w():
        p.e(f's_add_u32 m0, {s(S_SLOT)}, s65')
        for j in range(4):
            p.e(f'buffer_load_dwordx4 {v(WO + j)}, {s(SRD_W, 4)}, {s(S_SW)} offen offset:{1024 * j}{nt_d} lds')
        p.e('s_add_u32 m0, m0, 4096')
        p.e(f'buffer_load_dwordx4 {v(WO + 4)}, {s(SRD_W, 4)}, {s(S_SW)} offen{nt_d} lds')
        p.e(f's_add_u32 {s(S_SW)}, {s(S_SW)}, {64 * 1280}')

    def adv():
        p.e(f's_add_u32 {s(S_SLOT)}, {s(S_SLOT)}, {STG}')
        p.e(f's_cmp_eq_u32 {s(S_SLOT)}, {4 * STG}')
        p.e(f's_cselect_b32 {s(S_SLOT)}, 0, {s(S_SLOT)}')

    iss_p(); iss_v(False); adv()
    iss_v(True); iss_w(); adv()
    iss_p(); iss_v(False); iss_w(); adv()
    iss_v(True); iss_w(); adv()
    p.e('s_waitcnt vmcnt(29)')
    st.dyn(100)
    p.e('s_barrier')
    st.dyn(100)
    p.e(f's_mov_b32 {s(S_CNT)}, 0')
    l1 = p.pos()
    p.e('L_k2_lloop:')
    p.e('s_waitcnt vmcnt(20)')
    st.dyn(100)
    p.e('s_barrier')
    st.dyn(100)
    iss_p(); iss_v(False); iss_w(); adv()
    p.e('s_waitcnt vmcnt(20)')
    st.dyn(100)
    p.e('s_barrier')
    st.dyn(100)
    iss_v(True); iss_w(); adv()
    p.e(f's_add_u32 {s(S_CNT)}, {s(S_CNT)}, 1')
    p.e(f's_cmp_lt_u32 {s(S_CNT)}, 6')
    p.e('s_cbranch_scc1 L_k2_lloop')
    l2 = p.pos()
    p.e('s_waitcnt vmcnt(20)')
    st.dyn(100)
    p.e('s_barrier')
    st.dyn(100)
    iss_w()
    p.e('s_waitcnt vmcnt(14)')
    st.dyn(100)
    p.e('s_barrier')
    st.dyn(100)
    p.e('s_waitcnt vmcnt(5)')
    st.dyn(100)
    p.e('s_barrier')
    st.dyn(100)
    p.e('s_waitcnt vmcnt(0)')
    st.dyn(100)
    p.e('s_barrier')
    st.dyn(100)
    st.dyn(100)
    p.e('s_barrier')
    st.dyn(100)
    st.flush(100, 101, False)
    p.e('L_k2_end:')
    p.e('s_endpgm')
    l3 = p.pos()
    p.add_trace([(t0, t1), (l0, l1), (l1, l2), (l1, l2), (l2, l3)])
    return name


def gen_k3(p, o):
    name = 'k3_kernel'
    kernel_header(p, name)
    t0 = p.pos()
    p.e('s_cmp_ge_u32 s2, 256')
    p.e('s_cbranch_scc1 L_k3_end')
    p.e('s_load_dwordx2 s[4:5], s[0:1], 80')
    p.e('s_load_dwordx2 s[6:7], s[0:1], 96')
    p.e('v_lshrrev_b32 v1, 6, v0')
    p.e('v_and_b32 v2, 63, v0')
    p.e('v_lshlrev_b32 v3, 4, v2')
    p.e('v_lshl_add_u32 v3, v1, 12, v3')
    p.e(f's_mul_i32 s8, s2, {4 * 20480}')
    p.e(f's_add_u32 s8, s8, {WS_PART}')
    p.e('s_waitcnt lgkmcnt(0)')
    srd(p, 12, 6, 7, 8, WS_PART + 1024 * 20480)
    for xq in range(4):
        p.e(f's_mov_b32 s9, {xq * 20480}')
        for q in range(4):
            p.e(f'buffer_load_dwordx4 {v(8 + xq * 16 + q * 4, 4)}, v3, s[12:15], s9 offen offset:{q * 1024}')
    p.e('s_lshr_b32 s16, s2, 7')
    p.e('s_bfe_u32 s17, s2, 0x30004')
    p.e('s_bfe_u32 s18, s2, 0x20002')
    p.e('s_and_b32 s19, s2, 3')
    p.e('s_lshl_b32 s17, s17, 7')
    p.e('s_lshl_b32 s19, s19, 5')
    p.e('s_add_u32 s17, s17, s19')
    p.e('s_mul_i32 s17, s17, 2560')
    p.e('s_mul_i32 s16, s16, 1280')
    p.e('s_mul_i32 s18, s18, 320')
    p.e('s_add_u32 s17, s17, s16')
    p.e('s_add_u32 s17, s17, s18')
    srd(p, 20, 4, 5, 17, OUT_BYTES)
    p.e('v_and_b32 v4, 31, v2')
    p.e('v_mul_u32_u24 v4, 2560, v4')
    p.e('v_lshrrev_b32 v5, 5, v2')
    p.e('v_lshl_add_u32 v4, v5, 5, v4')
    p.e('v_lshl_add_u32 v4, v1, 6, v4')
    p.e('s_waitcnt vmcnt(8)')
    for r in range(16):
        p.e(f'v_add_f32 {v(8 + r)}, {v(8 + r)}, {v(24 + r)}')
    p.e('s_waitcnt vmcnt(0)')
    for r in range(16):
        p.e(f'v_add_f32 {v(40 + r)}, {v(40 + r)}, {v(56 + r)}')
    for r in range(16):
        p.e(f'v_add_f32 {v(8 + r)}, {v(8 + r)}, {v(40 + r)}')
    for r in range(8):
        p.e(f'v_cvt_pk_bf16_f32 {v(8 + r)}, {v(8 + 2 * r)}, {v(8 + 2 * r + 1)}')
    p.e('buffer_store_dwordx4 v[8:11], v4, s[20:23], 0 offen')
    p.e('buffer_store_dwordx4 v[12:15], v4, s[20:23], 0 offen offset:16')
    p.e('L_k3_end:')
    p.e('s_endpgm')
    p.add_trace([(t0, p.pos())])
    return name


def gen_read(p, name, nt, amp=0, ws=False):
    kernel_header(p, name)
    t0 = p.pos()
    p.e('s_cmp_ge_u32 s2, 256')
    p.e(f's_cbranch_scc1 L_{name}_end')
    p.e('s_load_dwordx16 s[16:31], s[0:1], 0')
    p.e('s_load_dwordx4 s[32:35], s[0:1], 64')
    p.e('s_load_dwordx2 s[36:37], s[0:1], 96')
    p.e('s_memrealtime s[40:41]')
    p.e('v_lshlrev_b32 v1, 4, v0')
    p.e('s_waitcnt lgkmcnt(0)')
    sizes = [X_BYTES, KV_BYTES, KV_BYTES, W_BYTES, W_BYTES] * 2
    if ws:
        for i in range(10):
            p.e(f's_add_u32 s{16 + 2 * i}, s36, {(128 + 9 * i) << 20}')
            p.e(f's_addc_u32 s{17 + 2 * i}, s37, 0')
    n = 0
    for i, sz in enumerate(sizes):
        per = sz // 256
        p.e(f's_mul_i32 s4, s2, {per}')
        p.e(f's_add_u32 s8, s{16 + 2 * i}, s4')
        p.e(f's_addc_u32 s9, s{17 + 2 * i}, 0')
        p.e(f's_mov_b32 s10, {per}')
        p.e('s_mov_b32 s11, 0x20000')
        for j in range((per + 4095) // 4096):
            p.e(f's_mov_b32 s5, {j * 4096}')
            p.e(f'buffer_load_dwordx4 {v(4 + 4 * (n % 16), 4)}, v1, s[8:11], s5 offen{" nt" if nt else ""}')
            p.e('s_waitcnt vmcnt(15)')
            n += 1
    p.e('s_waitcnt vmcnt(0)')
    if amp:
        p.e('s_memrealtime s[42:43]')
        p.e('s_waitcnt lgkmcnt(0)')
        p.e('s_sub_u32 s44, s42, s40')
        p.e(f's_mul_i32 s44, s44, {amp + 1}')
        p.e('s_min_u32 s44, s44, 100000')
        p.e(f'L_{name}_spin:')
        p.e('s_memrealtime s[42:43]')
        p.e('s_waitcnt lgkmcnt(0)')
        p.e('s_sub_u32 s45, s42, s40')
        p.e('s_cmp_lt_u32 s45, s44')
        p.e(f's_cbranch_scc1 L_{name}_spin')
    p.e(f'L_{name}_end:')
    p.e('s_endpgm')
    p.add_trace([(t0, p.pos())])


def gen_z(p, o):
    name = 'z_kernel'
    kernel_header(p, name)
    t0 = p.pos()
    ka, la, kb, lb, wv = o.z
    p.e('s_cmp_ge_u32 s2, 256')
    p.e('s_cbranch_scc1 L_z_end')
    p.e('s_memrealtime s[40:41]')
    p.e('s_load_dwordx2 s[36:37], s[0:1], 96')
    p.e('s_lshl_b32 s4, s2, 11')
    p.e('s_waitcnt lgkmcnt(0)')
    p.e('s_add_u32 s36, s36, s4')
    p.e('s_addc_u32 s37, s37, 0')
    p.e(f's_add_u32 s8, s36, {WS_STAMP + ka * 256 * 2048 + wv * 256 + la * 4}')
    p.e('s_addc_u32 s9, s37, 0')
    p.e('s_load_dword s12, s[8:9], 0')
    if lb >= 0:
        p.e(f's_add_u32 s8, s36, {WS_STAMP + kb * 256 * 2048 + wv * 256 + lb * 4}')
        p.e('s_addc_u32 s9, s37, 0')
        p.e('s_load_dword s13, s[8:9], 0')
    else:
        p.e('s_mov_b32 s13, s40')
    p.e('s_waitcnt lgkmcnt(0)')
    p.e('s_sub_u32 s44, s13, s12')
    p.e(f's_mul_i32 s44, s44, {o.zmul}')
    p.e(f's_lshr_b32 s44, s44, {o.zshr}')
    p.e('s_min_u32 s44, s44, 200000')
    p.e('L_z_spin:')
    p.e('s_memrealtime s[42:43]')
    p.e('s_waitcnt lgkmcnt(0)')
    p.e('s_sub_u32 s45, s42, s40')
    p.e('s_cmp_lt_u32 s45, s44')
    p.e('s_cbranch_scc1 L_z_spin')
    p.e('L_z_end:')
    p.e('s_endpgm')
    p.add_trace([(t0, p.pos())])


def build(o):
    p = Prog()
    gen_k1(p, o); gen_k2(p, o); gen_k3(p, o)
    LL = {'1': '; @launch kernel=k1_kernel grid=(256,1,1) block=(512,1,1) lds=147456',
          '2': '; @launch kernel=k2_kernel grid=(256,1,1) block=(512,1,1) lds=163840',
          '3': '; @launch kernel=k3_kernel grid=(256,1,1) block=(320,1,1) lds=0',
          'r': '; @launch kernel=r_kernel grid=(256,1,1) block=(256,1,1) lds=0',
          'n': '; @launch kernel=n_kernel grid=(256,1,1) block=(256,1,1) lds=0',
          'z': '; @launch kernel=z_kernel grid=(256,1,1) block=(64,1,1) lds=0',
          'e': '; @launch kernel=e_kernel grid=(256,1,1) block=(64,1,1) lds=0'}
    launches = [LL[c] for c in o.order]
    if 'r' in o.order:
        gen_read(p, 'r_kernel', False, o.amp, o.rws)
    if 'n' in o.order:
        gen_read(p, 'n_kernel', True, o.amp, o.rws)
    if 'z' in o.order:
        gen_z(p, o)
    if 'e' in o.order:
        kernel_header(p, 'e_kernel')
        p.e('s_endpgm')
    txt = HEADER + '\n'.join(launches) + '\n.amdgcn_target "amdgcn-amd-amdhsa--gfx950"\n.text\n'
    txt += p.text()
    txt += '.section .rodata,"a"\n' + kd('k1_kernel') + kd('k2_kernel') + kd('k3_kernel', 72, 32)
    if 'e' in o.order:
        txt += kd('e_kernel', 8, 16)
    if 'z' in o.order:
        txt += kd('z_kernel', 8, 48)
    if 'r' in o.order:
        txt += kd('r_kernel', 72, 48)
    if 'n' in o.order:
        txt += kd('n_kernel', 72, 48)
    return txt


if __name__ == '__main__':
    o = Opt()
    out = sys.argv[1]
    for a in sys.argv[2:]:
        k, val = a.split('=')
        setattr(o, k, eval(val))
    open(out, 'w').write(build(o))
    from chk import check
    check(out)
```

```python
import sys, math, struct
from asmlib import Prog, v, s

NAME = 'concat_heads__gqa_block_cached__gqa_block_cached__near_ridge'
KN = NAME + '_kernel'

def f32hex(x):
    return '0x%08x' % struct.unpack('<I', struct.pack('<f', x))[0]

class Opt:
    stamps = False
    grp = 2
    tk = None
    tv = None
    rot2 = True
    D = 5
    Q = 3
    zread = None

WS_P = 0
WS_XB = 4 << 20
WS_FL = 16 << 20
FL_PF = 0
FL_XF = 32768
FL_EP = 65536
FL_SIZE = 65536 + 2048
WS_STAMP = 64 << 20
X_BYTES = 1024 * 640 * 2
KV_BYTES = 32 * 32 * 32 * 128 * 2
W_BYTES = 640 * 4096 * 2
OUT_BYTES = 1024 * 1280 * 2
OOB = 0x7ff00000

HEADER = open('cdna_kernels/%s.s.ref' % NAME).read().split('; Override launch')[0]

S_X, S_K, S_V, S_WQ, S_WO = 8, 10, 12, 14, 16
S_OUT, S_WS = 32, 36
SRD_X, SRD_WQ, SRD_K, SRD_V, SRD_WO, SRD_P, SRD_XB, SRD_OUT, SRD_FL = 40, 44, 48, 52, 56, 60, 64, 68, 72
S_BR, S_XQ, S_BG, S_HP, S_CT, S_WV, S_T, S_T2 = 18, 19, 20, 21, 22, 23, 24, 25
S_EP, S_TAG = 26, 27
S_CNT, S_DELTA, S_POS, S_STEP, S_C = 28, 29, 30, 31, 38


def srd(p, d, base, off_s, size_total):
    p.e(f's_add_u32 {s(d)}, {s(base)}, {s(off_s)}')
    p.e(f's_addc_u32 {s(d+1)}, {s(base+1)}, 0')
    p.e(f's_sub_u32 {s(d+2)}, {size_total}, {s(off_s)}')
    p.e(f's_mov_b32 {s(d+3)}, 0x20000')


class Stamper:
    def __init__(self, p, o):
        self.p, self.o = p, o

    def start(self):
        if not self.o.stamps: return
        self.p.e('s_memrealtime s[92:93]')
        self.p.e('s_memtime s[94:95]')
        self.p.e('s_mov_b32 s90, 3')

    def dyn(self, vr, real=False):
        if not self.o.stamps: return
        p = self.p
        p.e('s_memrealtime s[88:89]' if real else 's_memtime s[88:89]')
        p.e('s_mov_b32 s91, m0')
        p.e('s_mov_b32 m0, s90')
        p.e('s_waitcnt lgkmcnt(0)')
        p.e(f'v_writelane_b32 v{vr}, s88, m0')
        p.e('s_add_u32 s90, s90, 1')
        p.e('s_mov_b32 m0, s91')

    def flush(self, vr, vtmp):
        if not self.o.stamps: return
        p = self.p
        p.e('s_memtime s[88:89]')
        p.e('s_memrealtime s[96:97]')
        p.e('s_mov_b32 m0, s90')
        p.e('s_waitcnt vmcnt(0) lgkmcnt(0)')
        p.e(f'v_writelane_b32 v{vr}, s88, m0')
        p.e(f'v_writelane_b32 v{vr}, s92, 0')
        p.e(f'v_writelane_b32 v{vr}, s96, 1')
        p.e(f'v_writelane_b32 v{vr}, s94, 2')
        p.e(f'v_writelane_b32 v{vr}, s90, 63')
        p.e('s_getreg_b32 s88, hwreg(HW_REG_XCC_ID)')
        p.e(f'v_writelane_b32 v{vr}, s88, 62')
        p.e('s_lshl_b32 s88, s2, 3')
        p.e(f's_add_u32 s88, s88, {s(S_WV)}')
        p.e('s_lshl_b32 s88, s88, 8')
        p.e(f's_add_u32 s88, s88, {WS_STAMP}')
        p.e(f's_add_u32 s92, {s(S_WS)}, s88')
        p.e(f's_addc_u32 s93, {s(S_WS+1)}, 0')
        p.e('s_mov_b32 s94, 256')
        p.e('s_mov_b32 s95, 0x20000')
        p.e(f'v_mbcnt_lo_u32_b32 v{vtmp}, -1, 0')
        p.e(f'v_mbcnt_hi_u32_b32 v{vtmp}, -1, v{vtmp}')
        p.e(f'v_lshlrev_b32 v{vtmp}, 2, v{vtmp}')
        p.e(f'buffer_store_dword v{vr}, v{vtmp}, s[92:95], 0 offen')


def gen(p, o):
    st = Stamper(p, o)
    p.e(f'.globl {KN}\n.p2align 8\n.type {KN},@function\n{KN}:')
    t0 = p.pos()
    SLOT = 49152
    KB = 98304
    STG = 36864; VOFF = 20480; PBUF = 4 * STG
    p.e('s_cmp_ge_u32 s2, 256')
    p.e('s_cbranch_scc1 L_end')
    p.e(f's_bfe_u32 {s(S_BR)}, s2, 0x10002')
    p.e(f's_mul_i32 s3, {s(S_BR)}, 40')
    p.e('s_load_dwordx8 s[8:15], s[0:1], s3')
    p.e('s_add_u32 s3, s3, 32')
    p.e('s_load_dwordx2 s[16:17], s[0:1], s3')
    p.e('s_load_dwordx2 s[32:33], s[0:1], 80')
    p.e('s_load_dwordx2 s[36:37], s[0:1], 96')
    st.start()
    p.e('v_lshrrev_b32 v1, 6, v0')
    p.e('v_and_b32 v2, 63, v0')
    p.e(f'v_readfirstlane_b32 {s(S_WV)}, v1')
    p.e(f's_and_b32 {s(S_XQ)}, s2, 3')
    p.e(f's_lshr_b32 {s(S_BG)}, s2, 5')
    p.e(f's_bfe_u32 {s(S_HP)}, s2, 0x20003')
    p.e(f's_add_u32 {s(S_CT)}, {s(S_HP)}, {s(S_BG)}')
    p.e(f's_and_b32 {s(S_CT)}, {s(S_CT)}, 3')
    p.e(f's_cmp_lt_u32 {s(S_WV)}, 4')
    p.e('s_cbranch_scc1 L_compute')
    t1 = p.pos()

    def late_srds():
        p.e(f's_lshl_b32 s76, {s(S_BG)}, 7')
        p.e(f's_lshl_b32 {s(S_T)}, {s(S_XQ)}, 3')
        p.e(f's_add_u32 s76, s76, {s(S_T)}')
        p.e(f's_lshl_b32 {s(S_T)}, s76, 13')
        srd(p, SRD_V, S_V, S_T, KV_BYTES)
        p.e(f's_lshl_b32 {s(S_T2)}, {s(S_HP)}, 14')
        p.e(f's_add_u32 {s(S_T)}, {s(S_T)}, {s(S_T2)}')
        srd(p, SRD_K, S_K, S_T, KV_BYTES)
        p.e(f's_mul_i32 {s(S_T)}, {s(S_XQ)}, {1024 * 1280}')
        p.e(f's_mul_i32 {s(S_T2)}, {s(S_CT)}, 320')
        p.e(f's_add_u32 {s(S_T)}, {s(S_T)}, {s(S_T2)}')
        srd(p, SRD_WO, S_WO, S_T, W_BYTES)
        p.e(f's_lshl_b32 {s(S_T)}, {s(S_BR)}, 10')
        p.e(f's_add_u32 {s(S_T)}, {s(S_T)}, s76')
        p.e(f's_lshl_b32 {s(S_T)}, {s(S_T)}, 11')
        srd(p, SRD_P, S_WS, S_T, 4 << 20)
        p.e(f's_and_b32 {s(S_T)}, s2, 0xfc')
        p.e(f's_mul_i32 {s(S_T)}, {s(S_T)}, 40960')
        p.e(f's_add_u32 {s(S_T)}, {s(S_T)}, {WS_XB}')
        srd(p, SRD_XB, S_WS, S_T, WS_XB + 256 * 40960)
        p.e(f's_mov_b32 {s(S_T)}, {WS_FL}')
        srd(p, SRD_FL, S_WS, S_T, WS_FL + FL_SIZE)
        p.e(f's_lshl_b32 {s(S_T)}, {s(S_BG)}, 2')
        p.e(f's_add_u32 {s(S_T)}, {s(S_T)}, {s(S_XQ)}')
        p.e(f's_mul_i32 {s(S_T)}, {s(S_T)}, {32 * 2560}')
        p.e(f's_add_u32 {s(S_T)}, {s(S_T)}, {s(S_T2)}')
        p.e(f's_mul_i32 {s(S_T2)}, {s(S_BR)}, 1280')
        p.e(f's_add_u32 {s(S_T)}, {s(S_T)}, {s(S_T2)}')
        srd(p, SRD_OUT, S_OUT, S_T, OUT_BYTES)
        p.e(f's_lshl_b32 {s(S_T)}, {s(S_BR)}, 3')
        p.e(f's_add_u32 {s(S_T)}, {s(S_T)}, {s(S_BG)}')
        p.e(f's_lshl_b32 {s(S_T)}, {s(S_T)}, 7')
        p.e(f's_add_u32 {s(S_EP)}, {s(S_T)}, {FL_EP}')
        p.e(f's_load_dword {s(S_TAG)}, {s(SRD_FL, 2)}, {s(S_EP)}')
        p.e('s_waitcnt lgkmcnt(0)')
        p.e(f's_mul_i32 {s(S_TAG)}, {s(S_TAG)}, 0x9E3779B1')
        p.e(f's_add_u32 {s(S_TAG)}, {s(S_TAG)}, 0x7F4A7C15')

    def spin(label, vdst, vaddr, soff, mask_s, first_issued=False):
        p.e('s_mov_b32 s86, 0')
        if first_issued:
            p.e(f's_branch {label}_chk')
        p.e(f'{label}:')
        p.e(f'buffer_load_dword {v(vdst)}, {v(vaddr)}, {s(SRD_FL, 4)}, {s(soff)} offen sc1')
        p.e('s_waitcnt vmcnt(0)')
        p.e(f'{label}_chk:')
        p.e(f'v_cmp_eq_u32 vcc, {s(S_TAG)}, {v(vdst)}')
        p.e('s_add_u32 s86, s86, 1')
        p.e(f's_or_b64 vcc, vcc, {s(mask_s, 2)}')
        p.e('s_cmp_eq_u64 vcc, -1')
        p.e(f's_cbranch_scc1 {label}_ok')
        p.e('s_cmp_lt_u32 s86, 200000')
        p.e(f's_cbranch_scc1 {label}')
        p.e(f'{label}_ok:')

    def final_reduce(acc, ld, tmp, vlane16, vout, n_s):
        p.e(f's_lshl_b32 s80, s2, 7')
        p.e(f's_add_u32 s80, s80, {FL_XF}')
        p.e(f's_mov_b32 s82, 0x11111111')
        p.e(f's_lshl_b32 s82, s82, {s(S_XQ)}')
        p.e('s_mov_b32 s83, s82')
        p.e(f'v_lshrrev_b32 {v(tmp)}, 2, {v(vlane16)}')
        p.e(f'v_and_b32 {v(tmp)}, 12, {v(tmp)}')
        p.e(f's_mul_i32 s81, {s(S_XQ)}, 40960')
        p.e(f's_lshl_b32 s84, {s(n_s)}, 11')
        p.e('s_add_u32 s81, s81, s84')
        for d in range(3):
            p.e(f's_xor_b32 s84, {s(S_XQ)}, {d + 1}')
            p.e('s_mul_i32 s84, s84, 10240')
            p.e(f's_add_u32 {s(76 + d)}, s81, s84')
        p.e(f's_lshl_b32 s79, {s(n_s)}, 6')
        return

    def final_reduce2(acc, ld, tmp, vlane16, vout, label):
        spin(label, tmp + 1, tmp, 80, 82)
        for d in range(3):
            for h in range(2):
                p.e(f'buffer_load_dwordx4 {v(ld + d * 8 + h * 4, 4)}, {v(vlane16)}, {s(SRD_XB, 4)}, {s(76 + d)} offen offset:{h * 1024} sc1')
        for d in range(3):
            p.e(f's_waitcnt vmcnt({4 - 2 * d})')
            for r in range(8):
                p.e(f'v_lshlrev_b32 {v(tmp + 2)}, 16, {v(ld + d * 8 + r)}')
                p.e(f'v_and_b32 {v(tmp + 3)}, 0xffff0000, {v(ld + d * 8 + r)}')
                p.e(f'v_add_f32 {v(acc + 2 * r)}, {v(acc + 2 * r)}, {v(tmp + 2)}')
                p.e(f'v_add_f32 {v(acc + 2 * r + 1)}, {v(acc + 2 * r + 1)}, {v(tmp + 3)}')
        for r in range(8):
            p.e(f'v_cvt_pk_bf16_f32 {v(acc + r)}, {v(acc + 2 * r)}, {v(acc + 2 * r + 1)}')
        p.e(f'buffer_store_dwordx4 {v(acc, 4)}, {v(vout)}, {s(SRD_OUT, 4)}, s79 offen')
        p.e(f'buffer_store_dwordx4 {v(acc + 4, 4)}, {v(vout)}, {s(SRD_OUT, 4)}, s79 offen offset:16')

    l0 = p.pos()
    XO = 10; WQO = 14; KO = 22; WO = 26; VO = 32; PO = 36; TO = 37; LN16 = 38; FA = 39; SV = 100
    S_LW, S_SLOT, S_SX, S_SW, S_LX, S_LWQ = 39, 77, 78, 79, 80, 81
    p.e(f's_sub_u32 {s(S_LW)}, {s(S_WV)}, 4')
    p.e('v_lshrrev_b32 v3, 3, v2')
    p.e(f's_lshl_b32 {s(S_T)}, {s(S_LW)}, 5')
    p.e(f'v_add_u32 v3, {s(S_T)}, v3')
    p.e('v_mul_u32_u24 v3, 1280, v3')
    p.e('v_and_b32 v4, 7, v2')
    p.e('v_lshrrev_b32 v5, 4, v2')
    p.e('v_xor_b32 v4, v4, v5')
    p.e('v_lshl_add_u32 v6, v4, 4, v3')
    p.e('v_xor_b32 v4, 4, v4')
    p.e('v_lshl_add_u32 v7, v4, 4, v3')
    for j in range(4):
        p.e(f'v_add_u32 {v(XO + j)}, {j * (8 * 1280 - 1024)}, {"v7" if j & 1 else "v6"}')
    p.e('v_lshrrev_b32 v3, 5, v2')
    p.e('v_and_b32 v4, 31, v2')
    p.e('v_lshlrev_b32 v5, 2, v3')
    p.e('v_xor_b32 v4, v4, v5')
    p.e(f's_lshl_b32 {s(S_T)}, {s(S_LW)}, 4')
    p.e(f'v_add_u32 v3, {s(S_T)}, v3')
    p.e('v_lshlrev_b32 v3, 13, v3')
    p.e('v_lshl_add_u32 v6, v4, 4, v3')
    p.e('v_xor_b32 v4, 8, v4')
    p.e('v_lshl_add_u32 v7, v4, 4, v3')
    for j in range(8):
        p.e(f'v_add_u32 {v(WQO + j)}, {j * 16384 - 1024 * (j & 3)}, {"v7" if j & 1 else "v6"}')
    p.e(f's_lshl_b32 {s(S_LX)}, {s(S_LW)}, 12')
    p.e(f's_lshl_b32 {s(S_LWQ)}, {s(S_LW)}, 13')
    p.e(f's_add_u32 {s(S_LWQ)}, {s(S_LWQ)}, 16384')
    p.e(f's_mov_b32 {s(S_SLOT)}, {SLOT}')
    if o.grp == 2:
        p.e(f's_and_b32 {s(S_T)}, {s(S_CT)}, 1')
        p.e(f's_mul_i32 {s(S_SX)}, {s(S_T)}, {5 * 128}')
    elif o.grp == 4:
        p.e(f's_mul_i32 {s(S_T)}, {s(S_CT)}, 5')
        p.e(f's_lshr_b32 {s(S_T)}, {s(S_T)}, 1')
        p.e(f's_lshl_b32 {s(S_SX)}, {s(S_T)}, 7')
    else:
        p.e(f's_mov_b32 {s(S_SX)}, 0')
    p.e(f's_mul_i32 {s(S_T)}, {s(S_BG)}, {128 * 1280}')
    p.e(f's_lshl_b32 {s(S_T2)}, {s(S_XQ)}, 2')
    p.e(f's_add_u32 {s(S_T2)}, {s(S_T2)}, {s(S_HP)}')
    p.e(f's_lshl_b32 {s(S_T2)}, {s(S_T2)}, 9')
    p.e('s_waitcnt lgkmcnt(0)')
    srd(p, SRD_WQ, S_WQ, S_T2, W_BYTES)
    srd(p, SRD_X, S_X, S_T, X_BYTES)

    def issue1():
        p.e(f's_lshl_b32 {s(S_SW)}, {s(S_SX)}, 12')
        p.e(f's_add_u32 m0, {s(S_SLOT)}, {s(S_LWQ)}')
        for j in range(4):
            p.e(f'buffer_load_dwordx4 {v(WQO + j)}, {s(SRD_WQ, 4)}, {s(S_SW)} offen offset:{1024 * j} lds')
        p.e('s_add_u32 m0, m0, 4096')
        for j in range(4):
            p.e(f'buffer_load_dwordx4 {v(WQO + 4 + j)}, {s(SRD_WQ, 4)}, {s(S_SW)} offen offset:{1024 * j} lds')
        p.e(f's_add_u32 m0, {s(S_SLOT)}, {s(S_LX)}')
        for j in range(4):
            p.e(f'buffer_load_dwordx4 {v(XO + j)}, {s(SRD_X, 4)}, {s(S_SX)} offen offset:{1024 * j} lds')
        p.e(f's_add_u32 {s(S_SX)}, {s(S_SX)}, 128')
        p.e(f's_cmp_eq_u32 {s(S_SX)}, 1280')
        p.e(f's_cselect_b32 {s(S_SX)}, 0, {s(S_SX)}')
        p.e(f's_add_u32 {s(S_SLOT)}, {s(S_SLOT)}, {SLOT}')
        p.e(f's_cmp_eq_u32 {s(S_SLOT)}, {3 * SLOT}')
        p.e(f's_cselect_b32 {s(S_SLOT)}, 0, {s(S_SLOT)}')

    st.dyn(SV)
    issue1()
    late_srds()
    p.e(f's_and_b32 s82, {s(S_LW)}, 1')
    p.e(f's_lshr_b32 s83, {s(S_LW)}, 1')
    p.e('s_lshl_b32 s84, s83, 6')
    p.e('s_add_u32 s84, s84, s82')
    p.e('s_lshl_b32 s84, s84, 13')
    p.e(f'v_lshlrev_b32 {v(TO)}, 7, v2')
    ntouch = (1 if o.tk else 0) + (1 if o.tv else 0)
    if ntouch:
        p.e(f's_and_b32 {s(S_T)}, {s(S_BG)}, 1')
        p.e(f's_cmp_eq_u32 {s(S_T)}, 0')
        if o.tk:
            p.e(f's_cselect_b32 s4, {o.tk[0]}, {o.tk[2]}')
            p.e(f's_cselect_b32 s5, {o.tk[1]}, {o.tk[3]}')
        if o.tv:
            p.e(f's_cselect_b32 s6, {o.tv[0]}, {o.tv[2]}')
            p.e(f's_cselect_b32 s7, {o.tv[1]}, {o.tv[3]}')
        p.e(f's_add_u32 s85, s84, {32 * 8192}')
        p.e(f's_lshl_b32 s87, {s(S_HP)}, 14')
    p.e(f's_mov_b32 {s(S_CNT)}, 1')
    l1 = p.pos()
    p.e('L_l1:')
    p.e(f's_cmp_lt_u32 {s(S_CNT)}, 2')
    p.e('s_cbranch_scc1 L_l1_issue')
    p.e(f's_waitcnt vmcnt({12 + ntouch})')
    st.dyn(SV)
    p.e('s_barrier')
    p.e('L_l1_issue:')
    if o.tk:
        p.e(f's_cmp_eq_u32 {s(S_CNT)}, s4')
        p.e(f's_cselect_b32 {s(S_T)}, s84, {OOB}')
        p.e(f's_cmp_eq_u32 {s(S_CNT)}, s5')
        p.e(f's_cselect_b32 {s(S_T)}, s85, {s(S_T)}')
        p.e(f'buffer_load_dword v9, {v(TO)}, {s(SRD_K, 4)}, {s(S_T)} offen')
    if o.tv:
        p.e(f's_cmp_eq_u32 {s(S_CNT)}, s6')
        p.e(f's_cselect_b32 {s(S_T)}, s84, {OOB}')
        p.e(f's_cmp_eq_u32 {s(S_CNT)}, s7')
        p.e(f's_cselect_b32 {s(S_T)}, s85, {s(S_T)}')
        p.e(f's_add_u32 {s(S_T)}, {s(S_T)}, s87')
        p.e(f'buffer_load_dword v8, {v(TO)}, {s(SRD_V, 4)}, {s(S_T)} offen')
    issue1()
    p.e(f's_add_u32 {s(S_CNT)}, {s(S_CNT)}, 1')
    p.e(f's_cmp_lt_u32 {s(S_CNT)}, 10')
    p.e('s_cbranch_scc1 L_l1')
    l2 = p.pos()
    p.e('v_lshrrev_b32 v3, 4, v2')
    p.e('v_and_b32 v4, 15, v2')
    for jj in range(4):
        p.e(f'v_add_u32 v5, {4 * jj}, v3')
        p.e('v_xor_b32 v6, v5, v4')
        p.e('v_lshlrev_b32 v6, 4, v6')
        p.e(f'v_lshl_add_u32 {v(KO + jj)}, v3, 8, v6')
    p.e(f's_mul_i32 s85, {s(S_LW)}, 12288')
    p.e(f's_add_u32 s85, s85, {KB}')
    p.e('s_lshl_b32 s82, s82, 13')
    p.e('s_lshl_b32 s83, s83, 12')
    p.e('s_add_u32 s82, s82, s83')
    p.e(f's_add_u32 s82, s82, {PBUF}')
    p.e(f's_mul_i32 {s(S_T)}, {s(S_LW)}, 20480')
    p.e(f's_mov_b32 {s(S_T2)}, 52429')
    for j in range(5):
        p.e(f'v_add_u32 v3, {64 * j}, v2')
        p.e(f'v_mul_u32_u24 v4, {s(S_T2)}, v3')
        p.e('v_lshrrev_b32 v4, 20, v4')
        p.e('v_mul_u32_u24 v4, 960, v4')
        p.e('v_lshl_add_u32 v4, v3, 4, v4')
        p.e(f'v_add_u32 v4, {s(S_T)}, v4')
        p.e(f'v_subrev_u32 {v(WO + j)}, {1024 * (j & 3)}, v4')
    p.e('v_lshrrev_b32 v3, 3, v2')
    p.e('v_bfe_u32 v4, v2, 4, 1')
    p.e('v_lshlrev_b32 v4, 2, v4')
    p.e('v_and_b32 v5, 7, v2')
    p.e('v_xor_b32 v4, v4, v5')
    p.e('v_lshlrev_b32 v4, 4, v4')
    p.e('v_lshl_add_u32 v4, v3, 8, v4')
    p.e(f's_lshl_b32 {s(S_T)}, {s(S_LW)}, 18')
    p.e(f'v_add_u32 v4, {s(S_T)}, v4')
    for j in range(4):
        p.e(f'v_add_u32 {v(VO + j)}, {1024 * j}, v4')
    p.e(f'v_lshlrev_b32 {v(LN16)}, 4, v2')
    p.e(f's_lshl_b32 {s(S_T)}, {s(S_LW)}, 16')
    p.e(f'v_add_u32 {v(PO)}, {s(S_T)}, {v(LN16)}')
    p.e(f'v_and_b32 {v(FA)}, 3, v2')
    p.e(f'v_lshlrev_b32 {v(FA)}, 2, {v(FA)}')
    S_LWO, S_LV, S_PL, S_TV, S_PF = 78, 79, 80, 81, 87
    p.e(f's_mul_i32 {s(S_LWO)}, {s(S_LW)}, 5120')
    p.e(f's_lshl_b32 {s(S_LV)}, {s(S_LW)}, 12')
    p.e(f's_add_u32 {s(S_LV)}, {s(S_LV)}, {VOFF}')
    p.e(f's_lshl_b32 {s(S_PL)}, {s(S_LW)}, 11')
    p.e(f's_add_u32 {s(S_PL)}, {s(S_PL)}, {PBUF}')
    p.e(f's_lshl_b32 {s(S_TV)}, {s(S_HP)}, 2')
    p.e(f's_mov_b32 {s(S_SLOT)}, 0')
    p.e(f's_lshl_b32 {s(S_T)}, {s(S_BG)}, 3')
    p.e(f's_and_b32 {s(S_T2)}, s2, 7')
    p.e(f's_add_u32 {s(S_T)}, {s(S_T)}, {s(S_T2)}')
    p.e(f's_lshl_b32 {s(S_T)}, {s(S_T)}, 2')
    p.e(f's_add_u32 {s(S_T)}, {s(S_T)}, {s(S_LW)}')
    p.e(f's_lshl_b32 {s(S_PF)}, {s(S_T)}, 7')

    def bar(cnt):
        p.e(f's_waitcnt vmcnt({cnt})')
        st.dyn(SV)
        p.e('s_barrier')

    def iss_v():
        p.e(f's_lshr_b32 {s(S_T)}, {s(S_TV)}, 1')
        p.e(f's_lshl_b32 {s(S_T)}, {s(S_T)}, 13')
        p.e(f's_and_b32 {s(S_T2)}, {s(S_TV)}, 1')
        p.e(f's_lshl_b32 {s(S_T2)}, {s(S_T2)}, 7')
        p.e(f's_add_u32 {s(S_T)}, {s(S_T)}, {s(S_T2)}')
        p.e(f's_add_u32 m0, {s(S_SLOT)}, {s(S_LV)}')
        for j in range(4):
            p.e(f'buffer_load_dwordx4 {v(VO + j)}, {s(SRD_V, 4)}, {s(S_T)} offen offset:{1024 * j} lds')

    def iss_w():
        p.e(f's_add_u32 {s(S_T)}, {s(S_TV)}, 15')
        p.e(f's_and_b32 {s(S_T)}, {s(S_T)}, 15')
        p.e(f's_mul_i32 {s(S_T)}, {s(S_T)}, {64 * 1280}')
        p.e(f's_add_u32 m0, {s(S_SLOT)}, {s(S_LWO)}')
        for j in range(4):
            p.e(f'buffer_load_dwordx4 {v(WO + j)}, {s(SRD_WO, 4)}, {s(S_T)} offen offset:{1024 * j} lds')
        p.e('s_add_u32 m0, m0, 4096')
        p.e(f'buffer_load_dwordx4 {v(WO + 4)}, {s(SRD_WO, 4)}, {s(S_T)} offen lds')

    def iss_p():
        p.e(f's_lshl_b32 {s(S_T)}, {s(S_TV)}, 10')
        p.e(f's_mov_b32 m0, {s(S_PL)}')
        for j in range(2):
            p.e(f'buffer_load_dwordx4 {v(PO)}, {s(SRD_P, 4)}, {s(S_T)} offen offset:{1024 * j} sc1 lds')
        p.e(f's_xor_b32 {s(S_PL)}, {s(S_PL)}, 8192')

    def adv():
        p.e(f's_add_u32 {s(S_TV)}, {s(S_TV)}, 1')
        p.e(f's_and_b32 {s(S_TV)}, {s(S_TV)}, 15')
        p.e(f's_add_u32 {s(S_SLOT)}, {s(S_SLOT)}, {STG}')
        p.e(f's_cmp_eq_u32 {s(S_SLOT)}, {4 * STG}')
        p.e(f's_cselect_b32 {s(S_SLOT)}, 0, {s(S_SLOT)}')

    bar(12 + ntouch)
    for g in range(4):
        if g < 3:
            p.e(f's_add_u32 m0, s85, {g * 4096}')
        else:
            p.e('s_mov_b32 m0, s82')
        p.e(f's_add_u32 {s(S_T)}, s84, {(g >> 1) * 32 * 8192 + (g & 1) * 4096}')
        for jj in range(4):
            p.e(f'buffer_load_dwordx4 {v(KO + jj)}, {s(SRD_K, 4)}, {s(S_T)} offen offset:{1024 * jj} lds')
    bar(16)
    iss_v(); adv()
    bar(4)
    iss_v(); iss_w(); adv()
    bar(9)
    PR = 44
    p.e(f'v_add_u32 v3, {s(S_PL)}, {v(LN16)}')
    for hh in range(2):
        for sk in range(2):
            p.e(f'ds_read_b128 {v(PR + (hh * 2 + sk) * 4, 4)}, v3 offset:{hh * 8192 + sk * 1024}')
    p.e(f's_lshl_b32 {s(S_T)}, {s(S_HP)}, 12')
    for hh in range(2):
        for sk in range(2):
            p.e(f'buffer_store_dwordx4 {v(PR + (hh * 2 + sk) * 4, 4)}, {v(PO)}, {s(SRD_P, 4)}, {s(S_T)} offen offset:{hh * 2048 + sk * 1024} sc1')
    iss_v(); iss_w(); adv()
    bar(13)
    p.e('s_waitcnt vmcnt(9)')
    p.e(f'v_mov_b32 v4, {s(S_TAG)}')
    p.e(f's_lshl_b32 {s(S_T)}, {s(S_HP)}, 2')
    p.e(f's_add_u32 {s(S_T)}, {s(S_T)}, {s(S_PF)}')
    p.e('v_mov_b32 v5, 0')
    p.e(f'buffer_store_dword v4, v5, {s(SRD_FL, 4)}, {s(S_T)} offen sc1')
    iss_v(); iss_w(); adv()
    bar(10)
    p.e(f'buffer_load_dword v6, {v(FA)}, {s(SRD_FL, 4)}, {s(S_PF)} offen sc1')
    iss_v(); iss_w()
    p.e('s_waitcnt vmcnt(9)')
    p.e('s_mov_b64 s[82:83], 0')
    spin('L_pspin', 6, FA, S_PF, 82, first_issued=True)
    iss_p(); adv()
    st.dyn(SV)
    p.e('s_barrier')
    iss_v(); iss_w(); adv()
    bar(9)
    p.e(f's_mov_b32 {s(S_CNT)}, 2')
    l3 = p.pos()
    p.e('L_l2:')
    iss_p(); iss_v(); iss_w(); adv()
    bar(11)
    iss_v(); iss_w(); adv()
    bar(9)
    p.e(f's_add_u32 {s(S_CNT)}, {s(S_CNT)}, 1')
    p.e(f's_cmp_lt_u32 {s(S_CNT)}, 7')
    p.e('s_cbranch_scc1 L_l2')
    l4 = p.pos()
    iss_w()
    bar(5)
    bar(0)
    VOUT = 40
    p.e('v_and_b32 v4, 31, v2')
    p.e('v_mul_u32_u24 v4, 2560, v4')
    p.e('v_lshrrev_b32 v5, 5, v2')
    p.e(f'v_lshl_add_u32 {v(VOUT)}, v5, 5, v4')
    final_reduce(48, 64, 42, LN16, VOUT, S_LW)
    p.e(f's_lshl_b32 {s(S_T)}, {s(S_LW)}, 12')
    p.e(f'v_add_u32 v3, {s(S_T)}, {v(LN16)}')
    p.e('s_barrier')
    st.dyn(SV)
    p.e('s_barrier')
    st.dyn(SV)
    for q in range(4):
        p.e(f'ds_read_b128 {v(48 + 4 * q, 4)}, v3 offset:{q * 1024}')
    final_reduce2(48, 64, 42, LN16, VOUT, 'L_xspin_l')
    st.flush(SV, 101)
    p.e('L_end:')
    p.e('s_endpgm')
    l5 = p.pos()
    p.add_trace([(t0, t1), (l0, l1), (l1, l2), (l1, l2), (l2, l3), (l3, l4), (l3, l4), (l4, l5)])

    p.e('L_compute:')
    c0 = p.pos()
    ACC = 0; AF = 128; BF = 160; AA = 176; BA = 180; KA = 184; KF1 = 192; SA0 = 224; SA1 = 240
    SVC = 222
    L = 'v200'
    p.e(f'v_mov_b32 {L}, v2')
    S_HH, S_BP = 77, 78
    p.e(f's_and_b32 {s(S_HH)}, {s(S_WV)}, 1')
    p.e(f's_lshr_b32 {s(S_BP)}, {s(S_WV)}, 1')
    p.e(f'v_bfe_u32 v210, {L}, 2, 2')
    p.e(f'v_lshrrev_b32 v211, 5, {L}')
    p.e('v_lshl_add_u32 v212, v211, 3, v210')
    p.e('v_lshlrev_b32 v212, 9, v212')
    p.e(f'v_bfe_u32 v213, {L}, 4, 1')
    p.e('v_lshl_add_u32 v212, v213, 5, v212')
    p.e(f'v_and_b32 v213, 1, {L}')
    p.e('v_lshl_add_u32 v212, v213, 4, v212')
    p.e(f'v_bfe_u32 v213, {L}, 1, 1')
    p.e('v_lshl_add_u32 v212, v213, 3, v212')
    p.e(f's_lshl_b32 {s(S_T)}, {s(S_HH)}, 8')
    p.e(f's_add_u32 {s(S_T)}, {s(S_T)}, {16384 + SLOT}')
    p.e(f'v_add_u32 v212, {s(S_T)}, v212')
    for j in range(4):
        p.e(f'v_xor_b32 v213, {j}, v210')
        p.e(f'v_lshl_add_u32 {v(AA + j)}, v213, 6, v212')
    p.e(f'v_and_b32 v213, 31, {L}')
    p.e('v_bfe_u32 v214, v213, 1, 3')
    p.e('v_xor_b32 v214, v214, v211')
    p.e('v_lshlrev_b32 v214, 4, v214')
    p.e('v_lshl_add_u32 v214, v213, 7, v214')
    p.e(f's_lshl_b32 {s(S_T)}, {s(S_BP)}, 13')
    p.e(f's_add_u32 {s(S_T)}, {s(S_T)}, {SLOT}')
    p.e(f'v_add_u32 v214, {s(S_T)}, v214')
    for t in range(4):
        p.e(f'v_xor_b32 {v(BA + t)}, {t * 32}, v214')
    p.e('v_and_b32 v214, 15, v213')
    p.e('v_xor_b32 v214, v214, v211')
    p.e('v_lshlrev_b32 v214, 4, v214')
    p.e('v_lshl_add_u32 v214, v213, 8, v214')
    p.e(f's_mul_i32 {s(S_T)}, {s(S_WV)}, 12288')
    p.e(f's_add_u32 {s(S_T)}, {s(S_T)}, {KB}')
    p.e(f'v_add_u32 {v(KA)}, {s(S_T)}, v214')
    p.e(f'v_add_u32 {v(KA + 1)}, 8192, {v(KA)}')
    p.e(f's_lshl_b32 {s(S_T)}, {s(S_HH)}, 13')
    p.e(f's_lshl_b32 {s(S_T2)}, {s(S_BP)}, 12')
    p.e(f's_add_u32 s79, {s(S_T)}, {s(S_T2)}')
    p.e(f's_add_u32 s79, s79, {PBUF}')
    p.e(f's_sub_u32 {s(S_T)}, s79, 4096')
    p.e(f'v_add_u32 v214, {s(S_T)}, v214')
    p.e('v_cmp_gt_u32 vcc, 16, v213')
    p.e(f'v_cndmask_b32 {v(KA + 1)}, v214, {v(KA + 1)}, vcc')
    p.e(f'v_lshlrev_b32 {v(KA + 2)}, 4, {L}')
    p.e(f'v_add_u32 {v(KA + 3)}, s79, {v(KA + 2)}')
    WA = KA + 4; VA = KA + 5; PA = KA + 7; LN16c = KA + 2
    p.e('v_lshl_add_u32 v215, v211, 2, v210')
    p.e(f'v_bfe_u32 v216, {L}, 4, 1')
    p.e(f'v_and_b32 v217, 3, {L}')
    p.e('v_lshl_add_u32 v217, v216, 2, v217')
    p.e(f'v_mul_u32_u24 {v(WA)}, 320, v215')
    p.e('v_and_b32 v218, 1, v217')
    p.e(f'v_lshl_add_u32 {v(WA)}, v218, 5, {v(WA)}')
    p.e('v_lshrrev_b32 v218, 1, v217')
    p.e(f'v_lshl_add_u32 {v(WA)}, v218, 3, {v(WA)}')
    p.e('v_lshlrev_b32 v218, 7, v215')
    p.e('v_lshl_add_u32 v218, v217, 3, v218')
    p.e(f's_lshl_b32 {s(S_T)}, {s(S_WV)}, 12')
    p.e(f's_add_u32 {s(S_T)}, {s(S_T)}, {VOFF}')
    p.e(f'v_add_u32 v218, {s(S_T)}, v218')
    p.e('v_lshrrev_b32 v219, 1, v210')
    p.e(f'v_lshl_add_u32 {v(VA)}, v219, 6, v218')
    p.e('v_xor_b32 v219, 1, v219')
    p.e(f'v_lshl_add_u32 {v(VA + 1)}, v219, 6, v218')
    p.e(f's_lshl_b32 {s(S_T)}, {s(S_WV)}, 11')
    p.e(f's_add_u32 {s(S_T)}, {s(S_T)}, {PBUF}')
    p.e(f'v_add_u32 {v(PA)}, {s(S_T)}, {v(LN16c)}')
    for r in range(128):
        p.e(f'v_mov_b32 {v(ACC + r)}, 0')
    p.e('s_waitcnt lgkmcnt(0)')
    late_srds()
    p.e(f's_mov_b32 {s(S_CNT)}, 0')
    p.e(f's_mov_b32 {s(S_POS)}, 1')
    p.e(f's_mov_b32 {s(S_STEP)}, {SLOT}')
    c = (128 ** -0.5) * math.log2(math.e)
    p.e(f's_mov_b32 {s(S_C)}, {f32hex(c)}')

    def acc(j, bb):
        return ACC + (j * 2 + bb) * 16

    def reads(t, buf):
        out = [f'ds_read_b128 {v(BF + buf * 8, 4)}, {v(BA + t)}']
        for j in range(4):
            for u in range(2):
                out.append(f'ds_read_b64_tr_b16 {v(AF + buf * 16 + j * 4 + u * 2, 2)}, {v(AA + j)} offset:{(16 * t + 4 * u) * 512}')
            if j == 0:
                out.append(f'ds_read_b128 {v(BF + buf * 8 + 4, 4)}, {v(BA + t)} offset:4096')
        return out

    def mfmas(buf):
        return [f'v_mfma_f32_32x32x16_bf16 {v(acc(j, bb), 16)}, {v(AF + buf * 16 + j * 4, 4)}, {v(BF + buf * 8 + bb * 4, 4)}, {v(acc(j, bb), 16)}'
                for j in range(4) for bb in range(2)]

    def interleave(ms, rs, per_gap=2):
        rs = list(rs)
        for m in ms:
            p.e(m)
            for _ in range(per_gap):
                if rs:
                    p.e(rs.pop(0))
        for r in rs:
            p.e(r)

    st.dyn(SVC)
    p.e('s_barrier')
    st.dyn(SVC); st.dyn(SVC, True)
    for r in reads(0, 0):
        p.e(r)
    c1 = p.pos()
    p.e('L_c1:')
    interleave(mfmas(0), reads(1, 1))
    interleave(mfmas(1), reads(2, 0))
    ms = mfmas(0); rs = reads(3, 1)
    advv = [f'v_add_u32 {v(AA + j)}, {s(S_DELTA)}, {v(AA + j)}' for j in range(4)] + \
           [f'v_add_u32 {v(BA + t)}, {s(S_DELTA)}, {v(BA + t)}' for t in range(4)]
    sal = [f's_add_u32 {s(S_POS)}, {s(S_POS)}, 1', f's_cmp_eq_u32 {s(S_POS)}, 3',
           f's_cselect_b32 {s(S_DELTA)}, {-2 * SLOT & 0xffffffff}, {s(S_STEP)}', f's_cselect_b32 {s(S_POS)}, 0, {s(S_POS)}']
    for i, m in enumerate(ms):
        p.e(m)
        if i < 5:
            p.e(rs[2 * i]); p.e(rs[2 * i + 1])
            if i == 4:
                for x in sal:
                    p.e(x)
        elif i == 5:
            for x in advv[:4]:
                p.e(x)
        elif i == 6:
            for x in advv[4:]:
                p.e(x)
    p.e(f's_add_u32 {s(S_CNT)}, {s(S_CNT)}, 1')
    p.e('s_waitcnt lgkmcnt(0)')
    p.e('s_barrier')
    p.e(f's_cmp_eq_u32 {s(S_CNT)}, 10')
    p.e('s_cbranch_scc1 L_c1_done')
    c1b = p.pos()
    ms = mfmas(1); rs = reads(0, 0)
    p.e(rs[0]); p.e(rs[1]); p.e(rs[2])
    interleave(ms, rs[3:])
    p.e('s_branch L_c1')
    c2 = p.pos()
    p.e('L_c1_done:')
    st.dyn(SVC); st.dyn(SVC, True)
    KF0 = 192; KF1 = 128
    if o.stamps:
        p.e(f'v_mov_b32 v183, {v(SVC)}')
        SVC = 183
    kr0 = []
    for t in range(8):
        kr0.append(f'v_xor_b32 {v(AA + (t & 3))}, {t * 32}, {v(KA)}')
        kr0.append(f'ds_read_b128 {v(KF0 + 4 * t, 4)}, {v(AA + (t & 3))}')
    ms = mfmas(1)
    ms = [ms[0], ms[2], ms[4], ms[6], ms[1], ms[3], ms[5], ms[7]]

    def cvtq(bb):
        out = []
        for j in range(4):
            b = acc(j, bb)
            for r in range(8):
                out.append(f'v_cvt_pk_bf16_f32 {v(b + r)}, {v(b + 2 * r)}, {v(b + 2 * r + 1)}')
        return out

    def smf(bb, kf, sa):
        out = []
        for t in range(8):
            q = acc(t >> 1, bb) + 4 * (t & 1)
            cc = '0' if t == 0 else v(sa, 16)
            out.append(f'v_mfma_f32_32x32x16_bf16 {v(sa, 16)}, {v(kf + 4 * t, 4)}, {v(q, 4)}, {cc}')
        return out

    cq0 = cvtq(0)
    interleave(ms[:4], kr0, per_gap=4)
    interleave(ms[4:], cq0[:24], per_gap=6)
    kr1 = []
    for t in range(8):
        kr1.append(f'v_xor_b32 {v(AA + (t & 3))}, {t * 32}, {v(KA + 1)}')
        kr1.append(f'ds_read_b128 {v(KF1 + 4 * t, 4)}, {v(AA + (t & 3))}')
    for x in cq0[24:]:
        p.e(x)
    interleave(smf(0, KF0, SA0), kr1 + cvtq(1), per_gap=6)

    def softmax(sa, ta):
        o_ = []
        S = lambda r: v(sa + r)
        T = lambda r: v(ta + r)
        o_.append(f'v_max3_f32 {T(0)}, {S(0)}, {S(1)}, {S(2)}')
        o_.append(f'v_max3_f32 {T(1)}, {S(3)}, {S(4)}, {S(5)}')
        o_.append(f'v_max3_f32 {T(2)}, {S(6)}, {S(7)}, {S(8)}')
        o_.append(f'v_max3_f32 {T(3)}, {S(9)}, {S(10)}, {S(11)}')
        o_.append(f'v_max3_f32 {T(0)}, {T(0)}, {S(12)}, {S(13)}')
        o_.append(f'v_max3_f32 {T(1)}, {T(1)}, {S(14)}, {S(15)}')
        o_.append(f'v_max3_f32 {T(0)}, {T(0)}, {T(2)}, {T(3)}')
        o_.append(f'v_max_f32 {T(0)}, {T(0)}, {T(1)}')
        o_.append(f'v_mov_b32 {T(1)}, {T(0)}')
        o_.append(f'v_permlane32_swap_b32 {T(0)}, {T(1)}')
        o_.append(f'v_max_f32 {T(0)}, {T(0)}, {T(1)}')
        o_.append(f'v_mul_f32 {T(0)}, {s(S_C)}, {T(0)}')
        for r in range(16):
            o_.append(f'v_fma_f32 {S(r)}, {S(r)}, {s(S_C)}, -{T(0)}')
        for r in range(16):
            o_.append(f'v_exp_f32 {S(r)}, {S(r)}')
        o_.append(f'v_add_f32 {T(0)}, {S(0)}, {S(1)}')
        o_.append(f'v_add_f32 {T(1)}, {S(2)}, {S(3)}')
        o_.append(f'v_add_f32 {T(2)}, {S(4)}, {S(5)}')
        o_.append(f'v_add_f32 {T(3)}, {S(6)}, {S(7)}')
        for r in range(8, 16):
            o_.append(f'v_add_f32 {T(r & 3)}, {T(r & 3)}, {S(r)}')
        o_.append(f'v_add_f32 {T(0)}, {T(0)}, {T(1)}')
        o_.append(f'v_add_f32 {T(2)}, {T(2)}, {T(3)}')
        o_.append(f'v_add_f32 {T(0)}, {T(0)}, {T(2)}')
        o_.append(f'v_mov_b32 {T(1)}, {T(0)}')
        o_.append(f'v_permlane32_swap_b32 {T(0)}, {T(1)}')
        o_.append(f'v_add_f32 {T(0)}, {T(0)}, {T(1)}')
        o_.append(f'v_rcp_f32 {T(0)}, {T(0)}')
        for r in range(16):
            o_.append(f'v_mul_f32 {S(r)}, {S(r)}, {T(0)}')
        for r in range(8):
            o_.append(f'v_cvt_pk_bf16_f32 {S(r)}, {S(2 * r)}, {S(2 * r + 1)}')
        return o_

    sm1 = smf(1, KF1, SA1)
    sm0 = softmax(SA0, 160)
    p.e(sm1[0]); p.e(sm1[1])
    interleave(sm1[2:], sm0, per_gap=5)
    p.e(f'ds_write_b128 {v(KA + 3)}, {v(SA0, 4)}')
    p.e(f'ds_write_b128 {v(KA + 3)}, {v(SA0 + 4, 4)} offset:1024')
    for x in softmax(SA1, 164):
        p.e(x)
    p.e(f'ds_write_b128 {v(KA + 3)}, {v(SA1, 4)} offset:2048')
    p.e(f'ds_write_b128 {v(KA + 3)}, {v(SA1 + 4, 4)} offset:3072')

    OA = 80; OB = 112; FR = 192; NR = 12; PF = 144
    for r in range(80):
        p.e(f'v_mov_b32 {v(ACC + r)}, 0')
    p.e(f's_mov_b32 {s(S_CNT)}, 0')
    p.e(f's_mov_b32 {s(S_POS)}, 1')
    p.e(f's_mov_b32 {s(S_STEP)}, {STG}')

    def fr(i):
        return FR + (i % NR) * 4

    def wo_reads(n, ks, dst):
        return [f'ds_read_b64_tr_b16 {v(dst + 2 * u, 2)}, {v(WA)} offset:{(16 * ks + 8 * u) * 320 + n * 64}' for u in range(2)]

    def v_reads(jj, sk, dst):
        return [f'ds_read_b64_tr_b16 {v(dst + 2 * u, 2)}, {v(VA + jj)} offset:{(16 * sk + 8 * u) * 128}' for u in range(2)]

    def p_reads():
        return [f'ds_read_b128 {v(PF + 4 * sk, 4)}, {v(PA)} offset:{1024 * sk}' for sk in range(2)]

    def cvts(ob):
        return [f'v_cvt_pk_bf16_f32 {v(ob + jj * 8 + r)}, {v(OA + jj * 16 + 2 * r)}, {v(OA + jj * 16 + 2 * r + 1)}'
                for jj in range(2) for r in range(8)]

    def interval(i0, ob_cur):
        items = []
        order = [('w', 0, n) for n in range(5)] + [('v', 0, 0), ('v', 0, 1), ('v', 1, 0), ('v', 1, 1)] + \
                [('w', ks, n) for ks in range(1, 4) for n in range(5)]
        for k, (kind, a, b) in enumerate(order):
            d = fr(i0 + k)
            if kind == 'w':
                m = f'v_mfma_f32_32x32x16_bf16 {v(ACC + 16 * b, 16)}, {v(d, 4)}, {v(ob_cur + 4 * a, 4)}, {v(ACC + 16 * b, 16)}'
                rd = wo_reads(b, a, d)
            else:
                cc = '0' if a == 0 else v(OA + 16 * b, 16)
                m = f'v_mfma_f32_32x32x16_bf16 {v(OA + 16 * b, 16)}, {v(d, 4)}, {v(PF + 4 * a, 4)}, {cc}'
                rd = v_reads(b, a, d)
            items.append((m, rd))
        return items

    p.e('s_waitcnt lgkmcnt(0)')
    st.dyn(SVC)
    p.e('s_barrier')
    st.dyn(SVC); st.dyn(SVC, True)
    for r in p_reads():
        p.e(r)
    for k, (sk, jj) in enumerate([(0, 0), (0, 1), (1, 0), (1, 1)]):
        for r in v_reads(jj, sk, FR + 4 * k):
            p.e(r)
    for k, (sk, jj) in enumerate([(0, 0), (0, 1), (1, 0), (1, 1)]):
        cc = '0' if sk == 0 else v(OA + 16 * jj, 16)
        p.e(f'v_mfma_f32_32x32x16_bf16 {v(OA + 16 * jj, 16)}, {v(FR + 4 * k, 4)}, {v(PF + 4 * sk, 4)}, {cc}')
    D = o.D; Q = o.Q
    for a in (WA, VA, VA + 1):
        p.e(f'v_add_u32 {v(a)}, {STG}, {v(a)}')
    p.e(f'v_xor_b32 {v(PA)}, 8192, {v(PA)}')
    itA = interval(0, OB)
    itB = interval(24, OB + 16)
    p.e('s_waitcnt lgkmcnt(0)')
    p.e('s_barrier')

    def plan(items, with_p):
        rs = []
        for k, (m, rd) in enumerate(items):
            if with_p and k == 5:
                rs += p_reads()
            rs += rd
        return rs

    def distribute(rs):
        n = 24 - Q + 1
        out = [[] for _ in range(n)]
        per = len(rs) / n
        a_ = 0.0; k = 0
        for g in range(n):
            a_ += per
            while k < len(rs) and (k < math.ceil(a_ - 1e-9)):
                out[g].append(rs[k]); k += 1
        return out

    gA = distribute(plan(itA, False))
    gB = distribute(plan(itB, True))
    for g in range(D + 1):
        for r in gA[g]:
            p.e(r)
    for x in cvts(OB):
        p.e(x)
    c3 = p.pos()
    p.e('L_c2:')

    def body(items, g, nxt_g, ob_next, toggle_p):
        cv = cvts(ob_next)
        sal = [f's_add_u32 {s(S_POS)}, {s(S_POS)}, 1', f's_cmp_eq_u32 {s(S_POS)}, 4',
               f's_cselect_b32 {s(S_DELTA)}, {(-3 * STG) & 0xffffffff}, {s(S_STEP)}', f's_cselect_b32 {s(S_POS)}, 0, {s(S_POS)}']
        ad = [f'v_add_u32 {v(a)}, {s(S_DELTA)}, {v(a)}' for a in (WA, VA, VA + 1)]
        if toggle_p:
            ad.append(f'v_xor_b32 {v(PA)}, 8192, {v(PA)}')
        for k in range(24 - D):
            p.e(items[k][0])
            gi = D + 1 + k
            if gi < len(g):
                for r in g[gi]:
                    p.e(r)
            if k >= 11 and cv:
                p.e(cv.pop(0)); p.e(cv.pop(0))
            if k == 2:
                for x in sal:
                    p.e(x)
            if k == 24 - D - 1:
                for x in ad:
                    p.e(x)
        p.e('s_waitcnt lgkmcnt(0)')
        p.e('s_barrier')
        for r in nxt_g[0]:
            p.e(r)
        for k in range(24 - D, 24):
            p.e(items[k][0])
            for r in nxt_g[k - (24 - D) + 1]:
                p.e(r)
            if cv:
                p.e(cv.pop(0)); p.e(cv.pop(0))
        assert not cv

    body(itA, gA, gB, OB + 16, False)
    body(itB, gB, gA, OB, True)
    p.e(f's_add_u32 {s(S_CNT)}, {s(S_CNT)}, 1')
    p.e(f's_cmp_lt_u32 {s(S_CNT)}, 8')
    p.e('s_cbranch_scc1 L_c2')
    c4 = p.pos()
    st.dyn(SVC); st.dyn(SVC, True)
    p.e(f's_cmp_eq_u32 {s(S_WV)}, {s(S_XQ)}')
    p.e('s_cbranch_scc1 L_keeper')
    c5 = p.pos()
    p.e(f's_mul_i32 s76, {s(S_WV)}, 40960')
    p.e(f's_mul_i32 {s(S_T)}, {s(S_XQ)}, 10240')
    p.e(f's_add_u32 s76, s76, {s(S_T)}')
    p.e('s_add_u32 s77, s76, 4096')
    p.e('s_add_u32 s78, s76, 8192')
    for n in range(5):
        for h in range(2):
            pc = n * 2 + h
            b = ACC + 16 * n + 8 * h
            d = OA + pc * 4
            for r in range(4):
                p.e(f'v_cvt_pk_bf16_f32 {v(d + r)}, {v(b + 2 * r)}, {v(b + 2 * r + 1)}')
            p.e(f'buffer_store_dwordx4 {v(d, 4)}, {v(LN16c)}, {s(SRD_XB, 4)}, {s(76 + pc // 4)} offen offset:{(pc % 4) * 1024} sc1')
    p.e('s_barrier')
    p.e(f's_and_b32 {s(S_T)}, s2, 0xfc')
    p.e(f's_add_u32 {s(S_T)}, {s(S_T)}, {s(S_WV)}')
    p.e(f's_lshl_b32 {s(S_T)}, {s(S_T)}, 7')
    p.e(f's_lshl_b32 {s(S_T2)}, {s(S_XQ)}, 2')
    p.e(f's_add_u32 {s(S_T)}, {s(S_T)}, {s(S_T2)}')
    p.e(f's_add_u32 {s(S_T)}, {s(S_T)}, {FL_XF}')
    p.e(f'v_mov_b32 v130, {s(S_TAG)}')
    p.e('v_mov_b32 v131, 0')
    p.e('s_waitcnt vmcnt(0)')
    st.dyn(SVC)
    p.e(f'buffer_store_dword v130, v131, {s(SRD_FL, 4)}, {s(S_T)} offen sc1')
    st.flush(SVC, 132)
    p.e('s_endpgm')
    c6 = p.pos()
    p.e('L_keeper:')
    for q in range(16):
        p.e(f'ds_write_b128 {v(LN16c)}, {v(ACC + 4 * q, 4)} offset:{q * 1024}')
    p.e(f'v_lshrrev_b32 v130, 4, {v(LN16c)}')
    p.e('v_and_b32 v131, 31, v130')
    p.e('v_mul_u32_u24 v131, 2560, v131')
    p.e('v_lshrrev_b32 v130, 5, v130')
    p.e('v_lshl_add_u32 v130, v130, 5, v131')
    p.e(f's_mov_b32 {s(S_T)}, 4')
    final_reduce(64, 96, 132, LN16c, 130, S_T)
    p.e('s_waitcnt lgkmcnt(0)')
    p.e('s_barrier')
    final_reduce2(64, 96, 132, LN16c, 130, 'L_xspin_k')
    p.e(f's_or_b32 {s(S_T)}, {s(S_XQ)}, {s(S_HP)}')
    p.e(f's_cmp_eq_u32 {s(S_T)}, 0')
    p.e('s_cbranch_scc0 L_kdone')
    p.e(f'v_mov_b32 v136, {s(S_TAG)}')
    p.e('v_mov_b32 v137, 0')
    p.e(f'buffer_store_dword v136, v137, {s(SRD_FL, 4)}, {s(S_EP)} offen sc1')
    p.e('L_kdone:')
    st.flush(SVC, 138)
    p.e('s_endpgm')
    c7 = p.pos()
    pre = [(t0, t1), (c0, c1), (c1, c2), (c1, c1b), (c2, c3), (c3, c4), (c3, c4), (c4, c5)]
    p.add_trace(pre + [(c5, c6)])
    p.add_trace(pre + [(c6, c7)])


def kd(name, vgpr=256, sgpr=100):
    acc = (vgpr + 3) // 4 * 4
    return f'''.p2align 6
.amdhsa_kernel {name}
  .amdhsa_next_free_vgpr {vgpr}
  .amdhsa_next_free_sgpr {sgpr}
  .amdhsa_accum_offset {acc}
  .amdhsa_group_segment_fixed_size 0
  .amdhsa_kernarg_size 104
  .amdhsa_user_sgpr_count 2
  .amdhsa_user_sgpr_kernarg_segment_ptr 1
  .amdhsa_system_sgpr_workgroup_id_x 1
.end_amdhsa_kernel
'''


def build(o):
    p = Prog()
    gen(p, o)
    txt = HEADER + '; @launch grid=(256,1,1) block=(512,1,1) lds=163840\n.amdgcn_target "amdgcn-amd-amdhsa--gfx950"\n.text\n'
    txt += p.text()
    txt += '.section .rodata,"a"\n' + kd(KN)
    return txt


if __name__ == '__main__':
    o = Opt()
    out = sys.argv[1]
    for a in sys.argv[2:]:
        k, val = a.split('=', 1)
        setattr(o, k, eval(val))
    open(out, 'w').write(build(o))
    from chk import check
    check(out)
```

```python
import sys, math, struct
from asmlib import Prog, v, s

NAME = 'concat_heads__gqa_block_cached__gqa_block_cached__near_ridge'
KN = NAME + '_kernel'

def f32hex(x):
    return '0x%08x' % struct.unpack('<I', struct.pack('<f', x))[0]

class Opt:
    stamps = False
    grp = 2
    ksched = [{5: 8, 7: 8}, {6: 8, 8: 8}]
    nt_k = False
    vpre = 0
    v8 = 3
    v9 = 3
    w4early = False
    w2early = True
    codepf = 0
    codepf_mask = 3
    rot2 = True
    D = 5
    Q = 3
    zread = None

WS_P = 0
WS_XB = 4 << 20
WS_FL = 16 << 20
FL_PF = 0
FL_XF = 32768
FL_EP = 65536
FL_SIZE = 65536 + 2048
WS_STAMP = 64 << 20
X_BYTES = 1024 * 640 * 2
KV_BYTES = 32 * 32 * 32 * 128 * 2
W_BYTES = 640 * 4096 * 2
OUT_BYTES = 1024 * 1280 * 2
OOB = 0x7ff00000

HEADER = open('cdna_kernels/%s.s.ref' % NAME).read().split('; Override launch')[0]

S_X, S_K, S_V, S_WQ, S_WO = 8, 10, 12, 14, 16
S_OUT, S_WS = 32, 36
SRD_X, SRD_WQ, SRD_K, SRD_V, SRD_WO, SRD_P, SRD_XB, SRD_OUT, SRD_FL = 40, 44, 48, 52, 56, 60, 64, 68, 72
S_BR, S_XQ, S_BG, S_HP, S_CT, S_WV, S_T, S_T2 = 18, 19, 20, 21, 22, 23, 24, 25
S_EP, S_TAG = 26, 27
S_CNT, S_DELTA, S_POS, S_STEP, S_C = 28, 29, 30, 31, 38


def srd(p, d, base, off_s, size_total):
    p.e(f's_add_u32 {s(d)}, {s(base)}, {s(off_s)}')
    p.e(f's_addc_u32 {s(d+1)}, {s(base+1)}, 0')
    p.e(f's_sub_u32 {s(d+2)}, {size_total}, {s(off_s)}')
    p.e(f's_mov_b32 {s(d+3)}, 0x20000')


class Stamper:
    def __init__(self, p, o):
        self.p, self.o = p, o

    def start(self):
        if not self.o.stamps: return
        self.p.e('s_memrealtime s[92:93]')
        self.p.e('s_memtime s[94:95]')
        self.p.e('s_mov_b32 s90, 3')

    def dyn(self, vr, real=False):
        if not self.o.stamps: return
        p = self.p
        p.e('s_memrealtime s[88:89]' if real else 's_memtime s[88:89]')
        p.e('s_mov_b32 s91, m0')
        p.e('s_mov_b32 m0, s90')
        p.e('s_waitcnt lgkmcnt(0)')
        p.e(f'v_writelane_b32 v{vr}, s88, m0')
        p.e('s_add_u32 s90, s90, 1')
        p.e('s_mov_b32 m0, s91')

    def flush(self, vr, vtmp):
        if not self.o.stamps: return
        p = self.p
        p.e('s_memtime s[88:89]')
        p.e('s_memrealtime s[96:97]')
        p.e('s_mov_b32 m0, s90')
        p.e('s_waitcnt vmcnt(0) lgkmcnt(0)')
        p.e(f'v_writelane_b32 v{vr}, s88, m0')
        p.e(f'v_writelane_b32 v{vr}, s92, 0')
        p.e(f'v_writelane_b32 v{vr}, s96, 1')
        p.e(f'v_writelane_b32 v{vr}, s94, 2')
        p.e(f'v_writelane_b32 v{vr}, s90, 63')
        p.e('s_getreg_b32 s88, hwreg(HW_REG_XCC_ID)')
        p.e(f'v_writelane_b32 v{vr}, s88, 62')
        p.e('s_lshl_b32 s88, s2, 3')
        p.e(f's_add_u32 s88, s88, {s(S_WV)}')
        p.e('s_lshl_b32 s88, s88, 8')
        p.e(f's_add_u32 s88, s88, {WS_STAMP}')
        p.e(f's_add_u32 s92, {s(S_WS)}, s88')
        p.e(f's_addc_u32 s93, {s(S_WS+1)}, 0')
        p.e('s_mov_b32 s94, 256')
        p.e('s_mov_b32 s95, 0x20000')
        p.e(f'v_mbcnt_lo_u32_b32 v{vtmp}, -1, 0')
        p.e(f'v_mbcnt_hi_u32_b32 v{vtmp}, -1, v{vtmp}')
        p.e(f'v_lshlrev_b32 v{vtmp}, 2, v{vtmp}')
        p.e(f'buffer_store_dword v{vr}, v{vtmp}, s[92:95], 0 offen')


def gen(p, o):
    st = Stamper(p, o)
    p.e(f'.globl {KN}\n.p2align 8\n.type {KN},@function\n{KN}:')
    t0 = p.pos()
    SLOT = 49152
    KB = 98304
    STG = 36864; VOFF = 20480; PBUF = 4 * STG
    p.e('s_cmp_ge_u32 s2, 256')
    p.e('s_cbranch_scc1 L_end')
    p.e(f's_bfe_u32 {s(S_BR)}, s2, 0x10002')
    p.e(f's_mul_i32 s3, {s(S_BR)}, 40')
    p.e('s_load_dwordx8 s[8:15], s[0:1], s3')
    p.e('s_add_u32 s3, s3, 32')
    p.e('s_load_dwordx2 s[16:17], s[0:1], s3')
    p.e('s_load_dwordx2 s[32:33], s[0:1], 80')
    p.e('s_load_dwordx2 s[36:37], s[0:1], 96')
    st.start()
    p.e('v_lshrrev_b32 v1, 6, v0')
    p.e('v_and_b32 v2, 63, v0')
    p.e(f'v_readfirstlane_b32 {s(S_WV)}, v1')
    p.e(f's_and_b32 {s(S_XQ)}, s2, 3')
    p.e(f's_lshr_b32 {s(S_BG)}, s2, 5')
    p.e(f's_bfe_u32 {s(S_HP)}, s2, 0x20003')
    p.e(f's_add_u32 {s(S_CT)}, {s(S_HP)}, {s(S_BG)}')
    p.e(f's_and_b32 {s(S_CT)}, {s(S_CT)}, 3')
    p.e(f's_cmp_lt_u32 {s(S_WV)}, 4')
    p.e('s_cbranch_scc1 L_compute')
    t1 = p.pos()

    def late_srds():
        p.e(f's_lshl_b32 s76, {s(S_BG)}, 7')
        p.e(f's_lshl_b32 {s(S_T)}, {s(S_XQ)}, 3')
        p.e(f's_add_u32 s76, s76, {s(S_T)}')
        p.e(f's_lshl_b32 {s(S_T)}, s76, 13')
        srd(p, SRD_V, S_V, S_T, KV_BYTES)
        p.e(f's_lshl_b32 {s(S_T2)}, {s(S_HP)}, 14')
        p.e(f's_add_u32 {s(S_T)}, {s(S_T)}, {s(S_T2)}')
        srd(p, SRD_K, S_K, S_T, KV_BYTES)
        p.e(f's_mul_i32 {s(S_T)}, {s(S_XQ)}, {1024 * 1280}')
        p.e(f's_mul_i32 {s(S_T2)}, {s(S_CT)}, 320')
        p.e(f's_add_u32 {s(S_T)}, {s(S_T)}, {s(S_T2)}')
        srd(p, SRD_WO, S_WO, S_T, W_BYTES)
        p.e(f's_lshl_b32 {s(S_T)}, {s(S_BR)}, 10')
        p.e(f's_add_u32 {s(S_T)}, {s(S_T)}, s76')
        p.e(f's_lshl_b32 {s(S_T)}, {s(S_T)}, 11')
        srd(p, SRD_P, S_WS, S_T, 4 << 20)
        p.e(f's_and_b32 {s(S_T)}, s2, 0xfc')
        p.e(f's_mul_i32 {s(S_T)}, {s(S_T)}, 40960')
        p.e(f's_add_u32 {s(S_T)}, {s(S_T)}, {WS_XB}')
        srd(p, SRD_XB, S_WS, S_T, WS_XB + 256 * 40960)
        p.e(f's_mov_b32 {s(S_T)}, {WS_FL}')
        srd(p, SRD_FL, S_WS, S_T, WS_FL + FL_SIZE)
        p.e(f's_lshl_b32 {s(S_T)}, {s(S_BG)}, 2')
        p.e(f's_add_u32 {s(S_T)}, {s(S_T)}, {s(S_XQ)}')
        p.e(f's_mul_i32 {s(S_T)}, {s(S_T)}, {32 * 2560}')
        p.e(f's_add_u32 {s(S_T)}, {s(S_T)}, {s(S_T2)}')
        p.e(f's_mul_i32 {s(S_T2)}, {s(S_BR)}, 1280')
        p.e(f's_add_u32 {s(S_T)}, {s(S_T)}, {s(S_T2)}')
        srd(p, SRD_OUT, S_OUT, S_T, OUT_BYTES)
        p.e(f's_lshl_b32 {s(S_T)}, {s(S_BR)}, 3')
        p.e(f's_add_u32 {s(S_T)}, {s(S_T)}, {s(S_BG)}')
        p.e(f's_lshl_b32 {s(S_T)}, {s(S_T)}, 7')
        p.e(f's_add_u32 {s(S_EP)}, {s(S_T)}, {FL_EP}')
        p.e(f's_load_dword {s(S_TAG)}, {s(SRD_FL, 2)}, {s(S_EP)}')

    def make_tag():
        p.e('s_waitcnt lgkmcnt(0)')
        p.e(f's_mul_i32 {s(S_TAG)}, {s(S_TAG)}, 0x9E3779B1')
        p.e(f's_add_u32 {s(S_TAG)}, {s(S_TAG)}, 0x7F4A7C15')

    def spin(label, vdst, vaddr, soff, mask_s, first_issued=False):
        p.e('s_mov_b32 s86, 0')
        if first_issued:
            p.e(f's_branch {label}_chk')
        p.e(f'{label}:')
        p.e(f'buffer_load_dword {v(vdst)}, {v(vaddr)}, {s(SRD_FL, 4)}, {s(soff)} offen sc1')
        p.e('s_waitcnt vmcnt(0)')
        p.e(f'{label}_chk:')
        p.e(f'v_cmp_eq_u32 vcc, {s(S_TAG)}, {v(vdst)}')
        p.e('s_add_u32 s86, s86, 1')
        p.e(f's_or_b64 vcc, vcc, {s(mask_s, 2)}')
        p.e('s_cmp_eq_u64 vcc, -1')
        p.e(f's_cbranch_scc1 {label}_ok')
        p.e('s_cmp_lt_u32 s86, 200000')
        p.e(f's_cbranch_scc1 {label}')
        p.e(f'{label}_ok:')

    def final_reduce(acc, ld, tmp, vlane16, vout, n_s):
        p.e(f's_lshl_b32 s80, s2, 7')
        p.e(f's_add_u32 s80, s80, {FL_XF}')
        p.e(f's_mov_b32 s82, 0x11111111')
        p.e(f's_lshl_b32 s82, s82, {s(S_XQ)}')
        p.e('s_mov_b32 s83, s82')
        p.e(f'v_lshrrev_b32 {v(tmp)}, 2, {v(vlane16)}')
        p.e(f'v_and_b32 {v(tmp)}, 12, {v(tmp)}')
        p.e(f's_mul_i32 s81, {s(S_XQ)}, 40960')
        p.e(f's_lshl_b32 s84, {s(n_s)}, 11')
        p.e('s_add_u32 s81, s81, s84')
        for d in range(3):
            p.e(f's_xor_b32 s84, {s(S_XQ)}, {d + 1}')
            p.e('s_mul_i32 s84, s84, 10240')
            p.e(f's_add_u32 {s(76 + d)}, s81, s84')
        p.e(f's_lshl_b32 s79, {s(n_s)}, 6')
        return

    def final_reduce2(acc, ld, tmp, vlane16, vout, label):
        spin(label, tmp + 1, tmp, 80, 82)
        for d in range(3):
            for h in range(2):
                p.e(f'buffer_load_dwordx4 {v(ld + d * 8 + h * 4, 4)}, {v(vlane16)}, {s(SRD_XB, 4)}, {s(76 + d)} offen offset:{h * 1024} sc1')
        for d in range(3):
            p.e(f's_waitcnt vmcnt({4 - 2 * d})')
            for r in range(8):
                p.e(f'v_lshlrev_b32 {v(tmp + 2)}, 16, {v(ld + d * 8 + r)}')
                p.e(f'v_and_b32 {v(tmp + 3)}, 0xffff0000, {v(ld + d * 8 + r)}')
                p.e(f'v_add_f32 {v(acc + 2 * r)}, {v(acc + 2 * r)}, {v(tmp + 2)}')
                p.e(f'v_add_f32 {v(acc + 2 * r + 1)}, {v(acc + 2 * r + 1)}, {v(tmp + 3)}')
        for r in range(8):
            p.e(f'v_cvt_pk_bf16_f32 {v(acc + r)}, {v(acc + 2 * r)}, {v(acc + 2 * r + 1)}')
        p.e(f'buffer_store_dwordx4 {v(acc, 4)}, {v(vout)}, {s(SRD_OUT, 4)}, s79 offen')
        p.e(f'buffer_store_dwordx4 {v(acc + 4, 4)}, {v(vout)}, {s(SRD_OUT, 4)}, s79 offen offset:16')

    l0 = p.pos()
    XO = 10; WQO = 14; KO = 22; WO = 26; VO = 32; PO = 36; TO = 37; LN16 = 38; FA = 39; SV = 200
    S_LW, S_SLOT, S_SX, S_SW, S_LX, S_LWQ = 39, 77, 78, 79, 80, 81
    p.e(f's_sub_u32 {s(S_LW)}, {s(S_WV)}, 4')
    p.e('v_lshrrev_b32 v3, 3, v2')
    p.e(f's_lshl_b32 {s(S_T)}, {s(S_LW)}, 5')
    p.e(f'v_add_u32 v3, {s(S_T)}, v3')
    p.e('v_mul_u32_u24 v3, 1280, v3')
    p.e('v_and_b32 v4, 7, v2')
    p.e('v_lshrrev_b32 v5, 4, v2')
    p.e('v_xor_b32 v4, v4, v5')
    p.e('v_lshl_add_u32 v6, v4, 4, v3')
    p.e('v_xor_b32 v4, 4, v4')
    p.e('v_lshl_add_u32 v7, v4, 4, v3')
    for j in range(4):
        p.e(f'v_add_u32 {v(XO + j)}, {j * (8 * 1280 - 1024)}, {"v7" if j & 1 else "v6"}')
    p.e('v_lshrrev_b32 v3, 5, v2')
    p.e('v_and_b32 v4, 31, v2')
    p.e('v_lshlrev_b32 v5, 2, v3')
    p.e('v_xor_b32 v4, v4, v5')
    p.e(f's_lshl_b32 {s(S_T)}, {s(S_LW)}, 4')
    p.e(f'v_add_u32 v3, {s(S_T)}, v3')
    p.e('v_lshlrev_b32 v3, 13, v3')
    p.e('v_lshl_add_u32 v6, v4, 4, v3')
    p.e('v_xor_b32 v4, 8, v4')
    p.e('v_lshl_add_u32 v7, v4, 4, v3')
    for j in range(8):
        p.e(f'v_add_u32 {v(WQO + j)}, {j * 16384 - 1024 * (j & 3)}, {"v7" if j & 1 else "v6"}')
    p.e(f's_lshl_b32 {s(S_LX)}, {s(S_LW)}, 12')
    p.e(f's_lshl_b32 {s(S_LWQ)}, {s(S_LW)}, 13')
    p.e(f's_add_u32 {s(S_LWQ)}, {s(S_LWQ)}, 16384')
    p.e(f's_mov_b32 {s(S_SLOT)}, {SLOT}')
    if o.grp == 2:
        p.e(f's_and_b32 {s(S_T)}, {s(S_CT)}, 1')
        p.e(f's_mul_i32 {s(S_SX)}, {s(S_T)}, {5 * 128}')
    elif o.grp == 4:
        p.e(f's_mul_i32 {s(S_T)}, {s(S_CT)}, 5')
        p.e(f's_lshr_b32 {s(S_T)}, {s(S_T)}, 1')
        p.e(f's_lshl_b32 {s(S_SX)}, {s(S_T)}, 7')
    else:
        p.e(f's_mov_b32 {s(S_SX)}, 0')
    p.e(f's_mul_i32 {s(S_T)}, {s(S_BG)}, {128 * 1280}')
    p.e(f's_lshl_b32 {s(S_T2)}, {s(S_XQ)}, 2')
    p.e(f's_add_u32 {s(S_T2)}, {s(S_T2)}, {s(S_HP)}')
    p.e(f's_lshl_b32 {s(S_T2)}, {s(S_T2)}, 9')
    p.e('s_waitcnt lgkmcnt(0)')
    srd(p, SRD_WQ, S_WQ, S_T2, W_BYTES)
    srd(p, SRD_X, S_X, S_T, X_BYTES)

    def issue1():
        p.e(f's_lshl_b32 {s(S_SW)}, {s(S_SX)}, 12')
        p.e(f's_add_u32 m0, {s(S_SLOT)}, {s(S_LWQ)}')
        for j in range(4):
            p.e(f'buffer_load_dwordx4 {v(WQO + j)}, {s(SRD_WQ, 4)}, {s(S_SW)} offen offset:{1024 * j} lds')
        p.e('s_add_u32 m0, m0, 4096')
        for j in range(4):
            p.e(f'buffer_load_dwordx4 {v(WQO + 4 + j)}, {s(SRD_WQ, 4)}, {s(S_SW)} offen offset:{1024 * j} lds')
        p.e(f's_add_u32 m0, {s(S_SLOT)}, {s(S_LX)}')
        for j in range(4):
            p.e(f'buffer_load_dwordx4 {v(XO + j)}, {s(SRD_X, 4)}, {s(S_SX)} offen offset:{1024 * j} lds')
        p.e(f's_add_u32 {s(S_SX)}, {s(S_SX)}, 128')
        p.e(f's_cmp_eq_u32 {s(S_SX)}, 1280')
        p.e(f's_cselect_b32 {s(S_SX)}, 0, {s(S_SX)}')
        p.e(f's_add_u32 {s(S_SLOT)}, {s(S_SLOT)}, {SLOT}')
        p.e(f's_cmp_eq_u32 {s(S_SLOT)}, {3 * SLOT}')
        p.e(f's_cselect_b32 {s(S_SLOT)}, 0, {s(S_SLOT)}')

    class VM:
        def __init__(self): self.q = []
        def add(self, tag, n=1): self.q += [tag] * n
        def cnt(self, *tags):
            last = -1
            for i, x in enumerate(self.q):
                if x in tags: last = i
            return len(self.q) - 1 - last
        def wait(self, *tags):
            n = self.cnt(*tags)
            assert n < 64
            p.e(f's_waitcnt vmcnt({n})')
            self.q = self.q[len(self.q) - n:] if n else []
    vm = VM()
    KP = 64; VP = 128
    S_LWO, S_LV, S_PL, S_TV, S_PF = 4, 5, 6, 7, 87
    nt_k = ' nt' if o.nt_k else ''

    def bar(*tags):
        vm.wait(*tags)
        st.dyn(SV)
        p.e('s_barrier')

    def setup2():
        late_srds()
        p.e(f's_and_b32 s82, {s(S_LW)}, 1')
        p.e(f's_lshr_b32 s83, {s(S_LW)}, 1')
        p.e('s_lshl_b32 s84, s83, 6')
        p.e('s_add_u32 s84, s84, s82')
        p.e('s_lshl_b32 s84, s84, 13')
        p.e('v_lshrrev_b32 v3, 4, v2')
        p.e('v_and_b32 v4, 15, v2')
        for jj in range(4):
            p.e(f'v_add_u32 v5, {4 * jj}, v3')
            p.e('v_xor_b32 v6, v5, v4')
            p.e('v_lshlrev_b32 v6, 4, v6')
            p.e(f'v_lshl_add_u32 {v(KO + jj)}, v3, 8, v6')
        p.e(f'v_lshlrev_b32 {v(LN16)}, 4, v2')

    def setup3():
        p.e(f's_mul_i32 s85, {s(S_LW)}, 12288')
        p.e(f's_add_u32 s85, s85, {KB}')
        p.e('s_lshl_b32 s82, s82, 13')
        p.e('s_lshl_b32 s83, s83, 12')
        p.e('s_add_u32 s82, s82, s83')
        p.e(f's_add_u32 s82, s82, {PBUF}')
        p.e(f's_mul_i32 {s(S_T)}, {s(S_LW)}, 20480')
        p.e(f's_mov_b32 {s(S_T2)}, 52429')
        for j in range(5):
            p.e(f'v_add_u32 v3, {64 * j}, v2')
            p.e(f'v_mul_u32_u24 v4, {s(S_T2)}, v3')
            p.e('v_lshrrev_b32 v4, 20, v4')
            p.e('v_mul_u32_u24 v4, 960, v4')
            p.e('v_lshl_add_u32 v4, v3, 4, v4')
            p.e(f'v_add_u32 v4, {s(S_T)}, v4')
            p.e(f'v_subrev_u32 {v(WO + j)}, {1024 * (j & 3)}, v4')
        p.e('v_lshrrev_b32 v3, 3, v2')
        p.e('v_bfe_u32 v4, v2, 4, 1')
        p.e('v_lshlrev_b32 v4, 2, v4')
        p.e('v_and_b32 v5, 7, v2')
        p.e('v_xor_b32 v4, v4, v5')
        p.e('v_lshlrev_b32 v4, 4, v4')
        p.e('v_lshl_add_u32 v4, v3, 8, v4')
        p.e(f's_lshl_b32 {s(S_T)}, {s(S_LW)}, 18')
        p.e(f'v_add_u32 v4, {s(S_T)}, v4')
        for j in range(4):
            p.e(f'v_add_u32 {v(VO + j)}, {1024 * j}, v4')
        p.e(f's_lshl_b32 {s(S_T)}, {s(S_LW)}, 16')
        p.e(f'v_add_u32 {v(PO)}, {s(S_T)}, {v(LN16)}')
        p.e(f'v_and_b32 {v(FA)}, 3, v2')
        p.e(f'v_lshlrev_b32 {v(FA)}, 2, {v(FA)}')
        p.e(f's_mul_i32 {s(S_LWO)}, {s(S_LW)}, 5120')
        p.e(f's_lshl_b32 {s(S_LV)}, {s(S_LW)}, 12')
        p.e(f's_add_u32 {s(S_LV)}, {s(S_LV)}, {VOFF}')
        p.e(f's_lshl_b32 {s(S_PL)}, {s(S_LW)}, 11')
        p.e(f's_add_u32 {s(S_PL)}, {s(S_PL)}, {PBUF}')
        p.e(f's_lshl_b32 {s(S_TV)}, {s(S_HP)}, 2')
        p.e(f's_lshl_b32 {s(S_T)}, {s(S_BG)}, 3')
        p.e(f's_and_b32 {s(S_T2)}, s2, 7')
        p.e(f's_add_u32 {s(S_T)}, {s(S_T)}, {s(S_T2)}')
        p.e(f's_lshl_b32 {s(S_T)}, {s(S_T)}, 2')
        p.e(f's_add_u32 {s(S_T)}, {s(S_T)}, {s(S_LW)}')
        p.e(f's_lshl_b32 {s(S_PF)}, {s(S_T)}, 7')
        p.e(f'v_add_u32 {v(TO)}, {s(S_LV)}, {v(LN16)}')

    def kpark(i):
        g, jj = i >> 2, i & 3
        if jj == 0 or True:
            p.e(f's_add_u32 {s(S_T)}, s84, {(g >> 1) * 32 * 8192 + (g & 1) * 4096}')
        p.e(f'buffer_load_dwordx4 {v(KP + 4 * i, 4)}, {v(KO + jj)}, {s(SRD_K, 4)}, {s(S_T)} offen offset:{1024 * jj}{nt_k}')
        vm.add('K')

    def vsoff(T):
        p.e(f's_add_u32 {s(S_T)}, {s(S_TV)}, {T & ~1}')
        p.e(f's_and_b32 {s(S_T)}, {s(S_T)}, 15')
        p.e(f's_lshl_b32 {s(S_T)}, {s(S_T)}, 12')
        if T & 1:
            p.e(f's_add_u32 {s(S_T)}, {s(S_T)}, 128')

    def vpark(T):
        vsoff(T)
        for j in range(4):
            p.e(f'buffer_load_dwordx4 {v(VP + 16 * T + 4 * j, 4)}, {v(VO + j)}, {s(SRD_V, 4)}, {s(S_T)} offen offset:{1024 * j}')
        vm.add(f'V{T}', 4)

    def vflush(T):
        vm.wait(f'V{T}')
        if T >= 1:
            p.e(f'v_add_u32 v3, {T * STG}, {v(TO)}')
        for j in range(4):
            p.e(f'ds_write_b128 {"v3" if T else v(TO)}, {v(VP + 16 * T + 4 * j, 4)} offset:{1024 * j}')

    def vdma(T):
        vsoff(T)
        p.e(f's_add_u32 m0, {s(S_LV)}, {(T & 3) * STG}')
        for j in range(4):
            p.e(f'buffer_load_dwordx4 {v(VO + j)}, {s(SRD_V, 4)}, {s(S_T)} offen offset:{1024 * j} lds')
        vm.add(f'T{T}', 4)

    def wdma(T):
        p.e(f's_add_u32 {s(S_T)}, {s(S_TV)}, {T - 1}')
        p.e(f's_and_b32 {s(S_T)}, {s(S_T)}, 15')
        p.e(f's_mul_i32 {s(S_T)}, {s(S_T)}, {64 * 1280}')
        p.e(f's_add_u32 m0, {s(S_LWO)}, {(T & 3) * STG}')
        for j in range(4):
            p.e(f'buffer_load_dwordx4 {v(WO + j)}, {s(SRD_WO, 4)}, {s(S_T)} offen offset:{1024 * j} lds')
        p.e('s_add_u32 m0, m0, 4096')
        p.e(f'buffer_load_dwordx4 {v(WO + 4)}, {s(SRD_WO, 4)}, {s(S_T)} offen lds')
        vm.add(f'T{T}', 5)

    def pdma(T):
        p.e(f's_add_u32 {s(S_T)}, {s(S_TV)}, {T}')
        p.e(f's_and_b32 {s(S_T)}, {s(S_T)}, 15')
        p.e(f's_lshl_b32 {s(S_T)}, {s(S_T)}, 10')
        p.e(f's_add_u32 m0, {s(S_PL)}, {((T >> 1) & 1) * 8192}')
        for j in range(2):
            p.e(f'buffer_load_dwordx4 {v(PO)}, {s(SRD_P, 4)}, {s(S_T)} offen offset:{1024 * j} sc1 lds')
        vm.add(f'T{T}', 2)

    st.dyn(SV)
    issue1(); vm.add('S0', 12)
    issue1(); vm.add('S1', 12)
    bar('S0')
    issue1(); vm.add('S2', 12)
    setup2()
    bar('S1')
    issue1(); vm.add('S3', 12)
    setup3()
    make_tag()
    l1 = p.pos()
    traces_p1 = []
    ngrp = len(o.ksched)
    if ngrp == 2:
        p.e(f's_bitcmp1_b32 {s(S_BG)}, 0')
        p.e('s_cbranch_scc1 L_kg1')
    l1b = p.pos()
    q0 = list(vm.q)
    endq = []
    for gi, ks in enumerate(o.ksched):
        if gi == 1:
            p.e('L_kg1:')
        ga = p.pos()
        vm.q = list(q0)
        ki = 0
        for t in range(4, 10):
            bar(f'S{t - 2}')
            issue1(); vm.add(f'S{t}', 12)
            for _ in range(ks.get(t, 0)):
                kpark(ki); ki += 1
        assert ki == 16
        for T in range(o.vpre):
            vpark(T)
        bar('S8')
        for T in range(o.vpre, o.v8):
            vpark(T)
        bar('S9')
        vm.wait('K')
        endq.append(list(vm.q))
        if gi == 0 and ngrp == 2:
            p.e('s_branch L_kjoin')
        traces_p1.append((ga, p.pos()))
    if ngrp == 2:
        p.e('L_kjoin:')
    endq.sort(key=len)
    assert all(endq[-1][len(endq[-1]) - len(x):] == x for x in endq if x)
    vm.q = endq[-1]
    l2 = p.pos()
    p.e(f'v_add_u32 v3, s85, {v(LN16)}')
    p.e(f'v_add_u32 v4, s82, {v(LN16)}')
    for i in range(16):
        g, jj = i >> 2, i & 3
        if g < 3:
            p.e(f'ds_write_b128 v3, {v(KP + 4 * i, 4)} offset:{g * 4096 + jj * 1024}')
        else:
            p.e(f'ds_write_b128 v4, {v(KP + 4 * i, 4)} offset:{jj * 1024}')
    for T in range(o.v8, o.v9):
        vpark(T)
    if o.w4early:
        wdma(4)
    p.e('s_waitcnt lgkmcnt(0)')
    st.dyn(SV)
    p.e('s_barrier')
    wdma(1)
    vflush(0); vflush(1)
    if o.w2early:
        wdma(2)
    p.e('s_waitcnt lgkmcnt(0)')
    st.dyn(SV)
    p.e('s_barrier')
    PR = 44
    p.e(f'v_add_u32 v3, {s(S_PL)}, {v(LN16)}')
    for hh in range(2):
        for sk in range(2):
            p.e(f'ds_read_b128 {v(PR + (hh * 2 + sk) * 4, 4)}, v3 offset:{hh * 8192 + sk * 1024}')
    p.e(f's_lshl_b32 {s(S_T)}, {s(S_HP)}, 12')
    for hh in range(2):
        for sk in range(2):
            p.e(f'buffer_store_dwordx4 {v(PR + (hh * 2 + sk) * 4, 4)}, {v(PO)}, {s(SRD_P, 4)}, {s(S_T)} offen offset:{hh * 2048 + sk * 1024} sc1')
    vm.add('PS', 4)
    if not o.w2early:
        wdma(2)
    bar('T1')
    for T in range(2, o.v9):
        vflush(T)
    for T in range(o.v9, 4):
        vdma(T)
    wdma(3)
    vm.wait('PS')
    p.e(f'v_mov_b32 v4, {s(S_TAG)}')
    p.e(f's_lshl_b32 {s(S_T)}, {s(S_HP)}, 2')
    p.e(f's_add_u32 {s(S_T)}, {s(S_T)}, {s(S_PF)}')
    p.e('v_mov_b32 v5, 0')
    p.e(f'buffer_store_dword v4, v5, {s(SRD_FL, 4)}, {s(S_T)} offen sc1')
    vm.add('FL')
    p.e('s_waitcnt lgkmcnt(0)')
    bar('T2')
    if not o.w4early:
        wdma(4)
    vdma(4)
    bar('T3')
    p.e(f'buffer_load_dword v6, {v(FA)}, {s(SRD_FL, 4)}, {s(S_PF)} offen sc1')
    vm.add('PL')
    vm.wait('PL')
    p.e('s_mov_b64 s[82:83], 0')
    spin('L_pspin', 6, FA, S_PF, 82, first_issued=True)
    st.dyn(SV)
    pdma(4)
    vdma(5); wdma(5)
    bar('T4')
    vdma(6); wdma(6); pdma(6)
    bar('T5')
    vdma(7); wdma(7)
    for T in range(5, 16):
        n = T + 3
        if n <= 15: vdma(n)
        if n <= 16: wdma(n)
        if n <= 14 and n % 2 == 0: pdma(n)
        bar(f'T{T + 1}')
    l4 = p.pos()
    VOUT = 40
    p.e('v_and_b32 v4, 31, v2')
    p.e('v_mul_u32_u24 v4, 2560, v4')
    p.e('v_lshrrev_b32 v5, 5, v2')
    p.e(f'v_lshl_add_u32 {v(VOUT)}, v5, 5, v4')
    final_reduce(48, 64, 42, LN16, VOUT, S_LW)
    p.e(f's_lshl_b32 {s(S_T)}, {s(S_LW)}, 12')
    p.e(f'v_add_u32 v3, {s(S_T)}, {v(LN16)}')
    p.e('s_barrier')
    st.dyn(SV)
    p.e('s_barrier')
    st.dyn(SV)
    for q in range(4):
        p.e(f'ds_read_b128 {v(48 + 4 * q, 4)}, v3 offset:{q * 1024}')
    final_reduce2(48, 64, 42, LN16, VOUT, 'L_xspin_l')
    st.flush(SV, 201)
    p.e('L_end:')
    p.e('s_endpgm')
    l5 = p.pos()
    for tr in traces_p1:
        p.add_trace([(t0, t1), (l0, l1b), tr, (l2, l5)])

    p.e('L_compute:')
    c0 = p.pos()
    ACC = 0; AF = 128; BF = 160; AA = 176; BA = 180; KA = 184; KF1 = 192; SA0 = 224; SA1 = 240
    SVC = 222
    L = 'v200'
    p.e(f'v_mov_b32 {L}, v2')
    if o.codepf:
        p.e(f's_cmp_lt_u32 {s(S_WV)}, {o.codepf}')
        p.e('s_cbranch_scc0 L_nopf')
        p.e(f's_and_b32 {s(S_T)}, {s(S_BG)}, {o.codepf_mask}')
        p.e(f's_cmp_eq_u32 {s(S_T)}, 0')
        p.e('s_cbranch_scc0 L_nopf')
        p.e('s_getpc_b64 s[76:77]')
        p.e('L_pc:')
        p.e(f's_sub_u32 s76, s76, L_pc-{KN}')
        p.e('s_subb_u32 s77, s77, 0')
        p.e('v_lshlrev_b32 v220, 7, v0')
        p.e(f'v_min_u32 v220, L_codeend-{KN}-4, v220')
        p.e('global_load_dword v221, v220, s[76:77]')
        p.e('L_nopf:')
    S_HH, S_BP = 77, 78
    p.e(f's_and_b32 {s(S_HH)}, {s(S_WV)}, 1')
    p.e(f's_lshr_b32 {s(S_BP)}, {s(S_WV)}, 1')
    p.e(f'v_bfe_u32 v210, {L}, 2, 2')
    p.e(f'v_lshrrev_b32 v211, 5, {L}')
    p.e('v_lshl_add_u32 v212, v211, 3, v210')
    p.e('v_lshlrev_b32 v212, 9, v212')
    p.e(f'v_bfe_u32 v213, {L}, 4, 1')
    p.e('v_lshl_add_u32 v212, v213, 5, v212')
    p.e(f'v_and_b32 v213, 1, {L}')
    p.e('v_lshl_add_u32 v212, v213, 4, v212')
    p.e(f'v_bfe_u32 v213, {L}, 1, 1')
    p.e('v_lshl_add_u32 v212, v213, 3, v212')
    p.e(f's_lshl_b32 {s(S_T)}, {s(S_HH)}, 8')
    p.e(f's_add_u32 {s(S_T)}, {s(S_T)}, {16384 + SLOT}')
    p.e(f'v_add_u32 v212, {s(S_T)}, v212')
    for j in range(4):
        p.e(f'v_xor_b32 v213, {j}, v210')
        p.e(f'v_lshl_add_u32 {v(AA + j)}, v213, 6, v212')
    p.e(f'v_and_b32 v213, 31, {L}')
    p.e('v_bfe_u32 v214, v213, 1, 3')
    p.e('v_xor_b32 v214, v214, v211')
    p.e('v_lshlrev_b32 v214, 4, v214')
    p.e('v_lshl_add_u32 v214, v213, 7, v214')
    p.e(f's_lshl_b32 {s(S_T)}, {s(S_BP)}, 13')
    p.e(f's_add_u32 {s(S_T)}, {s(S_T)}, {SLOT}')
    p.e(f'v_add_u32 v214, {s(S_T)}, v214')
    for t in range(4):
        p.e(f'v_xor_b32 {v(BA + t)}, {t * 32}, v214')
    p.e('v_and_b32 v214, 15, v213')
    p.e('v_xor_b32 v214, v214, v211')
    p.e('v_lshlrev_b32 v214, 4, v214')
    p.e('v_lshl_add_u32 v214, v213, 8, v214')
    p.e(f's_mul_i32 {s(S_T)}, {s(S_WV)}, 12288')
    p.e(f's_add_u32 {s(S_T)}, {s(S_T)}, {KB}')
    p.e(f'v_add_u32 {v(KA)}, {s(S_T)}, v214')
    p.e(f'v_add_u32 {v(KA + 1)}, 8192, {v(KA)}')
    p.e(f's_lshl_b32 {s(S_T)}, {s(S_HH)}, 13')
    p.e(f's_lshl_b32 {s(S_T2)}, {s(S_BP)}, 12')
    p.e(f's_add_u32 s79, {s(S_T)}, {s(S_T2)}')
    p.e(f's_add_u32 s79, s79, {PBUF}')
    p.e(f's_sub_u32 {s(S_T)}, s79, 4096')
    p.e(f'v_add_u32 v214, {s(S_T)}, v214')
    p.e('v_cmp_gt_u32 vcc, 16, v213')
    p.e(f'v_cndmask_b32 {v(KA + 1)}, v214, {v(KA + 1)}, vcc')
    p.e(f'v_lshlrev_b32 {v(KA + 2)}, 4, {L}')
    p.e(f'v_add_u32 {v(KA + 3)}, s79, {v(KA + 2)}')
    WA = KA + 4; VA = KA + 5; PA = KA + 7; LN16c = KA + 2
    p.e('v_lshl_add_u32 v215, v211, 2, v210')
    p.e(f'v_bfe_u32 v216, {L}, 4, 1')
    p.e(f'v_and_b32 v217, 3, {L}')
    p.e('v_lshl_add_u32 v217, v216, 2, v217')
    p.e(f'v_mul_u32_u24 {v(WA)}, 320, v215')
    p.e('v_and_b32 v218, 1, v217')
    p.e(f'v_lshl_add_u32 {v(WA)}, v218, 5, {v(WA)}')
    p.e('v_lshrrev_b32 v218, 1, v217')
    p.e(f'v_lshl_add_u32 {v(WA)}, v218, 3, {v(WA)}')
    p.e('v_lshlrev_b32 v218, 7, v215')
    p.e('v_lshl_add_u32 v218, v217, 3, v218')
    p.e(f's_lshl_b32 {s(S_T)}, {s(S_WV)}, 12')
    p.e(f's_add_u32 {s(S_T)}, {s(S_T)}, {VOFF}')
    p.e(f'v_add_u32 v218, {s(S_T)}, v218')
    p.e('v_lshrrev_b32 v219, 1, v210')
    p.e(f'v_lshl_add_u32 {v(VA)}, v219, 6, v218')
    p.e('v_xor_b32 v219, 1, v219')
    p.e(f'v_lshl_add_u32 {v(VA + 1)}, v219, 6, v218')
    p.e(f's_lshl_b32 {s(S_T)}, {s(S_WV)}, 11')
    p.e(f's_add_u32 {s(S_T)}, {s(S_T)}, {PBUF}')
    p.e(f'v_add_u32 {v(PA)}, {s(S_T)}, {v(LN16c)}')
    for r in range(128):
        p.e(f'v_mov_b32 {v(ACC + r)}, 0')
    p.e('s_waitcnt lgkmcnt(0)')
    late_srds()
    make_tag()
    p.e(f's_mov_b32 {s(S_CNT)}, 0')
    p.e(f's_mov_b32 {s(S_POS)}, 1')
    p.e(f's_mov_b32 {s(S_STEP)}, {SLOT}')
    c = (128 ** -0.5) * math.log2(math.e)
    p.e(f's_mov_b32 {s(S_C)}, {f32hex(c)}')

    def acc(j, bb):
        return ACC + (j * 2 + bb) * 16

    def reads(t, buf):
        out = [f'ds_read_b128 {v(BF + buf * 8, 4)}, {v(BA + t)}']
        for j in range(4):
            for u in range(2):
                out.append(f'ds_read_b64_tr_b16 {v(AF + buf * 16 + j * 4 + u * 2, 2)}, {v(AA + j)} offset:{(16 * t + 4 * u) * 512}')
            if j == 0:
                out.append(f'ds_read_b128 {v(BF + buf * 8 + 4, 4)}, {v(BA + t)} offset:4096')
        return out

    def mfmas(buf):
        return [f'v_mfma_f32_32x32x16_bf16 {v(acc(j, bb), 16)}, {v(AF + buf * 16 + j * 4, 4)}, {v(BF + buf * 8 + bb * 4, 4)}, {v(acc(j, bb), 16)}'
                for j in range(4) for bb in range(2)]

    def interleave(ms, rs, per_gap=2):
        rs = list(rs)
        for m in ms:
            p.e(m)
            for _ in range(per_gap):
                if rs:
                    p.e(rs.pop(0))
        for r in rs:
            p.e(r)

    st.dyn(SVC)
    p.e('s_barrier')
    st.dyn(SVC); st.dyn(SVC, True)
    for r in reads(0, 0):
        p.e(r)
    c1 = p.pos()
    p.e('L_c1:')
    interleave(mfmas(0), reads(1, 1))
    interleave(mfmas(1), reads(2, 0))
    ms = mfmas(0); rs = reads(3, 1)
    advv = [f'v_add_u32 {v(AA + j)}, {s(S_DELTA)}, {v(AA + j)}' for j in range(4)] + \
           [f'v_add_u32 {v(BA + t)}, {s(S_DELTA)}, {v(BA + t)}' for t in range(4)]
    sal = [f's_add_u32 {s(S_POS)}, {s(S_POS)}, 1', f's_cmp_eq_u32 {s(S_POS)}, 3',
           f's_cselect_b32 {s(S_DELTA)}, {-2 * SLOT & 0xffffffff}, {s(S_STEP)}', f's_cselect_b32 {s(S_POS)}, 0, {s(S_POS)}']
    for i, m in enumerate(ms):
        p.e(m)
        if i < 5:
            p.e(rs[2 * i]); p.e(rs[2 * i + 1])
            if i == 4:
                for x in sal:
                    p.e(x)
        elif i == 5:
            for x in advv[:4]:
                p.e(x)
        elif i == 6:
            for x in advv[4:]:
                p.e(x)
    p.e(f's_add_u32 {s(S_CNT)}, {s(S_CNT)}, 1')
    p.e('s_waitcnt lgkmcnt(0)')
    p.e('s_barrier')
    p.e(f's_cmp_eq_u32 {s(S_CNT)}, 10')
    p.e('s_cbranch_scc1 L_c1_done')
    c1b = p.pos()
    ms = mfmas(1); rs = reads(0, 0)
    p.e(rs[0]); p.e(rs[1]); p.e(rs[2])
    interleave(ms, rs[3:])
    p.e('s_branch L_c1')
    c2 = p.pos()
    p.e('L_c1_done:')
    st.dyn(SVC); st.dyn(SVC, True)
    if o.codepf:
        p.e('s_waitcnt vmcnt(0)')
    KF0 = 192; KF1 = 128
    if o.stamps:
        p.e(f'v_mov_b32 v183, {v(SVC)}')
        SVC = 183
    kr0 = []
    for t in range(8):
        kr0.append(f'v_xor_b32 {v(AA + (t & 3))}, {t * 32}, {v(KA)}')
        kr0.append(f'ds_read_b128 {v(KF0 + 4 * t, 4)}, {v(AA + (t & 3))}')
    ms = mfmas(1)
    ms = [ms[0], ms[2], ms[4], ms[6], ms[1], ms[3], ms[5], ms[7]]

    def cvtq(bb):
        out = []
        for j in range(4):
            b = acc(j, bb)
            for r in range(8):
                out.append(f'v_cvt_pk_bf16_f32 {v(b + r)}, {v(b + 2 * r)}, {v(b + 2 * r + 1)}')
        return out

    def smf(bb, kf, sa):
        out = []
        for t in range(8):
            q = acc(t >> 1, bb) + 4 * (t & 1)
            cc = '0' if t == 0 else v(sa, 16)
            out.append(f'v_mfma_f32_32x32x16_bf16 {v(sa, 16)}, {v(kf + 4 * t, 4)}, {v(q, 4)}, {cc}')
        return out

    cq0 = cvtq(0)
    interleave(ms[:4], kr0, per_gap=4)
    interleave(ms[4:], cq0[:24], per_gap=6)
    kr1 = []
    for t in range(8):
        kr1.append(f'v_xor_b32 {v(AA + (t & 3))}, {t * 32}, {v(KA + 1)}')
        kr1.append(f'ds_read_b128 {v(KF1 + 4 * t, 4)}, {v(AA + (t & 3))}')
    for x in cq0[24:]:
        p.e(x)
    interleave(smf(0, KF0, SA0), kr1 + cvtq(1), per_gap=6)

    def softmax(sa, ta):
        o_ = []
        S = lambda r: v(sa + r)
        T = lambda r: v(ta + r)
        o_.append(f'v_max3_f32 {T(0)}, {S(0)}, {S(1)}, {S(2)}')
        o_.append(f'v_max3_f32 {T(1)}, {S(3)}, {S(4)}, {S(5)}')
        o_.append(f'v_max3_f32 {T(2)}, {S(6)}, {S(7)}, {S(8)}')
        o_.append(f'v_max3_f32 {T(3)}, {S(9)}, {S(10)}, {S(11)}')
        o_.append(f'v_max3_f32 {T(0)}, {T(0)}, {S(12)}, {S(13)}')
        o_.append(f'v_max3_f32 {T(1)}, {T(1)}, {S(14)}, {S(15)}')
        o_.append(f'v_max3_f32 {T(0)}, {T(0)}, {T(2)}, {T(3)}')
        o_.append(f'v_max_f32 {T(0)}, {T(0)}, {T(1)}')
        o_.append(f'v_mov_b32 {T(1)}, {T(0)}')
        o_.append(f'v_permlane32_swap_b32 {T(0)}, {T(1)}')
        o_.append(f'v_max_f32 {T(0)}, {T(0)}, {T(1)}')
        o_.append(f'v_mul_f32 {T(0)}, {s(S_C)}, {T(0)}')
        for r in range(16):
            o_.append(f'v_fma_f32 {S(r)}, {S(r)}, {s(S_C)}, -{T(0)}')
        for r in range(16):
            o_.append(f'v_exp_f32 {S(r)}, {S(r)}')
        o_.append(f'v_add_f32 {T(0)}, {S(0)}, {S(1)}')
        o_.append(f'v_add_f32 {T(1)}, {S(2)}, {S(3)}')
        o_.append(f'v_add_f32 {T(2)}, {S(4)}, {S(5)}')
        o_.append(f'v_add_f32 {T(3)}, {S(6)}, {S(7)}')
        for r in range(8, 16):
            o_.append(f'v_add_f32 {T(r & 3)}, {T(r & 3)}, {S(r)}')
        o_.append(f'v_add_f32 {T(0)}, {T(0)}, {T(1)}')
        o_.append(f'v_add_f32 {T(2)}, {T(2)}, {T(3)}')
        o_.append(f'v_add_f32 {T(0)}, {T(0)}, {T(2)}')
        o_.append(f'v_mov_b32 {T(1)}, {T(0)}')
        o_.append(f'v_permlane32_swap_b32 {T(0)}, {T(1)}')
        o_.append(f'v_add_f32 {T(0)}, {T(0)}, {T(1)}')
        o_.append(f'v_rcp_f32 {T(0)}, {T(0)}')
        for r in range(16):
            o_.append(f'v_mul_f32 {S(r)}, {S(r)}, {T(0)}')
        for r in range(8):
            o_.append(f'v_cvt_pk_bf16_f32 {S(r)}, {S(2 * r)}, {S(2 * r + 1)}')
        return o_

    sm1 = smf(1, KF1, SA1)
    sm0 = softmax(SA0, 160)
    p.e(sm1[0]); p.e(sm1[1])
    interleave(sm1[2:], sm0, per_gap=5)
    p.e(f'ds_write_b128 {v(KA + 3)}, {v(SA0, 4)}')
    p.e(f'ds_write_b128 {v(KA + 3)}, {v(SA0 + 4, 4)} offset:1024')
    for x in softmax(SA1, 164):
        p.e(x)
    p.e(f'ds_write_b128 {v(KA + 3)}, {v(SA1, 4)} offset:2048')
    p.e(f'ds_write_b128 {v(KA + 3)}, {v(SA1 + 4, 4)} offset:3072')

    OA = 80; OB = 112; FR = 192; NR = 12; PF = 144
    for r in range(80):
        p.e(f'v_mov_b32 {v(ACC + r)}, 0')
    p.e(f's_mov_b32 {s(S_CNT)}, 0')
    p.e(f's_mov_b32 {s(S_POS)}, 1')
    p.e(f's_mov_b32 {s(S_STEP)}, {STG}')

    def fr(i):
        return FR + (i % NR) * 4

    def wo_reads(n, ks, dst):
        return [f'ds_read_b64_tr_b16 {v(dst + 2 * u, 2)}, {v(WA)} offset:{(16 * ks + 8 * u) * 320 + n * 64}' for u in range(2)]

    def v_reads(jj, sk, dst):
        return [f'ds_read_b64_tr_b16 {v(dst + 2 * u, 2)}, {v(VA + jj)} offset:{(16 * sk + 8 * u) * 128}' for u in range(2)]

    def p_reads():
        return [f'ds_read_b128 {v(PF + 4 * sk, 4)}, {v(PA)} offset:{1024 * sk}' for sk in range(2)]

    def cvts(ob):
        return [f'v_cvt_pk_bf16_f32 {v(ob + jj * 8 + r)}, {v(OA + jj * 16 + 2 * r)}, {v(OA + jj * 16 + 2 * r + 1)}'
                for jj in range(2) for r in range(8)]

    def interval(i0, ob_cur):
        items = []
        order = [('w', 0, n) for n in range(5)] + [('v', 0, 0), ('v', 0, 1), ('v', 1, 0), ('v', 1, 1)] + \
                [('w', ks, n) for ks in range(1, 4) for n in range(5)]
        for k, (kind, a, b) in enumerate(order):
            d = fr(i0 + k)
            if kind == 'w':
                m = f'v_mfma_f32_32x32x16_bf16 {v(ACC + 16 * b, 16)}, {v(d, 4)}, {v(ob_cur + 4 * a, 4)}, {v(ACC + 16 * b, 16)}'
                rd = wo_reads(b, a, d)
            else:
                cc = '0' if a == 0 else v(OA + 16 * b, 16)
                m = f'v_mfma_f32_32x32x16_bf16 {v(OA + 16 * b, 16)}, {v(d, 4)}, {v(PF + 4 * a, 4)}, {cc}'
                rd = v_reads(b, a, d)
            items.append((m, rd))
        return items

    p.e('s_waitcnt lgkmcnt(0)')
    st.dyn(SVC)
    p.e('s_barrier')
    st.dyn(SVC); st.dyn(SVC, True)
    for r in p_reads():
        p.e(r)
    for k, (sk, jj) in enumerate([(0, 0), (0, 1), (1, 0), (1, 1)]):
        for r in v_reads(jj, sk, FR + 4 * k):
            p.e(r)
    for k, (sk, jj) in enumerate([(0, 0), (0, 1), (1, 0), (1, 1)]):
        cc = '0' if sk == 0 else v(OA + 16 * jj, 16)
        p.e(f'v_mfma_f32_32x32x16_bf16 {v(OA + 16 * jj, 16)}, {v(FR + 4 * k, 4)}, {v(PF + 4 * sk, 4)}, {cc}')
    D = o.D; Q = o.Q
    for a in (WA, VA, VA + 1):
        p.e(f'v_add_u32 {v(a)}, {STG}, {v(a)}')
    p.e(f'v_xor_b32 {v(PA)}, 8192, {v(PA)}')
    itA = interval(0, OB)
    itB = interval(24, OB + 16)
    p.e('s_waitcnt lgkmcnt(0)')
    p.e('s_barrier')

    def plan(items, with_p):
        rs = []
        for k, (m, rd) in enumerate(items):
            if with_p and k == 5:
                rs += p_reads()
            rs += rd
        return rs

    def distribute(rs):
        n = 24 - Q + 1
        out = [[] for _ in range(n)]
        per = len(rs) / n
        a_ = 0.0; k = 0
        for g in range(n):
            a_ += per
            while k < len(rs) and (k < math.ceil(a_ - 1e-9)):
                out[g].append(rs[k]); k += 1
        return out

    gA = distribute(plan(itA, False))
    gB = distribute(plan(itB, True))
    for g in range(D + 1):
        for r in gA[g]:
            p.e(r)
    for x in cvts(OB):
        p.e(x)
    c3 = p.pos()
    p.e('L_c2:')

    def body(items, g, nxt_g, ob_next, toggle_p):
        cv = cvts(ob_next)
        sal = [f's_add_u32 {s(S_POS)}, {s(S_POS)}, 1', f's_cmp_eq_u32 {s(S_POS)}, 4',
               f's_cselect_b32 {s(S_DELTA)}, {(-3 * STG) & 0xffffffff}, {s(S_STEP)}', f's_cselect_b32 {s(S_POS)}, 0, {s(S_POS)}']
        ad = [f'v_add_u32 {v(a)}, {s(S_DELTA)}, {v(a)}' for a in (WA, VA, VA + 1)]
        if toggle_p:
            ad.append(f'v_xor_b32 {v(PA)}, 8192, {v(PA)}')
        for k in range(24 - D):
            p.e(items[k][0])
            gi = D + 1 + k
            if gi < len(g):
                for r in g[gi]:
                    p.e(r)
            if k >= 11 and cv:
                p.e(cv.pop(0)); p.e(cv.pop(0))
            if k == 2:
                for x in sal:
                    p.e(x)
            if k == 24 - D - 1:
                for x in ad:
                    p.e(x)
        p.e('s_waitcnt lgkmcnt(0)')
        p.e('s_barrier')
        for r in nxt_g[0]:
            p.e(r)
        for k in range(24 - D, 24):
            p.e(items[k][0])
            for r in nxt_g[k - (24 - D) + 1]:
                p.e(r)
            if cv:
                p.e(cv.pop(0)); p.e(cv.pop(0))
        assert not cv

    body(itA, gA, gB, OB + 16, False)
    body(itB, gB, gA, OB, True)
    p.e(f's_add_u32 {s(S_CNT)}, {s(S_CNT)}, 1')
    p.e(f's_cmp_lt_u32 {s(S_CNT)}, 8')
    p.e('s_cbranch_scc1 L_c2')
    c4 = p.pos()
    st.dyn(SVC); st.dyn(SVC, True)
    p.e(f's_cmp_eq_u32 {s(S_WV)}, {s(S_XQ)}')
    p.e('s_cbranch_scc1 L_keeper')
    c5 = p.pos()
    p.e(f's_mul_i32 s76, {s(S_WV)}, 40960')
    p.e(f's_mul_i32 {s(S_T)}, {s(S_XQ)}, 10240')
    p.e(f's_add_u32 s76, s76, {s(S_T)}')
    p.e('s_add_u32 s77, s76, 4096')
    p.e('s_add_u32 s78, s76, 8192')
    for n in range(5):
        for h in range(2):
            pc = n * 2 + h
            b = ACC + 16 * n + 8 * h
            d = OA + pc * 4
            for r in range(4):
                p.e(f'v_cvt_pk_bf16_f32 {v(d + r)}, {v(b + 2 * r)}, {v(b + 2 * r + 1)}')
            p.e(f'buffer_store_dwordx4 {v(d, 4)}, {v(LN16c)}, {s(SRD_XB, 4)}, {s(76 + pc // 4)} offen offset:{(pc % 4) * 1024} sc1')
    p.e('s_barrier')
    p.e(f's_and_b32 {s(S_T)}, s2, 0xfc')
    p.e(f's_add_u32 {s(S_T)}, {s(S_T)}, {s(S_WV)}')
    p.e(f's_lshl_b32 {s(S_T)}, {s(S_T)}, 7')
    p.e(f's_lshl_b32 {s(S_T2)}, {s(S_XQ)}, 2')
    p.e(f's_add_u32 {s(S_T)}, {s(S_T)}, {s(S_T2)}')
    p.e(f's_add_u32 {s(S_T)}, {s(S_T)}, {FL_XF}')
    p.e(f'v_mov_b32 v130, {s(S_TAG)}')
    p.e('v_mov_b32 v131, 0')
    p.e('s_waitcnt vmcnt(0)')
    st.dyn(SVC)
    p.e(f'buffer_store_dword v130, v131, {s(SRD_FL, 4)}, {s(S_T)} offen sc1')
    st.flush(SVC, 132)
    p.e('s_endpgm')
    c6 = p.pos()
    p.e('L_keeper:')
    for q in range(16):
        p.e(f'ds_write_b128 {v(LN16c)}, {v(ACC + 4 * q, 4)} offset:{q * 1024}')
    p.e(f'v_lshrrev_b32 v130, 4, {v(LN16c)}')
    p.e('v_and_b32 v131, 31, v130')
    p.e('v_mul_u32_u24 v131, 2560, v131')
    p.e('v_lshrrev_b32 v130, 5, v130')
    p.e('v_lshl_add_u32 v130, v130, 5, v131')
    p.e(f's_mov_b32 {s(S_T)}, 4')
    final_reduce(64, 96, 132, LN16c, 130, S_T)
    p.e('s_waitcnt lgkmcnt(0)')
    p.e('s_barrier')
    final_reduce2(64, 96, 132, LN16c, 130, 'L_xspin_k')
    p.e(f's_or_b32 {s(S_T)}, {s(S_XQ)}, {s(S_HP)}')
    p.e(f's_cmp_eq_u32 {s(S_T)}, 0')
    p.e('s_cbranch_scc0 L_kdone')
    p.e(f'v_mov_b32 v136, {s(S_TAG)}')
    p.e('v_mov_b32 v137, 0')
    p.e(f'buffer_store_dword v136, v137, {s(SRD_FL, 4)}, {s(S_EP)} offen sc1')
    p.e('L_kdone:')
    st.flush(SVC, 138)
    p.e('s_endpgm')
    p.e('L_codeend:')
    c7 = p.pos()
    pre = [(t0, t1), (c0, c1), (c1, c2), (c1, c1b), (c2, c3), (c3, c4), (c3, c4), (c4, c5)]
    p.add_trace(pre + [(c5, c6)])
    p.add_trace(pre + [(c6, c7)])


def kd(name, vgpr=256, sgpr=100):
    acc = (vgpr + 3) // 4 * 4
    return f'''.p2align 6
.amdhsa_kernel {name}
  .amdhsa_next_free_vgpr {vgpr}
  .amdhsa_next_free_sgpr {sgpr}
  .amdhsa_accum_offset {acc}
  .amdhsa_group_segment_fixed_size 0
  .amdhsa_kernarg_size 104
  .amdhsa_user_sgpr_count 2
  .amdhsa_user_sgpr_kernarg_segment_ptr 1
  .amdhsa_system_sgpr_workgroup_id_x 1
.end_amdhsa_kernel
'''


def build(o):
    p = Prog()
    gen(p, o)
    txt = HEADER + '; @launch grid=(256,1,1) block=(512,1,1) lds=163840\n.amdgcn_target "amdgcn-amd-amdhsa--gfx950"\n.text\n'
    txt += p.text()
    txt += '.section .rodata,"a"\n' + kd(KN)
    return txt


if __name__ == '__main__':
    o = Opt()
    out = sys.argv[1]
    for a in sys.argv[2:]:
        k, val = a.split('=', 1)
        setattr(o, k, eval(val))
    open(out, 'w').write(build(o))
    from chk import check
    check(out)
```

```python
import sys, math, struct
from asmlib import Prog, v, s

NAME = 'concat_heads__gqa_block_cached__gqa_block_cached__near_ridge'
KN = NAME + '_kernel'

def f32hex(x):
    return '0x%08x' % struct.unpack('<I', struct.pack('<f', x))[0]

class Opt:
    stamps = False
    grp = 2
    ksched = [{5: 8, 7: 8}, {6: 8, 8: 8}]
    nt_k = False
    vpre = 0
    v8 = 3
    v9 = 3
    w4early = False
    w2early = True
    lprio = 3
    fine = False
    codepf = 0
    codepf_mask = 3
    rot2 = True
    D = 5
    Q = 3
    z = None

WS_P = 0
WS_XB = 4 << 20
WS_FL = 16 << 20
FL_PF = 0
FL_XF = 32768
FL_EP = 65536
FL_SIZE = 65536 + 2048
WS_STAMP = 64 << 20
X_BYTES = 1024 * 640 * 2
KV_BYTES = 32 * 32 * 32 * 128 * 2
W_BYTES = 640 * 4096 * 2
OUT_BYTES = 1024 * 1280 * 2
OOB = 0x7ff00000

HEADER = open('cdna_kernels/%s.s.ref' % NAME).read().split('; Override launch')[0]

S_X, S_K, S_V, S_WQ, S_WO = 8, 10, 12, 14, 16
S_OUT, S_WS = 32, 36
SRD_X, SRD_WQ, SRD_K, SRD_V, SRD_WO, SRD_P, SRD_XB, SRD_OUT, SRD_FL = 40, 44, 48, 52, 56, 60, 64, 68, 72
S_BR, S_XQ, S_BG, S_HP, S_CT, S_WV, S_T, S_T2 = 18, 19, 20, 21, 22, 23, 24, 25
S_EP, S_TAG = 26, 27
S_CNT, S_DELTA, S_POS, S_STEP, S_C = 28, 29, 30, 31, 38


def srd(p, d, base, off_s, size_total):
    p.e(f's_add_u32 {s(d)}, {s(base)}, {s(off_s)}')
    p.e(f's_addc_u32 {s(d+1)}, {s(base+1)}, 0')
    p.e(f's_sub_u32 {s(d+2)}, {size_total}, {s(off_s)}')
    p.e(f's_mov_b32 {s(d+3)}, 0x20000')


class Stamper:
    def __init__(self, p, o):
        self.p, self.o = p, o

    def start(self):
        if not self.o.stamps: return
        self.p.e('s_memrealtime s[92:93]')
        self.p.e('s_memtime s[94:95]')
        self.p.e('s_mov_b32 s90, 3')

    def dyn(self, vr, real=False):
        if not self.o.stamps: return
        p = self.p
        p.e('s_memrealtime s[88:89]' if real else 's_memtime s[88:89]')
        p.e('s_mov_b32 s91, m0')
        p.e('s_mov_b32 m0, s90')
        p.e('s_waitcnt lgkmcnt(0)')
        p.e(f'v_writelane_b32 v{vr}, s88, m0')
        p.e('s_add_u32 s90, s90, 1')
        p.e('s_mov_b32 m0, s91')

    def flush(self, vr, vtmp):
        if not self.o.stamps: return
        p = self.p
        p.e('s_memtime s[88:89]')
        p.e('s_memrealtime s[96:97]')
        p.e('s_mov_b32 m0, s90')
        p.e('s_waitcnt vmcnt(0) lgkmcnt(0)')
        p.e(f'v_writelane_b32 v{vr}, s88, m0')
        p.e(f'v_writelane_b32 v{vr}, s92, 0')
        p.e(f'v_writelane_b32 v{vr}, s96, 1')
        p.e(f'v_writelane_b32 v{vr}, s94, 2')
        p.e(f'v_writelane_b32 v{vr}, s90, 63')
        p.e('s_getreg_b32 s88, hwreg(HW_REG_XCC_ID)')
        p.e(f'v_writelane_b32 v{vr}, s88, 62')
        p.e('s_lshl_b32 s88, s2, 3')
        p.e(f's_add_u32 s88, s88, {s(S_WV)}')
        p.e('s_lshl_b32 s88, s88, 8')
        p.e(f's_add_u32 s88, s88, {WS_STAMP}')
        p.e(f's_add_u32 s92, {s(S_WS)}, s88')
        p.e(f's_addc_u32 s93, {s(S_WS+1)}, 0')
        p.e('s_mov_b32 s94, 256')
        p.e('s_mov_b32 s95, 0x20000')
        p.e(f'v_mbcnt_lo_u32_b32 v{vtmp}, -1, 0')
        p.e(f'v_mbcnt_hi_u32_b32 v{vtmp}, -1, v{vtmp}')
        p.e(f'v_lshlrev_b32 v{vtmp}, 2, v{vtmp}')
        p.e(f'buffer_store_dword v{vr}, v{vtmp}, s[92:95], 0 offen')


def gen(p, o):
    st = Stamper(p, o)
    p.e(f'.globl {KN}\n.p2align 8\n.type {KN},@function\n{KN}:')
    t0 = p.pos()
    SLOT = 49152
    KB = 98304
    STG = 36864; VOFF = 20480; PBUF = 4 * STG
    p.e('s_cmp_ge_u32 s2, 256')
    p.e('s_cbranch_scc1 L_end')
    p.e(f's_bfe_u32 {s(S_BR)}, s2, 0x10002')
    p.e(f's_mul_i32 s3, {s(S_BR)}, 40')
    p.e('s_load_dwordx8 s[8:15], s[0:1], s3')
    p.e('s_add_u32 s3, s3, 32')
    p.e('s_load_dwordx2 s[16:17], s[0:1], s3')
    p.e('s_load_dwordx2 s[32:33], s[0:1], 80')
    p.e('s_load_dwordx2 s[36:37], s[0:1], 96')
    st.start()
    p.e('v_lshrrev_b32 v1, 6, v0')
    p.e('v_and_b32 v2, 63, v0')
    p.e(f'v_readfirstlane_b32 {s(S_WV)}, v1')
    p.e(f's_and_b32 {s(S_XQ)}, s2, 3')
    p.e(f's_lshr_b32 {s(S_BG)}, s2, 5')
    p.e(f's_bfe_u32 {s(S_HP)}, s2, 0x20003')
    p.e(f's_add_u32 {s(S_CT)}, {s(S_HP)}, {s(S_BG)}')
    p.e(f's_and_b32 {s(S_CT)}, {s(S_CT)}, 3')
    p.e(f's_cmp_lt_u32 {s(S_WV)}, 4')
    p.e('s_cbranch_scc1 L_compute')
    t1 = p.pos()

    def late_srds():
        p.e(f's_lshl_b32 s76, {s(S_BG)}, 7')
        p.e(f's_lshl_b32 {s(S_T)}, {s(S_XQ)}, 3')
        p.e(f's_add_u32 s76, s76, {s(S_T)}')
        p.e(f's_lshl_b32 {s(S_T)}, s76, 13')
        srd(p, SRD_V, S_V, S_T, KV_BYTES)
        p.e(f's_lshl_b32 {s(S_T2)}, {s(S_HP)}, 14')
        p.e(f's_add_u32 {s(S_T)}, {s(S_T)}, {s(S_T2)}')
        srd(p, SRD_K, S_K, S_T, KV_BYTES)
        p.e(f's_mul_i32 {s(S_T)}, {s(S_XQ)}, {1024 * 1280}')
        p.e(f's_mul_i32 {s(S_T2)}, {s(S_CT)}, 320')
        p.e(f's_add_u32 {s(S_T)}, {s(S_T)}, {s(S_T2)}')
        srd(p, SRD_WO, S_WO, S_T, W_BYTES)
        p.e(f's_lshl_b32 {s(S_T)}, {s(S_BR)}, 10')
        p.e(f's_add_u32 {s(S_T)}, {s(S_T)}, s76')
        p.e(f's_lshl_b32 {s(S_T)}, {s(S_T)}, 11')
        srd(p, SRD_P, S_WS, S_T, 4 << 20)
        p.e(f's_and_b32 {s(S_T)}, s2, 0xfc')
        p.e(f's_mul_i32 {s(S_T)}, {s(S_T)}, 40960')
        p.e(f's_add_u32 {s(S_T)}, {s(S_T)}, {WS_XB}')
        srd(p, SRD_XB, S_WS, S_T, WS_XB + 256 * 40960)
        p.e(f's_mov_b32 {s(S_T)}, {WS_FL}')
        srd(p, SRD_FL, S_WS, S_T, WS_FL + FL_SIZE)
        p.e(f's_lshl_b32 {s(S_T)}, {s(S_BG)}, 2')
        p.e(f's_add_u32 {s(S_T)}, {s(S_T)}, {s(S_XQ)}')
        p.e(f's_mul_i32 {s(S_T)}, {s(S_T)}, {32 * 2560}')
        p.e(f's_add_u32 {s(S_T)}, {s(S_T)}, {s(S_T2)}')
        p.e(f's_mul_i32 {s(S_T2)}, {s(S_BR)}, 1280')
        p.e(f's_add_u32 {s(S_T)}, {s(S_T)}, {s(S_T2)}')
        srd(p, SRD_OUT, S_OUT, S_T, OUT_BYTES)
        p.e(f's_lshl_b32 {s(S_T)}, {s(S_BR)}, 3')
        p.e(f's_add_u32 {s(S_T)}, {s(S_T)}, {s(S_BG)}')
        p.e(f's_lshl_b32 {s(S_T)}, {s(S_T)}, 7')
        p.e(f's_add_u32 {s(S_EP)}, {s(S_T)}, {FL_EP}')
        p.e(f's_load_dword {s(S_TAG)}, {s(SRD_FL, 2)}, {s(S_EP)}')

    def make_tag():
        p.e('s_waitcnt lgkmcnt(0)')
        p.e(f's_mul_i32 {s(S_TAG)}, {s(S_TAG)}, 0x9E3779B1')
        p.e(f's_add_u32 {s(S_TAG)}, {s(S_TAG)}, 0x7F4A7C15')

    def spin(label, vdst, vaddr, soff, mask_s, first_issued=False):
        p.e('s_mov_b32 s86, 0')
        if first_issued:
            p.e(f's_branch {label}_chk')
        p.e(f'{label}:')
        p.e(f'buffer_load_dword {v(vdst)}, {v(vaddr)}, {s(SRD_FL, 4)}, {s(soff)} offen sc1')
        p.e('s_waitcnt vmcnt(0)')
        p.e(f'{label}_chk:')
        p.e(f'v_cmp_eq_u32 vcc, {s(S_TAG)}, {v(vdst)}')
        p.e('s_add_u32 s86, s86, 1')
        p.e(f's_or_b64 vcc, vcc, {s(mask_s, 2)}')
        p.e('s_cmp_eq_u64 vcc, -1')
        p.e(f's_cbranch_scc1 {label}_ok')
        p.e('s_cmp_lt_u32 s86, 200000')
        p.e(f's_cbranch_scc1 {label}')
        p.e(f'{label}_ok:')

    def final_reduce(acc, ld, tmp, vlane16, vout, n_s):
        p.e(f's_lshl_b32 s80, s2, 7')
        p.e(f's_add_u32 s80, s80, {FL_XF}')
        p.e(f's_mov_b32 s82, 0x11111111')
        p.e(f's_lshl_b32 s82, s82, {s(S_XQ)}')
        p.e('s_mov_b32 s83, s82')
        p.e(f'v_lshrrev_b32 {v(tmp)}, 2, {v(vlane16)}')
        p.e(f'v_and_b32 {v(tmp)}, 12, {v(tmp)}')
        p.e(f's_mul_i32 s81, {s(S_XQ)}, 40960')
        p.e(f's_lshl_b32 s84, {s(n_s)}, 11')
        p.e('s_add_u32 s81, s81, s84')
        for d in range(3):
            p.e(f's_xor_b32 s84, {s(S_XQ)}, {d + 1}')
            p.e('s_mul_i32 s84, s84, 10240')
            p.e(f's_add_u32 {s(76 + d)}, s81, s84')
        p.e(f's_lshl_b32 s79, {s(n_s)}, 6')
        return

    def final_reduce2(acc, ld, tmp, vlane16, vout, label):
        spin(label, tmp + 1, tmp, 80, 82)
        for d in range(3):
            for h in range(2):
                p.e(f'buffer_load_dwordx4 {v(ld + d * 8 + h * 4, 4)}, {v(vlane16)}, {s(SRD_XB, 4)}, {s(76 + d)} offen offset:{h * 1024} sc1')
        for d in range(3):
            p.e(f's_waitcnt vmcnt({4 - 2 * d})')
            for r in range(8):
                p.e(f'v_lshlrev_b32 {v(tmp + 2)}, 16, {v(ld + d * 8 + r)}')
                p.e(f'v_and_b32 {v(tmp + 3)}, 0xffff0000, {v(ld + d * 8 + r)}')
                p.e(f'v_add_f32 {v(acc + 2 * r)}, {v(acc + 2 * r)}, {v(tmp + 2)}')
                p.e(f'v_add_f32 {v(acc + 2 * r + 1)}, {v(acc + 2 * r + 1)}, {v(tmp + 3)}')
        for r in range(8):
            p.e(f'v_cvt_pk_bf16_f32 {v(acc + r)}, {v(acc + 2 * r)}, {v(acc + 2 * r + 1)}')
        p.e(f'buffer_store_dwordx4 {v(acc, 4)}, {v(vout)}, {s(SRD_OUT, 4)}, s79 offen')
        p.e(f'buffer_store_dwordx4 {v(acc + 4, 4)}, {v(vout)}, {s(SRD_OUT, 4)}, s79 offen offset:16')

    l0 = p.pos()
    XO = 10; WQO = 14; KO = 22; WO = 26; VO = 32; PO = 36; TO = 37; LN16 = 38; FA = 39; SV = 200
    S_LW, S_SLOT, S_SX, S_SW, S_LX, S_LWQ = 39, 77, 78, 79, 80, 81
    if o.lprio:
        p.e(f's_setprio {o.lprio}')
    p.e(f's_sub_u32 {s(S_LW)}, {s(S_WV)}, 4')
    p.e('v_lshrrev_b32 v3, 3, v2')
    p.e(f's_lshl_b32 {s(S_T)}, {s(S_LW)}, 5')
    p.e(f'v_add_u32 v3, {s(S_T)}, v3')
    p.e('v_mul_u32_u24 v3, 1280, v3')
    p.e('v_and_b32 v4, 7, v2')
    p.e('v_lshrrev_b32 v5, 4, v2')
    p.e('v_xor_b32 v4, v4, v5')
    p.e('v_lshl_add_u32 v6, v4, 4, v3')
    p.e('v_xor_b32 v4, 4, v4')
    p.e('v_lshl_add_u32 v7, v4, 4, v3')
    for j in range(4):
        p.e(f'v_add_u32 {v(XO + j)}, {j * (8 * 1280 - 1024)}, {"v7" if j & 1 else "v6"}')
    p.e('v_lshrrev_b32 v3, 5, v2')
    p.e('v_and_b32 v4, 31, v2')
    p.e('v_lshlrev_b32 v5, 2, v3')
    p.e('v_xor_b32 v4, v4, v5')
    p.e(f's_lshl_b32 {s(S_T)}, {s(S_LW)}, 4')
    p.e(f'v_add_u32 v3, {s(S_T)}, v3')
    p.e('v_lshlrev_b32 v3, 13, v3')
    p.e('v_lshl_add_u32 v6, v4, 4, v3')
    p.e('v_xor_b32 v4, 8, v4')
    p.e('v_lshl_add_u32 v7, v4, 4, v3')
    for j in range(8):
        p.e(f'v_add_u32 {v(WQO + j)}, {j * 16384 - 1024 * (j & 3)}, {"v7" if j & 1 else "v6"}')
    p.e(f's_lshl_b32 {s(S_LX)}, {s(S_LW)}, 12')
    p.e(f's_lshl_b32 {s(S_LWQ)}, {s(S_LW)}, 13')
    p.e(f's_add_u32 {s(S_LWQ)}, {s(S_LWQ)}, 16384')
    p.e(f's_mov_b32 {s(S_SLOT)}, {SLOT}')
    if o.grp == 2:
        p.e(f's_and_b32 {s(S_T)}, {s(S_CT)}, 1')
        p.e(f's_mul_i32 {s(S_SX)}, {s(S_T)}, {5 * 128}')
    elif o.grp == 4:
        p.e(f's_mul_i32 {s(S_T)}, {s(S_CT)}, 5')
        p.e(f's_lshr_b32 {s(S_T)}, {s(S_T)}, 1')
        p.e(f's_lshl_b32 {s(S_SX)}, {s(S_T)}, 7')
    else:
        p.e(f's_mov_b32 {s(S_SX)}, 0')
    p.e(f's_mul_i32 {s(S_T)}, {s(S_BG)}, {128 * 1280}')
    p.e(f's_lshl_b32 {s(S_T2)}, {s(S_XQ)}, 2')
    p.e(f's_add_u32 {s(S_T2)}, {s(S_T2)}, {s(S_HP)}')
    p.e(f's_lshl_b32 {s(S_T2)}, {s(S_T2)}, 9')
    p.e('s_waitcnt lgkmcnt(0)')
    srd(p, SRD_WQ, S_WQ, S_T2, W_BYTES)
    srd(p, SRD_X, S_X, S_T, X_BYTES)

    def issue1():
        p.e(f's_lshl_b32 {s(S_SW)}, {s(S_SX)}, 12')
        p.e(f's_add_u32 m0, {s(S_SLOT)}, {s(S_LWQ)}')
        for j in range(4):
            p.e(f'buffer_load_dwordx4 {v(WQO + j)}, {s(SRD_WQ, 4)}, {s(S_SW)} offen offset:{1024 * j} lds')
        p.e('s_add_u32 m0, m0, 4096')
        for j in range(4):
            p.e(f'buffer_load_dwordx4 {v(WQO + 4 + j)}, {s(SRD_WQ, 4)}, {s(S_SW)} offen offset:{1024 * j} lds')
        p.e(f's_add_u32 m0, {s(S_SLOT)}, {s(S_LX)}')
        for j in range(4):
            p.e(f'buffer_load_dwordx4 {v(XO + j)}, {s(SRD_X, 4)}, {s(S_SX)} offen offset:{1024 * j} lds')
        p.e(f's_add_u32 {s(S_SX)}, {s(S_SX)}, 128')
        p.e(f's_cmp_eq_u32 {s(S_SX)}, 1280')
        p.e(f's_cselect_b32 {s(S_SX)}, 0, {s(S_SX)}')
        p.e(f's_add_u32 {s(S_SLOT)}, {s(S_SLOT)}, {SLOT}')
        p.e(f's_cmp_eq_u32 {s(S_SLOT)}, {3 * SLOT}')
        p.e(f's_cselect_b32 {s(S_SLOT)}, 0, {s(S_SLOT)}')

    class VM:
        def __init__(self): self.q = []
        def add(self, tag, n=1): self.q += [tag] * n
        def cnt(self, *tags):
            last = -1
            for i, x in enumerate(self.q):
                if x in tags: last = i
            return len(self.q) - 1 - last
        def wait(self, *tags):
            n = self.cnt(*tags)
            assert n < 64
            p.e(f's_waitcnt vmcnt({n})')
            self.q = self.q[len(self.q) - n:] if n else []
    vm = VM()
    KP = 64; VP = 128
    S_LWO, S_LV, S_PL, S_TV, S_PF = 4, 5, 6, 7, 87
    nt_k = ' nt' if o.nt_k else ''

    def bar(*tags):
        vm.wait(*tags)
        st.dyn(SV)
        p.e('s_barrier')

    def setup2():
        late_srds()
        p.e(f's_and_b32 s82, {s(S_LW)}, 1')
        p.e(f's_lshr_b32 s83, {s(S_LW)}, 1')
        p.e('s_lshl_b32 s84, s83, 6')
        p.e('s_add_u32 s84, s84, s82')
        p.e('s_lshl_b32 s84, s84, 13')
        p.e('v_lshrrev_b32 v3, 4, v2')
        p.e('v_and_b32 v4, 15, v2')
        for jj in range(4):
            p.e(f'v_add_u32 v5, {4 * jj}, v3')
            p.e('v_xor_b32 v6, v5, v4')
            p.e('v_lshlrev_b32 v6, 4, v6')
            p.e(f'v_lshl_add_u32 {v(KO + jj)}, v3, 8, v6')
        p.e(f'v_lshlrev_b32 {v(LN16)}, 4, v2')

    def setup3():
        p.e(f's_mul_i32 s85, {s(S_LW)}, 12288')
        p.e(f's_add_u32 s85, s85, {KB}')
        p.e('s_lshl_b32 s82, s82, 13')
        p.e('s_lshl_b32 s83, s83, 12')
        p.e('s_add_u32 s82, s82, s83')
        p.e(f's_add_u32 s82, s82, {PBUF}')
        p.e(f's_mul_i32 {s(S_T)}, {s(S_LW)}, 20480')
        p.e(f's_mov_b32 {s(S_T2)}, 52429')
        for j in range(5):
            p.e(f'v_add_u32 v3, {64 * j}, v2')
            p.e(f'v_mul_u32_u24 v4, {s(S_T2)}, v3')
            p.e('v_lshrrev_b32 v4, 20, v4')
            p.e('v_mul_u32_u24 v4, 960, v4')
            p.e('v_lshl_add_u32 v4, v3, 4, v4')
            p.e(f'v_add_u32 v4, {s(S_T)}, v4')
            p.e(f'v_subrev_u32 {v(WO + j)}, {1024 * (j & 3)}, v4')
        p.e('v_lshrrev_b32 v3, 3, v2')
        p.e('v_bfe_u32 v4, v2, 4, 1')
        p.e('v_lshlrev_b32 v4, 2, v4')
        p.e('v_and_b32 v5, 7, v2')
        p.e('v_xor_b32 v4, v4, v5')
        p.e('v_lshlrev_b32 v4, 4, v4')
        p.e('v_lshl_add_u32 v4, v3, 8, v4')
        p.e(f's_lshl_b32 {s(S_T)}, {s(S_LW)}, 18')
        p.e(f'v_add_u32 v4, {s(S_T)}, v4')
        for j in range(4):
            p.e(f'v_add_u32 {v(VO + j)}, {1024 * j}, v4')
        p.e(f's_lshl_b32 {s(S_T)}, {s(S_LW)}, 16')
        p.e(f'v_add_u32 {v(PO)}, {s(S_T)}, {v(LN16)}')
        p.e(f'v_and_b32 {v(FA)}, 3, v2')
        p.e(f'v_lshlrev_b32 {v(FA)}, 2, {v(FA)}')
        p.e(f's_mul_i32 {s(S_LWO)}, {s(S_LW)}, 5120')
        p.e(f's_lshl_b32 {s(S_LV)}, {s(S_LW)}, 12')
        p.e(f's_add_u32 {s(S_LV)}, {s(S_LV)}, {VOFF}')
        p.e(f's_lshl_b32 {s(S_PL)}, {s(S_LW)}, 11')
        p.e(f's_add_u32 {s(S_PL)}, {s(S_PL)}, {PBUF}')
        p.e(f's_lshl_b32 {s(S_TV)}, {s(S_HP)}, 2')
        p.e(f's_lshl_b32 {s(S_T)}, {s(S_BG)}, 3')
        p.e(f's_and_b32 {s(S_T2)}, s2, 7')
        p.e(f's_add_u32 {s(S_T)}, {s(S_T)}, {s(S_T2)}')
        p.e(f's_lshl_b32 {s(S_T)}, {s(S_T)}, 2')
        p.e(f's_add_u32 {s(S_T)}, {s(S_T)}, {s(S_LW)}')
        p.e(f's_lshl_b32 {s(S_PF)}, {s(S_T)}, 7')
        p.e(f'v_add_u32 {v(TO)}, {s(S_LV)}, {v(LN16)}')

    def kpark(i):
        g, jj = i >> 2, i & 3
        if jj == 0 or True:
            p.e(f's_add_u32 {s(S_T)}, s84, {(g >> 1) * 32 * 8192 + (g & 1) * 4096}')
        p.e(f'buffer_load_dwordx4 {v(KP + 4 * i, 4)}, {v(KO + jj)}, {s(SRD_K, 4)}, {s(S_T)} offen offset:{1024 * jj}{nt_k}')
        vm.add('K')

    def vsoff(T):
        p.e(f's_add_u32 {s(S_T)}, {s(S_TV)}, {T & ~1}')
        p.e(f's_and_b32 {s(S_T)}, {s(S_T)}, 15')
        p.e(f's_lshl_b32 {s(S_T)}, {s(S_T)}, 12')
        if T & 1:
            p.e(f's_add_u32 {s(S_T)}, {s(S_T)}, 128')

    def vpark(T):
        vsoff(T)
        for j in range(4):
            p.e(f'buffer_load_dwordx4 {v(VP + 16 * T + 4 * j, 4)}, {v(VO + j)}, {s(SRD_V, 4)}, {s(S_T)} offen offset:{1024 * j}')
        vm.add(f'V{T}', 4)

    def vflush(T):
        vm.wait(f'V{T}')
        if T >= 1:
            p.e(f'v_add_u32 v3, {T * STG}, {v(TO)}')
        for j in range(4):
            p.e(f'ds_write_b128 {"v3" if T else v(TO)}, {v(VP + 16 * T + 4 * j, 4)} offset:{1024 * j}')

    def vdma(T):
        vsoff(T)
        p.e(f's_add_u32 m0, {s(S_LV)}, {(T & 3) * STG}')
        for j in range(4):
            p.e(f'buffer_load_dwordx4 {v(VO + j)}, {s(SRD_V, 4)}, {s(S_T)} offen offset:{1024 * j} lds')
        vm.add(f'T{T}', 4)

    def wdma(T):
        p.e(f's_add_u32 {s(S_T)}, {s(S_TV)}, {T - 1}')
        p.e(f's_and_b32 {s(S_T)}, {s(S_T)}, 15')
        p.e(f's_mul_i32 {s(S_T)}, {s(S_T)}, {64 * 1280}')
        p.e(f's_add_u32 m0, {s(S_LWO)}, {(T & 3) * STG}')
        for j in range(4):
            p.e(f'buffer_load_dwordx4 {v(WO + j)}, {s(SRD_WO, 4)}, {s(S_T)} offen offset:{1024 * j} lds')
        p.e('s_add_u32 m0, m0, 4096')
        p.e(f'buffer_load_dwordx4 {v(WO + 4)}, {s(SRD_WO, 4)}, {s(S_T)} offen lds')
        vm.add(f'T{T}', 5)

    def pdma(T):
        p.e(f's_add_u32 {s(S_T)}, {s(S_TV)}, {T}')
        p.e(f's_and_b32 {s(S_T)}, {s(S_T)}, 15')
        p.e(f's_lshl_b32 {s(S_T)}, {s(S_T)}, 10')
        p.e(f's_add_u32 m0, {s(S_PL)}, {((T >> 1) & 1) * 8192}')
        for j in range(2):
            p.e(f'buffer_load_dwordx4 {v(PO)}, {s(SRD_P, 4)}, {s(S_T)} offen offset:{1024 * j} sc1 lds')
        vm.add(f'T{T}', 2)

    st.dyn(SV)
    issue1(); vm.add('S0', 12)
    issue1(); vm.add('S1', 12)
    bar('S0')
    issue1(); vm.add('S2', 12)
    setup2()
    bar('S1')
    issue1(); vm.add('S3', 12)
    setup3()
    make_tag()
    l1 = p.pos()
    traces_p1 = []
    ngrp = len(o.ksched)
    if ngrp == 2:
        p.e(f's_bitcmp1_b32 {s(S_BG)}, 0')
        p.e('s_cbranch_scc1 L_kg1')
    l1b = p.pos()
    q0 = list(vm.q)
    endq = []
    for gi, ks in enumerate(o.ksched):
        if gi == 1:
            p.e('L_kg1:')
        ga = p.pos()
        vm.q = list(q0)
        ki = 0
        for t in range(4, 10):
            bar(f'S{t - 2}')
            if o.fine: st.dyn(SV)
            issue1(); vm.add(f'S{t}', 12)
            if o.fine: st.dyn(SV)
            for _ in range(ks.get(t, 0)):
                kpark(ki); ki += 1
        assert ki == 16
        for T in range(o.vpre):
            vpark(T)
        bar('S8')
        for T in range(o.vpre, o.v8):
            vpark(T)
        bar('S9')
        vm.wait('K')
        endq.append(list(vm.q))
        if gi == 0 and ngrp == 2:
            p.e('s_branch L_kjoin')
        traces_p1.append((ga, p.pos()))
    if ngrp == 2:
        p.e('L_kjoin:')
    endq.sort(key=len)
    assert all(endq[-1][len(endq[-1]) - len(x):] == x for x in endq if x)
    vm.q = endq[-1]
    l2 = p.pos()
    p.e(f'v_add_u32 v3, s85, {v(LN16)}')
    p.e(f'v_add_u32 v4, s82, {v(LN16)}')
    for i in range(16):
        g, jj = i >> 2, i & 3
        if g < 3:
            p.e(f'ds_write_b128 v3, {v(KP + 4 * i, 4)} offset:{g * 4096 + jj * 1024}')
        else:
            p.e(f'ds_write_b128 v4, {v(KP + 4 * i, 4)} offset:{jj * 1024}')
    for T in range(o.v8, o.v9):
        vpark(T)
    if o.w4early:
        wdma(4)
    p.e('s_waitcnt lgkmcnt(0)')
    st.dyn(SV)
    p.e('s_barrier')
    wdma(1)
    vflush(0); vflush(1)
    if o.w2early:
        wdma(2)
    p.e('s_waitcnt lgkmcnt(0)')
    st.dyn(SV)
    p.e('s_barrier')
    PR = 44
    p.e(f'v_add_u32 v3, {s(S_PL)}, {v(LN16)}')
    for hh in range(2):
        for sk in range(2):
            p.e(f'ds_read_b128 {v(PR + (hh * 2 + sk) * 4, 4)}, v3 offset:{hh * 8192 + sk * 1024}')
    p.e(f's_lshl_b32 {s(S_T)}, {s(S_HP)}, 12')
    for hh in range(2):
        for sk in range(2):
            p.e(f'buffer_store_dwordx4 {v(PR + (hh * 2 + sk) * 4, 4)}, {v(PO)}, {s(SRD_P, 4)}, {s(S_T)} offen offset:{hh * 2048 + sk * 1024} sc1')
    vm.add('PS', 4)
    if not o.w2early:
        wdma(2)
    bar('T1')
    for T in range(2, o.v9):
        vflush(T)
    for T in range(o.v9, 4):
        vdma(T)
    wdma(3)
    vm.wait('PS')
    p.e(f'v_mov_b32 v4, {s(S_TAG)}')
    p.e(f's_lshl_b32 {s(S_T)}, {s(S_HP)}, 2')
    p.e(f's_add_u32 {s(S_T)}, {s(S_T)}, {s(S_PF)}')
    p.e('v_mov_b32 v5, 0')
    p.e(f'buffer_store_dword v4, v5, {s(SRD_FL, 4)}, {s(S_T)} offen sc1')
    vm.add('FL')
    p.e('s_waitcnt lgkmcnt(0)')
    bar('T2')
    if not o.w4early:
        wdma(4)
    vdma(4)
    bar('T3')
    p.e(f'buffer_load_dword v6, {v(FA)}, {s(SRD_FL, 4)}, {s(S_PF)} offen sc1')
    vm.add('PL')
    vm.wait('PL')
    p.e('s_mov_b64 s[82:83], 0')
    spin('L_pspin', 6, FA, S_PF, 82, first_issued=True)
    st.dyn(SV)
    pdma(4)
    vdma(5); wdma(5)
    bar('T4')
    vdma(6); wdma(6); pdma(6)
    bar('T5')
    vdma(7); wdma(7)
    for T in range(5, 16):
        n = T + 3
        if n <= 15: vdma(n)
        if n <= 16: wdma(n)
        if n <= 14 and n % 2 == 0: pdma(n)
        bar(f'T{T + 1}')
    l4 = p.pos()
    VOUT = 40
    p.e('v_and_b32 v4, 31, v2')
    p.e('v_mul_u32_u24 v4, 2560, v4')
    p.e('v_lshrrev_b32 v5, 5, v2')
    p.e(f'v_lshl_add_u32 {v(VOUT)}, v5, 5, v4')
    final_reduce(48, 64, 42, LN16, VOUT, S_LW)
    p.e(f's_lshl_b32 {s(S_T)}, {s(S_LW)}, 12')
    p.e(f'v_add_u32 v3, {s(S_T)}, {v(LN16)}')
    p.e('s_barrier')
    st.dyn(SV)
    p.e('s_barrier')
    st.dyn(SV)
    for q in range(4):
        p.e(f'ds_read_b128 {v(48 + 4 * q, 4)}, v3 offset:{q * 1024}')
    final_reduce2(48, 64, 42, LN16, VOUT, 'L_xspin_l')
    st.flush(SV, 201)
    p.e('L_end:')
    p.e('s_endpgm')
    l5 = p.pos()
    for tr in traces_p1:
        p.add_trace([(t0, t1), (l0, l1b), tr, (l2, l5)])

    p.e('L_compute:')
    c0 = p.pos()
    ACC = 0; AF = 128; BF = 160; AA = 176; BA = 180; KA = 184; KF1 = 192; SA0 = 224; SA1 = 240
    SVC = 222
    L = 'v200'
    p.e(f'v_mov_b32 {L}, v2')
    if o.codepf:
        p.e(f's_cmp_lt_u32 {s(S_WV)}, {o.codepf}')
        p.e('s_cbranch_scc0 L_nopf')
        p.e(f's_and_b32 {s(S_T)}, {s(S_BG)}, {o.codepf_mask}')
        p.e(f's_cmp_eq_u32 {s(S_T)}, 0')
        p.e('s_cbranch_scc0 L_nopf')
        p.e('s_getpc_b64 s[76:77]')
        p.e('L_pc:')
        p.e(f's_sub_u32 s76, s76, L_pc-{KN}')
        p.e('s_subb_u32 s77, s77, 0')
        p.e('v_lshlrev_b32 v220, 7, v0')
        p.e(f'v_min_u32 v220, L_codeend-{KN}-4, v220')
        p.e('global_load_dword v221, v220, s[76:77]')
        p.e('L_nopf:')
    S_HH, S_BP = 77, 78
    p.e(f's_and_b32 {s(S_HH)}, {s(S_WV)}, 1')
    p.e(f's_lshr_b32 {s(S_BP)}, {s(S_WV)}, 1')
    p.e(f'v_bfe_u32 v210, {L}, 2, 2')
    p.e(f'v_lshrrev_b32 v211, 5, {L}')
    p.e('v_lshl_add_u32 v212, v211, 3, v210')
    p.e('v_lshlrev_b32 v212, 9, v212')
    p.e(f'v_bfe_u32 v213, {L}, 4, 1')
    p.e('v_lshl_add_u32 v212, v213, 5, v212')
    p.e(f'v_and_b32 v213, 1, {L}')
    p.e('v_lshl_add_u32 v212, v213, 4, v212')
    p.e(f'v_bfe_u32 v213, {L}, 1, 1')
    p.e('v_lshl_add_u32 v212, v213, 3, v212')
    p.e(f's_lshl_b32 {s(S_T)}, {s(S_HH)}, 8')
    p.e(f's_add_u32 {s(S_T)}, {s(S_T)}, {16384 + SLOT}')
    p.e(f'v_add_u32 v212, {s(S_T)}, v212')
    for j in range(4):
        p.e(f'v_xor_b32 v213, {j}, v210')
        p.e(f'v_lshl_add_u32 {v(AA + j)}, v213, 6, v212')
    p.e(f'v_and_b32 v213, 31, {L}')
    p.e('v_bfe_u32 v214, v213, 1, 3')
    p.e('v_xor_b32 v214, v214, v211')
    p.e('v_lshlrev_b32 v214, 4, v214')
    p.e('v_lshl_add_u32 v214, v213, 7, v214')
    p.e(f's_lshl_b32 {s(S_T)}, {s(S_BP)}, 13')
    p.e(f's_add_u32 {s(S_T)}, {s(S_T)}, {SLOT}')
    p.e(f'v_add_u32 v214, {s(S_T)}, v214')
    for t in range(4):
        p.e(f'v_xor_b32 {v(BA + t)}, {t * 32}, v214')
    p.e('v_and_b32 v214, 15, v213')
    p.e('v_xor_b32 v214, v214, v211')
    p.e('v_lshlrev_b32 v214, 4, v214')
    p.e('v_lshl_add_u32 v214, v213, 8, v214')
    p.e(f's_mul_i32 {s(S_T)}, {s(S_WV)}, 12288')
    p.e(f's_add_u32 {s(S_T)}, {s(S_T)}, {KB}')
    p.e(f'v_add_u32 {v(KA)}, {s(S_T)}, v214')
    p.e(f'v_add_u32 {v(KA + 1)}, 8192, {v(KA)}')
    p.e(f's_lshl_b32 {s(S_T)}, {s(S_HH)}, 13')
    p.e(f's_lshl_b32 {s(S_T2)}, {s(S_BP)}, 12')
    p.e(f's_add_u32 s79, {s(S_T)}, {s(S_T2)}')
    p.e(f's_add_u32 s79, s79, {PBUF}')
    p.e(f's_sub_u32 {s(S_T)}, s79, 4096')
    p.e(f'v_add_u32 v214, {s(S_T)}, v214')
    p.e('v_cmp_gt_u32 vcc, 16, v213')
    p.e(f'v_cndmask_b32 {v(KA + 1)}, v214, {v(KA + 1)}, vcc')
    p.e(f'v_lshlrev_b32 {v(KA + 2)}, 4, {L}')
    p.e(f'v_add_u32 {v(KA + 3)}, s79, {v(KA + 2)}')
    WA = KA + 4; VA = KA + 5; PA = KA + 7; LN16c = KA + 2
    p.e('v_lshl_add_u32 v215, v211, 2, v210')
    p.e(f'v_bfe_u32 v216, {L}, 4, 1')
    p.e(f'v_and_b32 v217, 3, {L}')
    p.e('v_lshl_add_u32 v217, v216, 2, v217')
    p.e(f'v_mul_u32_u24 {v(WA)}, 320, v215')
    p.e('v_and_b32 v218, 1, v217')
    p.e(f'v_lshl_add_u32 {v(WA)}, v218, 5, {v(WA)}')
    p.e('v_lshrrev_b32 v218, 1, v217')
    p.e(f'v_lshl_add_u32 {v(WA)}, v218, 3, {v(WA)}')
    p.e('v_lshlrev_b32 v218, 7, v215')
    p.e('v_lshl_add_u32 v218, v217, 3, v218')
    p.e(f's_lshl_b32 {s(S_T)}, {s(S_WV)}, 12')
    p.e(f's_add_u32 {s(S_T)}, {s(S_T)}, {VOFF}')
    p.e(f'v_add_u32 v218, {s(S_T)}, v218')
    p.e('v_lshrrev_b32 v219, 1, v210')
    p.e(f'v_lshl_add_u32 {v(VA)}, v219, 6, v218')
    p.e('v_xor_b32 v219, 1, v219')
    p.e(f'v_lshl_add_u32 {v(VA + 1)}, v219, 6, v218')
    p.e(f's_lshl_b32 {s(S_T)}, {s(S_WV)}, 11')
    p.e(f's_add_u32 {s(S_T)}, {s(S_T)}, {PBUF}')
    p.e(f'v_add_u32 {v(PA)}, {s(S_T)}, {v(LN16c)}')
    for r in range(128):
        p.e(f'v_mov_b32 {v(ACC + r)}, 0')
    p.e('s_waitcnt lgkmcnt(0)')
    late_srds()
    make_tag()
    p.e(f's_mov_b32 {s(S_CNT)}, 0')
    p.e(f's_mov_b32 {s(S_POS)}, 1')
    p.e(f's_mov_b32 {s(S_STEP)}, {SLOT}')
    c = (128 ** -0.5) * math.log2(math.e)
    p.e(f's_mov_b32 {s(S_C)}, {f32hex(c)}')

    def acc(j, bb):
        return ACC + (j * 2 + bb) * 16

    def reads(t, buf):
        out = [f'ds_read_b128 {v(BF + buf * 8, 4)}, {v(BA + t)}']
        for j in range(4):
            for u in range(2):
                out.append(f'ds_read_b64_tr_b16 {v(AF + buf * 16 + j * 4 + u * 2, 2)}, {v(AA + j)} offset:{(16 * t + 4 * u) * 512}')
            if j == 0:
                out.append(f'ds_read_b128 {v(BF + buf * 8 + 4, 4)}, {v(BA + t)} offset:4096')
        return out

    def mfmas(buf):
        return [f'v_mfma_f32_32x32x16_bf16 {v(acc(j, bb), 16)}, {v(AF + buf * 16 + j * 4, 4)}, {v(BF + buf * 8 + bb * 4, 4)}, {v(acc(j, bb), 16)}'
                for j in range(4) for bb in range(2)]

    def interleave(ms, rs, per_gap=2):
        rs = list(rs)
        for m in ms:
            p.e(m)
            for _ in range(per_gap):
                if rs:
                    p.e(rs.pop(0))
        for r in rs:
            p.e(r)

    st.dyn(SVC)
    p.e('s_barrier')
    st.dyn(SVC); st.dyn(SVC, True)
    for r in reads(0, 0):
        p.e(r)
    c1 = p.pos()
    p.e('L_c1:')
    interleave(mfmas(0), reads(1, 1))
    interleave(mfmas(1), reads(2, 0))
    ms = mfmas(0); rs = reads(3, 1)
    advv = [f'v_add_u32 {v(AA + j)}, {s(S_DELTA)}, {v(AA + j)}' for j in range(4)] + \
           [f'v_add_u32 {v(BA + t)}, {s(S_DELTA)}, {v(BA + t)}' for t in range(4)]
    sal = [f's_add_u32 {s(S_POS)}, {s(S_POS)}, 1', f's_cmp_eq_u32 {s(S_POS)}, 3',
           f's_cselect_b32 {s(S_DELTA)}, {-2 * SLOT & 0xffffffff}, {s(S_STEP)}', f's_cselect_b32 {s(S_POS)}, 0, {s(S_POS)}']
    for i, m in enumerate(ms):
        p.e(m)
        if i < 5:
            p.e(rs[2 * i]); p.e(rs[2 * i + 1])
            if i == 4:
                for x in sal:
                    p.e(x)
        elif i == 5:
            for x in advv[:4]:
                p.e(x)
        elif i == 6:
            for x in advv[4:]:
                p.e(x)
    p.e(f's_add_u32 {s(S_CNT)}, {s(S_CNT)}, 1')
    p.e('s_waitcnt lgkmcnt(0)')
    p.e('s_barrier')
    p.e(f's_cmp_eq_u32 {s(S_CNT)}, 10')
    p.e('s_cbranch_scc1 L_c1_done')
    c1b = p.pos()
    ms = mfmas(1); rs = reads(0, 0)
    p.e(rs[0]); p.e(rs[1]); p.e(rs[2])
    interleave(ms, rs[3:])
    p.e('s_branch L_c1')
    c2 = p.pos()
    p.e('L_c1_done:')
    st.dyn(SVC); st.dyn(SVC, True)
    if o.codepf:
        p.e('s_waitcnt vmcnt(0)')
    KF0 = 192; KF1 = 128
    if o.stamps:
        p.e(f'v_mov_b32 v183, {v(SVC)}')
        SVC = 183
    kr0 = []
    for t in range(8):
        kr0.append(f'v_xor_b32 {v(AA + (t & 3))}, {t * 32}, {v(KA)}')
        kr0.append(f'ds_read_b128 {v(KF0 + 4 * t, 4)}, {v(AA + (t & 3))}')
    ms = mfmas(1)
    ms = [ms[0], ms[2], ms[4], ms[6], ms[1], ms[3], ms[5], ms[7]]

    def cvtq(bb):
        out = []
        for j in range(4):
            b = acc(j, bb)
            for r in range(8):
                out.append(f'v_cvt_pk_bf16_f32 {v(b + r)}, {v(b + 2 * r)}, {v(b + 2 * r + 1)}')
        return out

    def smf(bb, kf, sa):
        out = []
        for t in range(8):
            q = acc(t >> 1, bb) + 4 * (t & 1)
            cc = '0' if t == 0 else v(sa, 16)
            out.append(f'v_mfma_f32_32x32x16_bf16 {v(sa, 16)}, {v(kf + 4 * t, 4)}, {v(q, 4)}, {cc}')
        return out

    cq0 = cvtq(0)
    interleave(ms[:4], kr0, per_gap=4)
    interleave(ms[4:], cq0[:24], per_gap=6)
    kr1 = []
    for t in range(8):
        kr1.append(f'v_xor_b32 {v(AA + (t & 3))}, {t * 32}, {v(KA + 1)}')
        kr1.append(f'ds_read_b128 {v(KF1 + 4 * t, 4)}, {v(AA + (t & 3))}')
    for x in cq0[24:]:
        p.e(x)
    interleave(smf(0, KF0, SA0), kr1 + cvtq(1), per_gap=6)

    def softmax(sa, ta):
        o_ = []
        S = lambda r: v(sa + r)
        T = lambda r: v(ta + r)
        o_.append(f'v_max3_f32 {T(0)}, {S(0)}, {S(1)}, {S(2)}')
        o_.append(f'v_max3_f32 {T(1)}, {S(3)}, {S(4)}, {S(5)}')
        o_.append(f'v_max3_f32 {T(2)}, {S(6)}, {S(7)}, {S(8)}')
        o_.append(f'v_max3_f32 {T(3)}, {S(9)}, {S(10)}, {S(11)}')
        o_.append(f'v_max3_f32 {T(0)}, {T(0)}, {S(12)}, {S(13)}')
        o_.append(f'v_max3_f32 {T(1)}, {T(1)}, {S(14)}, {S(15)}')
        o_.append(f'v_max3_f32 {T(0)}, {T(0)}, {T(2)}, {T(3)}')
        o_.append(f'v_max_f32 {T(0)}, {T(0)}, {T(1)}')
        o_.append(f'v_mov_b32 {T(1)}, {T(0)}')
        o_.append(f'v_permlane32_swap_b32 {T(0)}, {T(1)}')
        o_.append(f'v_max_f32 {T(0)}, {T(0)}, {T(1)}')
        o_.append(f'v_mul_f32 {T(0)}, {s(S_C)}, {T(0)}')
        for r in range(16):
            o_.append(f'v_fma_f32 {S(r)}, {S(r)}, {s(S_C)}, -{T(0)}')
        for r in range(16):
            o_.append(f'v_exp_f32 {S(r)}, {S(r)}')
        o_.append(f'v_add_f32 {T(0)}, {S(0)}, {S(1)}')
        o_.append(f'v_add_f32 {T(1)}, {S(2)}, {S(3)}')
        o_.append(f'v_add_f32 {T(2)}, {S(4)}, {S(5)}')
        o_.append(f'v_add_f32 {T(3)}, {S(6)}, {S(7)}')
        for r in range(8, 16):
            o_.append(f'v_add_f32 {T(r & 3)}, {T(r & 3)}, {S(r)}')
        o_.append(f'v_add_f32 {T(0)}, {T(0)}, {T(1)}')
        o_.append(f'v_add_f32 {T(2)}, {T(2)}, {T(3)}')
        o_.append(f'v_add_f32 {T(0)}, {T(0)}, {T(2)}')
        o_.append(f'v_mov_b32 {T(1)}, {T(0)}')
        o_.append(f'v_permlane32_swap_b32 {T(0)}, {T(1)}')
        o_.append(f'v_add_f32 {T(0)}, {T(0)}, {T(1)}')
        o_.append(f'v_rcp_f32 {T(0)}, {T(0)}')
        for r in range(16):
            o_.append(f'v_mul_f32 {S(r)}, {S(r)}, {T(0)}')
        for r in range(8):
            o_.append(f'v_cvt_pk_bf16_f32 {S(r)}, {S(2 * r)}, {S(2 * r + 1)}')
        return o_

    sm1 = smf(1, KF1, SA1)
    sm0 = softmax(SA0, 160)
    p.e(sm1[0]); p.e(sm1[1])
    interleave(sm1[2:], sm0, per_gap=5)
    p.e(f'ds_write_b128 {v(KA + 3)}, {v(SA0, 4)}')
    p.e(f'ds_write_b128 {v(KA + 3)}, {v(SA0 + 4, 4)} offset:1024')
    for x in softmax(SA1, 164):
        p.e(x)
    p.e(f'ds_write_b128 {v(KA + 3)}, {v(SA1, 4)} offset:2048')
    p.e(f'ds_write_b128 {v(KA + 3)}, {v(SA1 + 4, 4)} offset:3072')

    OA = 80; OB = 112; FR = 192; NR = 12; PF = 144
    for r in range(80):
        p.e(f'v_mov_b32 {v(ACC + r)}, 0')
    p.e(f's_mov_b32 {s(S_CNT)}, 0')
    p.e(f's_mov_b32 {s(S_POS)}, 1')
    p.e(f's_mov_b32 {s(S_STEP)}, {STG}')

    def fr(i):
        return FR + (i % NR) * 4

    def wo_reads(n, ks, dst):
        return [f'ds_read_b64_tr_b16 {v(dst + 2 * u, 2)}, {v(WA)} offset:{(16 * ks + 8 * u) * 320 + n * 64}' for u in range(2)]

    def v_reads(jj, sk, dst):
        return [f'ds_read_b64_tr_b16 {v(dst + 2 * u, 2)}, {v(VA + jj)} offset:{(16 * sk + 8 * u) * 128}' for u in range(2)]

    def p_reads():
        return [f'ds_read_b128 {v(PF + 4 * sk, 4)}, {v(PA)} offset:{1024 * sk}' for sk in range(2)]

    def cvts(ob):
        return [f'v_cvt_pk_bf16_f32 {v(ob + jj * 8 + r)}, {v(OA + jj * 16 + 2 * r)}, {v(OA + jj * 16 + 2 * r + 1)}'
                for jj in range(2) for r in range(8)]

    def interval(i0, ob_cur):
        items = []
        order = [('w', 0, n) for n in range(5)] + [('v', 0, 0), ('v', 0, 1), ('v', 1, 0), ('v', 1, 1)] + \
                [('w', ks, n) for ks in range(1, 4) for n in range(5)]
        for k, (kind, a, b) in enumerate(order):
            d = fr(i0 + k)
            if kind == 'w':
                m = f'v_mfma_f32_32x32x16_bf16 {v(ACC + 16 * b, 16)}, {v(d, 4)}, {v(ob_cur + 4 * a, 4)}, {v(ACC + 16 * b, 16)}'
                rd = wo_reads(b, a, d)
            else:
                cc = '0' if a == 0 else v(OA + 16 * b, 16)
                m = f'v_mfma_f32_32x32x16_bf16 {v(OA + 16 * b, 16)}, {v(d, 4)}, {v(PF + 4 * a, 4)}, {cc}'
                rd = v_reads(b, a, d)
            items.append((m, rd))
        return items

    p.e('s_waitcnt lgkmcnt(0)')
    st.dyn(SVC)
    p.e('s_barrier')
    st.dyn(SVC); st.dyn(SVC, True)
    for r in p_reads():
        p.e(r)
    for k, (sk, jj) in enumerate([(0, 0), (0, 1), (1, 0), (1, 1)]):
        for r in v_reads(jj, sk, FR + 4 * k):
            p.e(r)
    for k, (sk, jj) in enumerate([(0, 0), (0, 1), (1, 0), (1, 1)]):
        cc = '0' if sk == 0 else v(OA + 16 * jj, 16)
        p.e(f'v_mfma_f32_32x32x16_bf16 {v(OA + 16 * jj, 16)}, {v(FR + 4 * k, 4)}, {v(PF + 4 * sk, 4)}, {cc}')
    D = o.D; Q = o.Q
    for a in (WA, VA, VA + 1):
        p.e(f'v_add_u32 {v(a)}, {STG}, {v(a)}')
    p.e(f'v_xor_b32 {v(PA)}, 8192, {v(PA)}')
    itA = interval(0, OB)
    itB = interval(24, OB + 16)
    p.e('s_waitcnt lgkmcnt(0)')
    p.e('s_barrier')

    def plan(items, with_p):
        rs = []
        for k, (m, rd) in enumerate(items):
            if with_p and k == 5:
                rs += p_reads()
            rs += rd
        return rs

    def distribute(rs):
        n = 24 - Q + 1
        out = [[] for _ in range(n)]
        per = len(rs) / n
        a_ = 0.0; k = 0
        for g in range(n):
            a_ += per
            while k < len(rs) and (k < math.ceil(a_ - 1e-9)):
                out[g].append(rs[k]); k += 1
        return out

    gA = distribute(plan(itA, False))
    gB = distribute(plan(itB, True))
    for g in range(D + 1):
        for r in gA[g]:
            p.e(r)
    for x in cvts(OB):
        p.e(x)
    c3 = p.pos()
    p.e('L_c2:')

    def body(items, g, nxt_g, ob_next, toggle_p):
        cv = cvts(ob_next)
        sal = [f's_add_u32 {s(S_POS)}, {s(S_POS)}, 1', f's_cmp_eq_u32 {s(S_POS)}, 4',
               f's_cselect_b32 {s(S_DELTA)}, {(-3 * STG) & 0xffffffff}, {s(S_STEP)}', f's_cselect_b32 {s(S_POS)}, 0, {s(S_POS)}']
        ad = [f'v_add_u32 {v(a)}, {s(S_DELTA)}, {v(a)}' for a in (WA, VA, VA + 1)]
        if toggle_p:
            ad.append(f'v_xor_b32 {v(PA)}, 8192, {v(PA)}')
        for k in range(24 - D):
            p.e(items[k][0])
            gi = D + 1 + k
            if gi < len(g):
                for r in g[gi]:
                    p.e(r)
            if k >= 11 and cv:
                p.e(cv.pop(0)); p.e(cv.pop(0))
            if k == 2:
                for x in sal:
                    p.e(x)
            if k == 24 - D - 1:
                for x in ad:
                    p.e(x)
        p.e('s_waitcnt lgkmcnt(0)')
        p.e('s_barrier')
        for r in nxt_g[0]:
            p.e(r)
        for k in range(24 - D, 24):
            p.e(items[k][0])
            for r in nxt_g[k - (24 - D) + 1]:
                p.e(r)
            if cv:
                p.e(cv.pop(0)); p.e(cv.pop(0))
        assert not cv

    body(itA, gA, gB, OB + 16, False)
    body(itB, gB, gA, OB, True)
    p.e(f's_add_u32 {s(S_CNT)}, {s(S_CNT)}, 1')
    p.e(f's_cmp_lt_u32 {s(S_CNT)}, 8')
    p.e('s_cbranch_scc1 L_c2')
    c4 = p.pos()
    st.dyn(SVC); st.dyn(SVC, True)
    p.e(f's_cmp_eq_u32 {s(S_WV)}, {s(S_XQ)}')
    p.e('s_cbranch_scc1 L_keeper')
    c5 = p.pos()
    p.e(f's_mul_i32 s76, {s(S_WV)}, 40960')
    p.e(f's_mul_i32 {s(S_T)}, {s(S_XQ)}, 10240')
    p.e(f's_add_u32 s76, s76, {s(S_T)}')
    p.e('s_add_u32 s77, s76, 4096')
    p.e('s_add_u32 s78, s76, 8192')
    for n in range(5):
        for h in range(2):
            pc = n * 2 + h
            b = ACC + 16 * n + 8 * h
            d = OA + pc * 4
            for r in range(4):
                p.e(f'v_cvt_pk_bf16_f32 {v(d + r)}, {v(b + 2 * r)}, {v(b + 2 * r + 1)}')
            p.e(f'buffer_store_dwordx4 {v(d, 4)}, {v(LN16c)}, {s(SRD_XB, 4)}, {s(76 + pc // 4)} offen offset:{(pc % 4) * 1024} sc1')
    p.e('s_barrier')
    p.e(f's_and_b32 {s(S_T)}, s2, 0xfc')
    p.e(f's_add_u32 {s(S_T)}, {s(S_T)}, {s(S_WV)}')
    p.e(f's_lshl_b32 {s(S_T)}, {s(S_T)}, 7')
    p.e(f's_lshl_b32 {s(S_T2)}, {s(S_XQ)}, 2')
    p.e(f's_add_u32 {s(S_T)}, {s(S_T)}, {s(S_T2)}')
    p.e(f's_add_u32 {s(S_T)}, {s(S_T)}, {FL_XF}')
    p.e(f'v_mov_b32 v130, {s(S_TAG)}')
    p.e('v_mov_b32 v131, 0')
    p.e('s_waitcnt vmcnt(0)')
    st.dyn(SVC)
    p.e(f'buffer_store_dword v130, v131, {s(SRD_FL, 4)}, {s(S_T)} offen sc1')
    st.flush(SVC, 132)
    p.e('s_endpgm')
    c6 = p.pos()
    p.e('L_keeper:')
    for q in range(16):
        p.e(f'ds_write_b128 {v(LN16c)}, {v(ACC + 4 * q, 4)} offset:{q * 1024}')
    p.e(f'v_lshrrev_b32 v130, 4, {v(LN16c)}')
    p.e('v_and_b32 v131, 31, v130')
    p.e('v_mul_u32_u24 v131, 2560, v131')
    p.e('v_lshrrev_b32 v130, 5, v130')
    p.e('v_lshl_add_u32 v130, v130, 5, v131')
    p.e(f's_mov_b32 {s(S_T)}, 4')
    final_reduce(64, 96, 132, LN16c, 130, S_T)
    p.e('s_waitcnt lgkmcnt(0)')
    p.e('s_barrier')
    final_reduce2(64, 96, 132, LN16c, 130, 'L_xspin_k')
    p.e(f's_or_b32 {s(S_T)}, {s(S_XQ)}, {s(S_HP)}')
    p.e(f's_cmp_eq_u32 {s(S_T)}, 0')
    p.e('s_cbranch_scc0 L_kdone')
    p.e(f'v_mov_b32 v136, {s(S_TAG)}')
    p.e('v_mov_b32 v137, 0')
    p.e(f'buffer_store_dword v136, v137, {s(SRD_FL, 4)}, {s(S_EP)} offen sc1')
    p.e('L_kdone:')
    st.flush(SVC, 138)
    p.e('s_endpgm')
    p.e('L_codeend:')
    c7 = p.pos()
    pre = [(t0, t1), (c0, c1), (c1, c2), (c1, c1b), (c2, c3), (c3, c4), (c3, c4), (c4, c5)]
    p.add_trace(pre + [(c5, c6)])
    p.add_trace(pre + [(c6, c7)])


def kd(name, vgpr=256, sgpr=100):
    acc = (vgpr + 3) // 4 * 4
    return f'''.p2align 6
.amdhsa_kernel {name}
  .amdhsa_next_free_vgpr {vgpr}
  .amdhsa_next_free_sgpr {sgpr}
  .amdhsa_accum_offset {acc}
  .amdhsa_group_segment_fixed_size 0
  .amdhsa_kernarg_size 104
  .amdhsa_user_sgpr_count 2
  .amdhsa_user_sgpr_kernarg_segment_ptr 1
  .amdhsa_system_sgpr_workgroup_id_x 1
.end_amdhsa_kernel
'''


def gen_z(p, o):
    name = 'z_kernel'
    p.e(f'.globl {name}\n.p2align 8\n.type {name},@function\n{name}:')
    t0 = p.pos()
    la, lb, wv, mul, shr, g0 = o.z
    p.e('s_cmp_ge_u32 s2, 256')
    p.e('s_cbranch_scc1 L_z_end')
    p.e('s_memrealtime s[40:41]')
    p.e('s_load_dwordx2 s[36:37], s[0:1], 96')
    p.e('s_lshl_b32 s4, s2, 11')
    p.e('s_waitcnt lgkmcnt(0)')
    p.e('s_add_u32 s38, s36, s4')
    p.e('s_addc_u32 s39, s37, 0')
    p.e(f's_add_u32 s8, {"s36" if g0 else "s38"}, {WS_STAMP + wv * 256 + la * 4}')
    p.e(f's_addc_u32 s9, {"s37" if g0 else "s39"}, 0')
    p.e('s_load_dword s12, s[8:9], 0')
    if lb >= 0:
        p.e(f's_add_u32 s8, s38, {WS_STAMP + wv * 256 + lb * 4}')
        p.e('s_addc_u32 s9, s39, 0')
        p.e('s_load_dword s13, s[8:9], 0')
    else:
        p.e('s_mov_b32 s13, s40')
    p.e('s_waitcnt lgkmcnt(0)')
    p.e('s_sub_u32 s44, s13, s12')
    p.e(f's_mul_i32 s44, s44, {mul}')
    p.e(f's_lshr_b32 s44, s44, {shr}')
    p.e('s_min_u32 s44, s44, 200000')
    p.e('L_z_spin:')
    p.e('s_memrealtime s[42:43]')
    p.e('s_waitcnt lgkmcnt(0)')
    p.e('s_sub_u32 s45, s42, s40')
    p.e('s_cmp_lt_u32 s45, s44')
    p.e('s_cbranch_scc1 L_z_spin')
    p.e('L_z_end:')
    p.e('s_endpgm')
    p.add_trace([(t0, p.pos())])


def build(o):
    p = Prog()
    gen(p, o)
    if o.z:
        gen_z(p, o)
        ll = f'; @launch kernel={KN} grid=(256,1,1) block=(512,1,1) lds=163840\n; @launch kernel=z_kernel grid=(256,1,1) block=(64,1,1) lds=0\n'
    else:
        ll = '; @launch grid=(256,1,1) block=(512,1,1) lds=163840\n'
    txt = HEADER + ll + '.amdgcn_target "amdgcn-amd-amdhsa--gfx950"\n.text\n'
    txt += p.text()
    txt += '.section .rodata,"a"\n' + kd(KN)
    if o.z:
        txt += kd('z_kernel', 8, 48)
    return txt

if __name__ == '__main__':
    o = Opt()
    out = sys.argv[1]
    for a in sys.argv[2:]:
        k, val = a.split('=', 1)
        setattr(o, k, eval(val))
    open(out, 'w').write(build(o))
    from chk import check
    check(out)
```

```python
import re

REG_RE = re.compile(r'\b([vsa])(?:(\d+)|\[(\d+):(\d+)\])')


def regs_of(tok):
    out = set()
    tok = tok.strip()
    for m in REG_RE.finditer(tok):
        k = m.group(1)
        if m.group(2) is not None:
            out.add((k, int(m.group(2))))
        else:
            for i in range(int(m.group(3)), int(m.group(4)) + 1):
                out.add((k, i))
    if re.search(r'\bvcc\b', tok):
        out.add(('s', 'vcc'))
    if re.search(r'\bm0\b', tok):
        out.add(('s', 'm0'))
    if re.search(r'\bexec\b', tok):
        out.add(('s', 'exec'))
    return out


TRANS = ('v_exp_f32', 'v_log_f32', 'v_rcp_f32', 'v_rsq_f32', 'v_sqrt_f32', 'v_sin_f32', 'v_cos_f32')


class Ins:
    def __init__(self, text):
        self.text = text
        t = text.split(';')[0].strip()
        self.is_label = t.endswith(':')
        self.is_dir = t.startswith('.')
        self.op = t.split()[0] if t else ''
        rest = t[len(self.op):].strip()
        ops = [o.strip() for o in re.split(r',\s*(?![^\[]*\])', rest)] if rest else []
        self.ops = ops
        self.nop_before = 0
        self.lgkm_before = None
        op = self.op
        self.kind = 'other'
        self.w = set()
        self.r = set()
        R = regs_of
        if self.is_label or self.is_dir or not op:
            self.kind = 'none'
        elif op.startswith('v_mfma'):
            self.kind = 'mfma'
            self.D = R(ops[0]); self.A = R(ops[1]); self.B = R(ops[2]); self.C = R(ops[3])
            self.w = set(self.D); self.r = self.A | self.B | self.C
            self.passes = 8 if '32x32x16' in op else 4
        elif op.startswith('v_'):
            self.kind = 'valu'
            self.trans = any(op.startswith(x) for x in TRANS)
            if op.startswith('v_permlane') and 'swap' in op:
                self.w = R(ops[0]) | R(ops[1]); self.r = set(self.w)
            elif op.startswith('v_cmp'):
                self.w = R(ops[0]); self.r = set().union(*[R(o) for o in ops[1:]])
            elif op.startswith(('v_add_co', 'v_addc_co', 'v_sub_co', 'v_subb_co')):
                self.w = R(ops[0]) | R(ops[1]); self.r = set().union(*[R(o) for o in ops[2:]])
            elif op == 'v_nop':
                pass
            else:
                self.w = R(ops[0]); self.r = set().union(*[R(o) for o in ops[1:]]) if len(ops) > 1 else set()
                if op.startswith(('v_fmac', 'v_pk_fmac', 'v_dot2c')):
                    self.r |= self.w
            self.dpp = ('row_' in t or 'quad_perm' in t or 'dpp' in op)
        elif op.startswith('ds_'):
            self.kind = 'ds'
            if op.startswith(('ds_read', 'ds_bpermute', 'ds_permute', 'ds_swizzle')):
                self.w = R(ops[0]); self.r = set().union(*[R(o) for o in ops[1:]])
            else:
                self.r = set().union(*[R(o) for o in ops])
        elif op.startswith(('buffer_', 'global_')):
            self.kind = 'vmem'
            self.lds = bool(re.search(r'\blds\b', t)) or 'load_lds' in op
            allr = set().union(*[R(o) for o in ops]) if ops else set()
            if 'load' in op and not self.lds:
                self.w = R(ops[0]); self.r = set().union(*[R(o) for o in ops[1:]])
            elif 'atomic' in op and ('sc0' in t):
                self.w = R(ops[0]); self.r = allr
            else:
                self.r = allr
            if self.lds:
                self.r.add(('s', 'm0'))
            self.wide_store = ('store' in op and ('x4' in op or 'x3' in op))
            if self.wide_store:
                self.sdata = R(ops[0]) if op.startswith('buffer_') else R(ops[1])
        elif op == 's_nop':
            self.kind = 'nop'; self.n = int(ops[0], 0) + 1
        elif op == 's_waitcnt':
            self.kind = 'wait'
            m = re.search(r'lgkmcnt\((\d+)\)', t)
            self.lgkm = int(m.group(1)) if m else None
        elif op.startswith(('s_load', 's_buffer_load', 's_memtime', 's_memrealtime', 's_atomic')):
            self.kind = 'smem'
            self.w = R(ops[0]); self.r = set().union(*[R(o) for o in ops[1:]]) if len(ops) > 1 else set()
        elif op.startswith('s_'):
            self.kind = 'salu'
            if op.startswith(('s_cmp', 's_cbranch', 's_branch', 's_barrier', 's_endpgm', 's_setprio', 's_sleep', 's_bitcmp')):
                self.r = set().union(*[R(o) for o in ops]) if ops else set()
            else:
                self.w = R(ops[0]) if ops else set()
                self.r = set().union(*[R(o) for o in ops[1:]]) if len(ops) > 1 else set()
                if 'saveexec' in op:
                    self.w.add(('s', 'exec'))

    def states(self):
        if self.kind == 'none':
            return 0
        if self.kind == 'nop':
            return self.n
        return 1


def need_between(p, c):
    n = 0
    vw = {x for x in p.w if x[0] in 'va'}
    sw = {x for x in p.w if x[0] == 's'}
    if p.kind == 'valu':
        if c.kind == 'mfma' and vw & c.r:
            n = max(n, 2)
        if c.kind == 'valu':
            if p.trans and not c.trans and (vw & c.r):
                n = max(n, 1)
            if p.trans and c.trans and (vw & c.r):
                n = max(n, 1)
            if c.op.startswith('v_permlane') and (vw & c.r):
                n = max(n, 2)
            if c.op.startswith(('v_readfirstlane', 'v_readlane')) and (vw & c.r):
                n = max(n, 1)
            if c.dpp and (vw & c.r):
                n = max(n, 2)
            if sw & c.r:
                n = max(n, 4 if c.op.startswith(('v_readlane', 'v_writelane')) else 2)
            if ('s', 'exec') in sw:
                n = max(n, 5 if c.dpp else 4 if c.op.startswith(('v_read', 'v_permlane')) else 0)
        if c.kind == 'mfma' and ('s', 'exec') in sw:
            n = max(n, 4)
        if c.kind == 'vmem' and (sw & c.r):
            n = max(n, 5)
        if c.kind in ('salu', 'smem') and (sw & c.r):
            n = max(n, 4)
        if p.trans and c.kind in ('vmem', 'ds') and (vw & c.r):
            n = max(n, 1)
    if p.kind == 'mfma':
        big = {8: 12, 4: 8}[p.passes]
        if c.kind == 'mfma':
            if p.D & (c.A | c.B):
                n = max(n, big)
            if p.D & c.C:
                if p.D == c.C and p.passes == c.passes:
                    pass
                else:
                    n = max(n, big - 2)
            elif p.D & c.D:
                n = max(n, big)
        elif c.kind in ('valu', 'vmem', 'ds'):
            if p.D & (c.r | c.w):
                n = max(n, big)
            if c.kind == 'valu' and (p.C & c.w):
                n = max(n, {8: 7, 4: 3}[p.passes])
    if p.kind == 'salu':
        if ('s', 'm0') in p.w and c.kind == 'vmem' and c.lds:
            n = max(n, 1)
        if ('s', 'exec') in p.w and c.kind in ('valu',) and getattr(c, 'dpp', False):
            n = max(n, 1)
    if p.kind == 'vmem' and getattr(p, 'wide_store', False):
        if p.sdata & c.w:
            n = max(n, 2)
    return n


class Prog:
    def __init__(self):
        self.ins = []
        self.traces = []
        self.lg_hi = 12
        self.lg_lo = 8

    def e(self, text):
        for line in text.split('\n'):
            line = line.strip()
            if not line:
                continue
            self.ins.append(Ins(line))

    def pos(self):
        return len(self.ins)

    def add_trace(self, ranges):
        self.traces.append(ranges)

    def _trace_idx(self, ranges):
        out = []
        for a, b in ranges:
            out.extend(range(a, b))
        return out

    def fix_lgkm(self):
        changed = True
        while changed:
            changed = False
            for tr in self.traces:
                pend = []
                for i in self._trace_idx(tr):
                    c = self.ins[i]
                    if c.kind == 'none':
                        continue
                    if c.lgkm_before is not None:
                        pend = pend[len(pend) - c.lgkm_before:] if c.lgkm_before < len(pend) else pend
                        if c.lgkm_before == 0:
                            pend = []
                    if c.kind == 'wait':
                        if c.lgkm is not None:
                            if c.lgkm == 0:
                                pend = []
                            elif c.lgkm < len(pend):
                                pend = pend[len(pend) - c.lgkm:]
                        continue
                    touch = c.r | c.w
                    need = None
                    for k, (dst, smem) in enumerate(pend):
                        if dst & touch:
                            n = 0 if (smem or any(s for _, s in pend)) else len(pend) - 1 - k
                            need = n if need is None else min(need, n)
                    if need is not None:
                        if need > self.lg_hi:
                            need = self.lg_lo
                        if c.lgkm_before is None or need < c.lgkm_before:
                            c.lgkm_before = need
                            changed = True
                        pend = pend[len(pend) - need:] if need > 0 else []
                    if c.kind == 'ds':
                        pend.append((set(c.w), False))
                        if len(pend) > 15:
                            pass
                    elif c.kind == 'smem':
                        pend.append((set(c.w), True))

    def fix_hazards(self):
        W = 24
        changed = True
        while changed:
            changed = False
            for tr in self.traces:
                idx = [i for i in self._trace_idx(tr) if self.ins[i].kind != 'none']
                for n, i in enumerate(idx):
                    c = self.ins[i]
                    dist = c.nop_before + (1 if c.lgkm_before is not None else 0)
                    k = n - 1
                    while k >= 0 and dist < W:
                        p = self.ins[idx[k]]
                        req = need_between(p, c)
                        if req > dist:
                            c.nop_before += req - dist
                            dist = req
                            changed = True
                        dist += p.states() + p.nop_before + (1 if p.lgkm_before is not None else 0)
                        k -= 1

    def text(self):
        self.fix_lgkm()
        self.fix_hazards()
        out = []
        for c in self.ins:
            if c.lgkm_before is not None:
                out.append(f'    s_waitcnt lgkmcnt({c.lgkm_before})')
            n = c.nop_before
            while n > 0:
                k = min(n, 16)
                out.append(f'    s_nop {k - 1}')
                n -= k
            if c.is_label or c.is_dir:
                out.append(c.text)
            else:
                out.append('    ' + c.text)
        return '\n'.join(out) + '\n'


def v(a, n=1):
    return f'v{a}' if n == 1 else f'v[{a}:{a + n - 1}]'


def s(a, n=1):
    return f's{a}' if n == 1 else f's[{a}:{a + n - 1}]'
```

```python
OT = {'P5': ['pd3', 'td7'], 'P6': ['td8'], 'P7': ['pd4', 'td9'], 'P8': ['td10'], 'P9': ['pd5', 'td11'],
      'P10': ['td12'], 'P11': ['pd6', 'td13'], 'P12': ['td14'], 'P13': ['pd7', 'td15']}
KC = [{3: ['kd3', 'kp0'], 5: ['kp1', 'kp2'], 7: ['vp0', 'vp1']},
      {4: ['kd3', 'kp0'], 6: ['kp1', 'kp2'], 8: ['vp0', 'vp1']}]
E2 = dict({'B8': ['vp2', 'vp3', 'kf0'], 'B9': ['wd0', 'kf1', 'kf2'], 'B10': ['wd1', 'wd2', 'vf0', 'vf1'],
      'P0': ['pp', 'wd3', 'vf2'], 'P1': ['vf3', 'pf'], 'P2': ['td4'], 'P3': ['td5'], 'P4': ['po', 'td6', 'ck14', 'pd2']}, **OT)

OS = {'P5': ['pd3', 'td7'], 'P6': ['td8', 'xf0'], 'P7': ['pd4', 'td9'], 'P8': ['td10', 'xf1'], 'P9': ['pd5', 'td11'],
      'P10': ['td12', 'xf2'], 'P11': ['pd6', 'td13'], 'P12': ['xr', 'td14'], 'P13': ['pd7', 'td15'], 'P14': ['xo', 'xc']}
E2S = dict(E2, **OS)

K2 = [{3: ['kd3', 'kp0'], 5: ['kp1', 'kp2']}, {4: ['kd3', 'kp0'], 6: ['kp1', 'kp2']}]
K2b = [{4: ['kd3', 'kp0'], 7: ['kp1', 'kp2']}, {5: ['kd3', 'kp0'], 8: ['kp1', 'kp2']}]
K1 = [{4: ['kd3', 'kp0']}, {6: ['kd3', 'kp0']}]
EOT = {'P9': ['pd5', 'td11'], 'P10': ['td12'], 'P11': ['pd6', 'td13'], 'P12': ['td14'], 'P13': ['pd7', 'td15']}
EO1 = dict({'B8': ['vp0', 'vp1', 'kf0'], 'B9': ['wd0', 'kf1', 'kf2'], 'B10': ['wd1', 'vf0', 'vf1'],
       'P0': ['pp', 'td2'], 'P1': ['pf', 'td3'], 'P2': ['po', 'td4', 'ck2', 'pd1'], 'P3': ['td5', 'vp8', 'vp9'], 'P4': ['po', 'td6', 'ck12', 'pd2'],
       'P5': ['pd3', 'td7', 'wd8'], 'P6': ['wd9', 'vf8'], 'P7': ['pd4', 'vf9'], 'P8': ['td10']}, **EOT)
EO2 = dict({'B8': ['kd1', 'kd2', 'kf0'], 'B9': ['td0'], 'B10': ['td1'],
       'P0': ['pp', 'td2'], 'P1': ['pf', 'td3'], 'P2': ['po', 'td4', 'ck2', 'pd1'], 'P3': ['td5', 'vp8', 'vp9'], 'P4': ['po', 'td6', 'ck12', 'pd2'],
       'P5': ['pd3', 'td7', 'wd8'], 'P6': ['wd9', 'vf8'], 'P7': ['pd4', 'vf9'], 'P8': ['td10']}, **EOT)
EO3 = dict({'B8': ['vp0', 'vp1', 'kf0'], 'B9': ['wd0', 'kf1', 'kf2'], 'B10': ['wd1', 'vf0', 'vf1', 'vp8', 'vp9'],
       'P0': ['pp', 'td2'], 'P1': ['pf', 'td3'], 'P2': ['td4'], 'P3': ['po', 'ck2', 'pd1', 'td5'], 'P4': ['po', 'td6', 'ck12', 'pd2'],
       'P5': ['pd3', 'td7', 'wd8'], 'P6': ['wd9', 'vf8'], 'P7': ['pd4', 'vf9'], 'P8': ['td10']}, **EOT)
E3T = {'P9': ['pd5', 'td12'], 'P10': ['td13'], 'P11': ['pd6', 'td14'], 'P12': ['td15'], 'P13': ['pd7']}
EO4 = dict({'B8': ['vp0', 'vp1', 'kf0'], 'B9': ['wd0', 'kf1', 'kf2'], 'B10': ['wd1', 'vf0', 'vf1', 'wd2'],
       'P0': ['pp', 'vd2', 'pf'], 'P1': ['td3'], 'P2': ['td4', 'po', 'td5'], 'P3': ['ck2', 'pd1', 'po', 'td6'], 'P4': ['ck12', 'pd2', 'td7', 'vp8'],
       'P5': ['pd3', 'wd8'], 'P6': ['td9', 'vf8'], 'P7': ['pd4', 'td10'], 'P8': ['td11']}, **E3T)
EO5 = dict({'B8': ['vp0', 'vp1', 'kf0'], 'B9': ['wd0', 'kf1', 'kf2'], 'B10': ['wd1', 'vf0', 'vf1', 'vp8', 'vp9'],
       'P0': ['pp', 'td2', 'pf'], 'P1': ['td3'], 'P2': ['td4', 'po', 'td5'], 'P3': ['ck2', 'pd1', 'po', 'td6'], 'P4': ['ck12', 'pd2', 'td7'],
       'P5': ['pd3', 'wd8', 'vf8'], 'P6': ['wd9', 'vf9'], 'P7': ['pd4', 'td10'], 'P8': ['td11']}, **E3T)
EO6 = dict({'B8': ['vp0', 'vp1', 'kf0'], 'B9': ['wd0', 'kf1', 'kf2'], 'B10': ['wd1', 'vf0', 'vf1', 'vp8'],
       'P0': ['pp', 'td2', 'pf'], 'P1': ['td3'], 'P2': ['td4', 'po'], 'P3': ['ck2', 'pd1', 'po', 'td5'], 'P4': ['ck12', 'pd2', 'td6', 'td7'],
       'P5': ['pd3', 'wd8', 'vf8'], 'P6': ['td9'], 'P7': ['pd4', 'td10'], 'P8': ['td11']}, **E3T)
K3 = [{3: ['kd3', 'kp0'], 6: ['kp1', 'kp2']}, {4: ['kd3', 'kp0'], 7: ['kp1', 'kp2']}]
```

```python
import sys, math, struct
from asmlib import Prog, v, s
from plans6 import *

NAME = 'concat_heads__gqa_block_cached__gqa_block_cached__near_ridge'
KN = NAME + '_kernel'
M16 = 'v_mfma_f32_16x16x32_bf16'


def f32hex(x):
    return '0x%08x' % struct.unpack('<I', struct.pack('<f', x))[0]


class Opt:
    stamps = False
    grp = 4
    ksched = KC
    plan = E2
    nt_k = True
    codepf = 3
    codepf_mask = 3
    bB = 47
    bO = 27
    bE = 67
    lg = (9, 7)
    hack_skip1 = None
    order = 'own'
    sent = False
    xsleep = 0
    z = None


WS_XB = 4 << 20
WS_FL = 16 << 20
FL_XF = 32768
FL_EP = 65536
FL_SIZE = 65536 + 2048
WS_STAMP = 64 << 20
X_BYTES = 1024 * 640 * 2
KV_BYTES = 32 * 32 * 32 * 128 * 2
W_BYTES = 640 * 4096 * 2
OUT_BYTES = 1024 * 1280 * 2

HEADER = open('cdna_kernels/%s.s.ref' % NAME).read().split('; Override launch')[0]

S_X, S_K, S_V, S_WQ, S_WO = 8, 10, 12, 14, 16
S_OUT, S_WS = 32, 36
SRD_X, SRD_WQ, SRD_K, SRD_V, SRD_WO, SRD_P, SRD_XB, SRD_OUT, SRD_FL = 40, 44, 48, 52, 56, 60, 64, 68, 72
S_BR, S_XQ, S_BG, S_HP, S_CT, S_WV, S_T, S_T2 = 18, 19, 20, 21, 22, 23, 24, 25
S_EP, S_TAG = 26, 27
S_CNT, S_DELTA, S_POS, S_STEP = 28, 29, 30, 31
S_C = 34


def srd(p, d, base, off_s, size_total):
    p.e(f's_add_u32 {s(d)}, {s(base)}, {s(off_s)}')
    p.e(f's_addc_u32 {s(d+1)}, {s(base+1)}, 0')
    p.e(f's_sub_u32 {s(d+2)}, {size_total}, {s(off_s)}')
    p.e(f's_mov_b32 {s(d+3)}, 0x20000')


class Stamper:
    def __init__(self, p, o):
        self.p, self.o = p, o

    def start(self):
        if not self.o.stamps: return
        self.p.e('s_memrealtime s[92:93]')
        self.p.e('s_memtime s[94:95]')
        self.p.e('s_mov_b32 s90, 3')

    def dyn(self, vr, real=False):
        if not self.o.stamps: return
        p = self.p
        p.e('s_memrealtime s[88:89]' if real else 's_memtime s[88:89]')
        p.e('s_mov_b32 s91, m0')
        p.e('s_mov_b32 m0, s90')
        p.e('s_waitcnt lgkmcnt(0)')
        p.e(f'v_writelane_b32 v{vr}, s88, m0')
        p.e('s_add_u32 s90, s90, 1')
        p.e('s_mov_b32 m0, s91')

    def flush(self, vr, vtmp):
        if not self.o.stamps: return
        p = self.p
        p.e('s_memtime s[88:89]')
        p.e('s_memrealtime s[96:97]')
        p.e('s_mov_b32 m0, s90')
        p.e('s_waitcnt vmcnt(0) lgkmcnt(0)')
        p.e(f'v_writelane_b32 v{vr}, s88, m0')
        p.e(f'v_writelane_b32 v{vr}, s92, 0')
        p.e(f'v_writelane_b32 v{vr}, s96, 1')
        p.e(f'v_writelane_b32 v{vr}, s94, 2')
        p.e(f'v_writelane_b32 v{vr}, s90, 63')
        p.e('s_getreg_b32 s88, hwreg(HW_REG_XCC_ID)')
        p.e(f'v_writelane_b32 v{vr}, s88, 62')
        p.e('s_lshl_b32 s88, s2, 3')
        p.e(f's_add_u32 s88, s88, {s(S_WV)}')
        p.e('s_lshl_b32 s88, s88, 8')
        p.e(f's_add_u32 s88, s88, {WS_STAMP}')
        p.e(f's_add_u32 s92, {s(S_WS)}, s88')
        p.e(f's_addc_u32 s93, {s(S_WS+1)}, 0')
        p.e('s_mov_b32 s94, 256')
        p.e('s_mov_b32 s95, 0x20000')
        p.e(f'v_mbcnt_lo_u32_b32 v{vtmp}, -1, 0')
        p.e(f'v_mbcnt_hi_u32_b32 v{vtmp}, -1, v{vtmp}')
        p.e(f'v_lshlrev_b32 v{vtmp}, 2, v{vtmp}')
        p.e(f'buffer_store_dword v{vr}, v{vtmp}, s[92:95], 0 offen')


class Gaps:
    def __init__(self, n, cap=2):
        self.n = n
        self.g = [[] for _ in range(n)]
        self.cap = cap

    def room(self, g, ds):
        cur = self.g[g]
        if len(cur) >= self.cap: return False
        if ds and any(x.startswith('ds_') for x in cur): return False
        return True

    def fix(self, g, items):
        self.g[g] += items

    def place(self, items, start=0, step=1):
        g = start
        for (t, lo, hi) in items:
            g = max(g, lo)
            ds = t.startswith('ds_')
            while g < self.n and not self.room(g, ds):
                g += 1
            assert g < self.n and g <= hi, (t, lo, hi, g)
            self.g[g].append(t)
            g += step
        return g


def gen(p, o):
    st = Stamper(p, o)
    p.e(f'.globl {KN}\n.p2align 8\n.type {KN},@function\n{KN}:')
    t0 = p.pos()
    SLOT = 49152
    KB = 98304
    STG = 36864; VOFF = 20480; PBUF = 4 * STG
    p.e('s_cmp_ge_u32 s2, 256')
    p.e('s_cbranch_scc1 L_end')
    p.e(f's_bfe_u32 {s(S_BR)}, s2, 0x10002')
    p.e(f's_mul_i32 s3, {s(S_BR)}, 40')
    p.e('s_load_dwordx8 s[8:15], s[0:1], s3')
    p.e('s_add_u32 s3, s3, 32')
    p.e('s_load_dwordx2 s[16:17], s[0:1], s3')
    p.e('s_load_dwordx2 s[32:33], s[0:1], 80')
    p.e('s_load_dwordx2 s[36:37], s[0:1], 96')
    st.start()
    p.e('v_lshrrev_b32 v1, 6, v0')
    p.e('v_and_b32 v2, 63, v0')
    p.e(f'v_readfirstlane_b32 {s(S_WV)}, v1')
    p.e(f's_and_b32 {s(S_XQ)}, s2, 3')
    p.e(f's_lshr_b32 {s(S_BG)}, s2, 5')
    p.e(f's_bfe_u32 {s(S_HP)}, s2, 0x20003')
    p.e(f's_add_u32 {s(S_CT)}, {s(S_HP)}, {s(S_BG)}')
    p.e(f's_and_b32 {s(S_CT)}, {s(S_CT)}, 3')
    p.e(f's_cmp_lt_u32 {s(S_WV)}, 4')
    p.e('s_cbranch_scc1 L_compute')
    t1 = p.pos()

    def srds_loader():
        p.e(f's_lshl_b32 s76, {s(S_BG)}, 7')
        p.e(f's_lshl_b32 {s(S_T)}, {s(S_XQ)}, 3')
        p.e(f's_add_u32 s76, s76, {s(S_T)}')
        p.e(f's_lshl_b32 {s(S_T)}, s76, 13')
        srd(p, SRD_V, S_V, S_T, KV_BYTES)
        p.e(f's_lshl_b32 {s(S_T2)}, {s(S_HP)}, 14')
        p.e(f's_add_u32 {s(S_T)}, {s(S_T)}, {s(S_T2)}')
        srd(p, SRD_K, S_K, S_T, KV_BYTES)
        p.e(f's_mul_i32 {s(S_T)}, {s(S_XQ)}, {1024 * 1280}')
        p.e(f's_mul_i32 {s(S_T2)}, {s(S_CT)}, 320')
        p.e(f's_add_u32 {s(S_T)}, {s(S_T)}, {s(S_T2)}')
        srd(p, SRD_WO, S_WO, S_T, W_BYTES)
        p.e(f's_lshl_b32 {s(S_T)}, {s(S_BR)}, 10')
        p.e(f's_add_u32 {s(S_T)}, {s(S_T)}, s76')
        p.e(f's_lshl_b32 {s(S_T)}, {s(S_T)}, 11')
        srd(p, SRD_P, S_WS, S_T, 4 << 20)

    def srds_common():
        p.e(f's_and_b32 {s(S_T)}, s2, 0xfc')
        p.e(f's_mul_i32 {s(S_T)}, {s(S_T)}, 40960')
        p.e(f's_add_u32 {s(S_T)}, {s(S_T)}, {WS_XB}')
        srd(p, SRD_XB, S_WS, S_T, WS_XB + 256 * 40960)
        p.e(f's_mov_b32 {s(S_T)}, {WS_FL}')
        srd(p, SRD_FL, S_WS, S_T, WS_FL + FL_SIZE)
        p.e(f's_lshr_b32 {s(S_T)}, {s(S_XQ)}, 1')
        p.e(f's_lshl_b32 {s(S_T2)}, {s(S_BG)}, 1')
        p.e(f's_add_u32 {s(S_T)}, {s(S_T)}, {s(S_T2)}')
        p.e(f's_mul_i32 {s(S_T)}, {s(S_T)}, {64 * 2560}')
        p.e(f's_lshl_b32 {s(S_T2)}, {s(S_BR)}, 2')
        p.e(f's_add_u32 {s(S_T2)}, {s(S_T2)}, {s(S_CT)}')
        p.e(f's_lshl_b32 {s(S_T2)}, {s(S_T2)}, 1')
        p.e(f's_and_b32 s76, {s(S_XQ)}, 1')
        p.e(f's_add_u32 {s(S_T2)}, {s(S_T2)}, s76')
        p.e(f's_mul_i32 {s(S_T2)}, {s(S_T2)}, 160')
        p.e(f's_add_u32 {s(S_T)}, {s(S_T)}, {s(S_T2)}')
        srd(p, SRD_OUT, S_OUT, S_T, OUT_BYTES)
        p.e(f's_lshl_b32 {s(S_T)}, {s(S_BR)}, 3')
        p.e(f's_add_u32 {s(S_T)}, {s(S_T)}, {s(S_BG)}')
        p.e(f's_lshl_b32 {s(S_T)}, {s(S_T)}, 7')
        p.e(f's_add_u32 {s(S_EP)}, {s(S_T)}, {FL_EP}')
        p.e(f's_load_dword {s(S_TAG)}, {s(SRD_FL, 2)}, {s(S_EP)}')

    def make_tag():
        p.e('s_waitcnt lgkmcnt(0)')
        p.e(f's_mul_i32 {s(S_TAG)}, {s(S_TAG)}, 0x9E3779B1')
        p.e(f's_add_u32 {s(S_TAG)}, {s(S_TAG)}, 0x7F4A7C15')

    def spin(label, vdst, vaddr, soff, mask_s, first_issued=False):
        p.e('s_mov_b32 s86, 0')
        if first_issued:
            p.e(f's_branch {label}_chk')
        p.e(f'{label}:')
        p.e(f'buffer_load_dword {v(vdst)}, {v(vaddr)}, {s(SRD_FL, 4)}, {s(soff)} offen sc1')
        p.e('s_waitcnt vmcnt(0)')
        p.e(f'{label}_chk:')
        p.e(f'v_cmp_eq_u32 vcc, {s(S_TAG)}, {v(vdst)}')
        p.e('s_add_u32 s86, s86, 1')
        p.e(f's_or_b64 vcc, vcc, {s(mask_s, 2)}')
        p.e('s_cmp_eq_u64 vcc, -1')
        p.e(f's_cbranch_scc1 {label}_ok')
        p.e('s_cmp_lt_u32 s86, 200000')
        p.e(f's_cbranch_scc1 {label}')
        p.e(f'{label}_ok:')

    def reduce_setup(tmp, vlane16, vout, n_s):
        p.e('s_lshl_b32 s80, s2, 7')
        p.e(f's_add_u32 s80, s80, {FL_XF}')
        p.e('s_mov_b32 s82, 0x11111111')
        p.e(f's_lshl_b32 s82, s82, {s(S_XQ)}')
        p.e('s_mov_b32 s83, s82')
        p.e(f's_mul_i32 s81, {s(S_XQ)}, 40960')
        p.e(f's_lshl_b32 s84, {s(n_s)}, 11')
        p.e('s_add_u32 s81, s81, s84')
        p.e(f's_lshl_b32 s79, {s(n_s)}, 5')
        p.e(f's_add_u32 s85, s79, {32 * 2560}')
        for d in range(3):
            p.e(f's_xor_b32 s84, {s(S_XQ)}, {d + 1}')
            p.e('s_mul_i32 s84, s84, 10240')
            p.e(f's_add_u32 {s(76 + d)}, s81, s84')
        p.e(f'v_bfe_u32 {v(tmp)}, {v(vlane16)}, 4, 5')
        p.e(f'v_mul_u32_u24 {v(vout)}, 2560, {v(tmp)}')
        p.e(f'v_lshrrev_b32 {v(tmp)}, 9, {v(vlane16)}')
        p.e(f'v_lshl_add_u32 {v(vout)}, {v(tmp)}, 4, {v(vout)}')
        p.e(f'v_lshrrev_b32 {v(tmp)}, 2, {v(vlane16)}')
        p.e(f'v_and_b32 {v(tmp)}, 12, {v(tmp)}')

    def reduce_run(acc, ld, tmp, vlane16, vout, label, sv=None):
        def loads(d):
            for h in range(2):
                p.e(f'buffer_load_dwordx4 {v(ld + d * 8 + h * 4, 4)}, {v(vlane16)}, {s(SRD_XB, 4)}, {s(76 + d)} offen offset:{h * 1024} sc1')
        if not o.sent:
            spin(label, tmp + 1, tmp, 80, 82)
            if sv is not None: st.dyn(sv)
        for d in range(3):
            loads(d)
        p.e('s_mov_b32 s86, 0')
        for d in range(3):
            p.e(f's_waitcnt vmcnt({4 - 2 * d})')
            if o.sent:
                b = ld + d * 8
                p.e(f's_branch {label}_c{d}')
                p.e(f'{label}_r{d}:')
                if o.xsleep: p.e(f's_sleep {o.xsleep}')
                for dd in range(d, 3):
                    loads(dd)
                p.e(f's_waitcnt vmcnt({4 - 2 * d})')
                p.e(f'{label}_c{d}:')
                p.e(f'v_max3_u32 {v(tmp)}, {v(b)}, {v(b + 1)}, {v(b + 2)}')
                p.e(f'v_max3_u32 {v(tmp + 1)}, {v(b + 3)}, {v(b + 4)}, {v(b + 5)}')
                p.e(f'v_max3_u32 {v(tmp)}, {v(tmp)}, {v(b + 6)}, {v(b + 7)}')
                p.e(f'v_max_u32 {v(tmp)}, {v(tmp)}, {v(tmp + 1)}')
                p.e(f'v_cmp_eq_u32 vcc, -1, {v(tmp)}')
                p.e('s_add_u32 s86, s86, 1')
                p.e('s_cmp_eq_u64 vcc, 0')
                p.e(f's_cbranch_scc1 {label}_k{d}')
                p.e('s_cmp_lt_u32 s86, 30000')
                p.e(f's_cbranch_scc1 {label}_r{d}')
                p.e(f'{label}_k{d}:')
                if d == 2 and sv is not None: st.dyn(sv)
            for r in range(8):
                t_ = tmp + 2 + 2 * (r & 1)
                p.e(f'v_lshlrev_b32 {v(t_)}, 16, {v(ld + d * 8 + r)}')
                p.e(f'v_and_b32 {v(t_ + 1)}, 0xffff0000, {v(ld + d * 8 + r)}')
                p.e(f'v_pk_add_f32 {v(acc + 2 * r, 2)}, {v(acc + 2 * r, 2)}, {v(t_, 2)}')
        for r in range(8):
            p.e(f'v_cvt_pk_bf16_f32 {v(acc + r)}, {v(acc + 2 * r)}, {v(acc + 2 * r + 1)}')
        for h in range(2):
            p.e(f'v_permlane16_swap_b32 {v(acc + 4 * h)}, {v(acc + 4 * h + 2)}')
            p.e(f'v_permlane16_swap_b32 {v(acc + 4 * h + 1)}, {v(acc + 4 * h + 3)}')
        if sv is not None: st.dyn(sv)
        p.e(f'buffer_store_dwordx4 {v(acc, 4)}, {v(vout)}, {s(SRD_OUT, 4)}, s79 offen')
        p.e(f'buffer_store_dwordx4 {v(acc + 4, 4)}, {v(vout)}, {s(SRD_OUT, 4)}, s85 offen')
        if sv is not None and o.stamps:
            p.e('s_waitcnt vmcnt(0)')

    l0 = p.pos()
    XO = 10; WQO = 14; KO = 22; WO = 26; VO = 32; PO = 36; TO = 37; LN16 = 38; FA = 39; VOUT = 40; PR = 44; SV = 200
    KP = 64; VP = 128
    S_LW, S_SLOT, S_SX, S_SW, S_LX, S_LWQ = 39, 77, 78, 79, 80, 81
    S_LWO, S_LV, S_PL, S_TV, S_PF, S_KG, S_KL = 4, 5, 6, 7, 87, 84, 85
    p.e(f's_sub_u32 {s(S_LW)}, {s(S_WV)}, 4')
    p.e('v_lshrrev_b32 v3, 3, v2')
    p.e(f's_lshl_b32 {s(S_T)}, {s(S_LW)}, 5')
    p.e(f'v_add_u32 v3, {s(S_T)}, v3')
    p.e('v_mul_u32_u24 v3, 1280, v3')
    p.e('v_and_b32 v4, 7, v2')
    p.e('v_lshrrev_b32 v5, 4, v2')
    p.e('v_xor_b32 v4, v4, v5')
    p.e('v_lshl_add_u32 v6, v4, 4, v3')
    p.e('v_xor_b32 v7, 64, v6')
    for j in range(4):
        p.e(f'v_add_u32 {v(XO + j)}, {j * (8 * 1280 - 1024)}, {"v7" if j & 1 else "v6"}')
    p.e('v_lshrrev_b32 v3, 5, v2')
    p.e('v_and_b32 v4, 31, v2')
    p.e('v_lshlrev_b32 v5, 1, v3')
    p.e('v_xor_b32 v4, v4, v5')
    p.e(f's_lshl_b32 {s(S_T)}, {s(S_LW)}, 4')
    p.e(f'v_add_u32 v3, {s(S_T)}, v3')
    p.e('v_lshlrev_b32 v3, 13, v3')
    p.e('v_lshl_add_u32 v6, v4, 4, v3')
    for j in range(8):
        x = (((j & 1) << 1) | ((j >> 2) << 2)) << 5
        if x:
            p.e(f'v_xor_b32 v7, {x}, v6')
        p.e(f'v_add_u32 {v(WQO + j)}, {j * 16384 - 1024 * (j & 3)}, {"v7" if x else "v6"}')
    p.e(f's_lshl_b32 {s(S_LX)}, {s(S_LW)}, 12')
    p.e(f's_lshl_b32 {s(S_LWQ)}, {s(S_LW)}, 13')
    p.e(f's_add_u32 {s(S_LWQ)}, {s(S_LWQ)}, 16384')
    if o.grp == 2:
        p.e(f's_and_b32 {s(S_T)}, {s(S_CT)}, 1')
        p.e(f's_mul_i32 {s(S_SX)}, {s(S_T)}, {5 * 128}')
    elif o.grp == 4:
        p.e(f's_mul_i32 {s(S_T)}, {s(S_CT)}, 5')
        p.e(f's_lshr_b32 {s(S_T)}, {s(S_T)}, 1')
        p.e(f's_lshl_b32 {s(S_SX)}, {s(S_T)}, 7')
    else:
        p.e(f's_mov_b32 {s(S_SX)}, 0')
    p.e(f's_mul_i32 {s(S_T)}, {s(S_BG)}, {128 * 1280}')
    p.e(f's_lshl_b32 {s(S_T2)}, {s(S_XQ)}, 2')
    p.e(f's_add_u32 {s(S_T2)}, {s(S_T2)}, {s(S_HP)}')
    p.e(f's_lshl_b32 {s(S_T2)}, {s(S_T2)}, 9')
    p.e('s_waitcnt lgkmcnt(0)')
    srd(p, SRD_WQ, S_WQ, S_T2, W_BYTES)
    srd(p, SRD_X, S_X, S_T, X_BYTES)

    class VM:
        def __init__(self): self.q = []
        def add(self, tag, n=1): self.q += [tag] * n
        def wait(self, *tags):
            last = -1
            for i, x in enumerate(self.q):
                if x in tags: last = i
            if last < 0: return
            n = len(self.q) - 1 - last
            assert n < 64
            p.e(f's_waitcnt vmcnt({n})')
            self.q = self.q[len(self.q) - n:] if n else []
    vm = VM()

    def issue1(t):
        slot = ((t + 1) % 3) * SLOT
        p.e(f's_lshl_b32 {s(S_SW)}, {s(S_SX)}, 12')
        p.e(f's_add_u32 m0, {s(S_LWQ)}, {slot}')
        for j in range(4):
            p.e(f'buffer_load_dwordx4 {v(WQO + j)}, {s(SRD_WQ, 4)}, {s(S_SW)} offen offset:{1024 * j} lds')
        p.e('s_add_u32 m0, m0, 4096')
        for j in range(4):
            p.e(f'buffer_load_dwordx4 {v(WQO + 4 + j)}, {s(SRD_WQ, 4)}, {s(S_SW)} offen offset:{1024 * j} lds')
        p.e(f's_add_u32 m0, {s(S_LX)}, {slot}')
        for j in range(4):
            p.e(f'buffer_load_dwordx4 {v(XO + j)}, {s(SRD_X, 4)}, {s(S_SX)} offen offset:{1024 * j} lds')
        if t < 9:
            p.e(f's_add_u32 {s(S_SX)}, {s(S_SX)}, 128')
            p.e(f's_cmp_eq_u32 {s(S_SX)}, 1280')
            p.e(f's_cselect_b32 {s(S_SX)}, 0, {s(S_SX)}')
        vm.add(f'S{t}', 12)

    def bar(*tags):
        vm.wait(*tags)
        st.dyn(SV)
        p.e('s_barrier')

    def setup():
        srds_loader()
        srds_common()
        p.e(f's_and_b32 s82, {s(S_LW)}, 1')
        p.e(f's_lshr_b32 s83, {s(S_LW)}, 1')
        p.e(f's_lshl_b32 {s(S_KG)}, s83, 6')
        p.e(f's_add_u32 {s(S_KG)}, {s(S_KG)}, s82')
        p.e(f's_lshl_b32 {s(S_KG)}, {s(S_KG)}, 13')
        p.e('s_lshl_b32 s82, s82, 1')
        p.e('s_add_u32 s82, s82, s83')
        p.e('s_lshl_b32 s82, s82, 12')
        p.e(f's_add_u32 {s(S_KL)}, s82, {KB}')
        p.e('v_lshrrev_b32 v3, 4, v2')
        p.e('v_and_b32 v4, 15, v2')
        p.e('v_xor_b32 v4, v3, v4')
        p.e('v_lshlrev_b32 v4, 4, v4')
        p.e(f'v_lshl_add_u32 {v(KO)}, v3, 8, v4')
        for jj in range(1, 4):
            p.e(f'v_xor_b32 {v(KO + jj)}, {64 * jj}, {v(KO)}')
        p.e(f'v_lshlrev_b32 {v(LN16)}, 4, v2')
        p.e(f's_mul_i32 {s(S_T)}, {s(S_LW)}, 20480')
        p.e(f's_mov_b32 {s(S_T2)}, 52429')
        for j in range(5):
            p.e(f'v_add_u32 v3, {64 * j}, v2')
            p.e(f'v_mul_u32_u24 v4, {s(S_T2)}, v3')
            p.e('v_lshrrev_b32 v4, 20, v4')
            p.e('v_and_b32 v5, 8, v4')
            p.e('v_lshrrev_b32 v5, 2, v5')
            p.e('v_xor_b32 v3, v3, v5')
            p.e('v_mul_u32_u24 v4, 960, v4')
            p.e('v_lshl_add_u32 v4, v3, 4, v4')
            p.e(f'v_add_u32 v4, {s(S_T)}, v4')
            p.e(f'v_subrev_u32 {v(WO + j)}, {1024 * (j & 3)}, v4')
        p.e('v_lshrrev_b32 v3, 3, v2')
        p.e('v_lshlrev_b32 v3, 8, v3')
        p.e(f's_lshl_b32 {s(S_T)}, {s(S_LW)}, 18')
        p.e(f'v_add_u32 v3, {s(S_T)}, v3')
        p.e('v_and_b32 v4, 7, v2')
        p.e('v_lshrrev_b32 v5, 4, v2')
        p.e('v_xor_b32 v4, v4, v5')
        p.e('v_lshl_add_u32 v6, v4, 4, v3')
        p.e('v_xor_b32 v7, 64, v6')
        for j in range(4):
            p.e(f'v_add_u32 {v(VO + j)}, {1024 * j}, {"v7" if j & 1 else "v6"}')
        p.e(f's_lshl_b32 {s(S_T)}, {s(S_LW)}, 16')
        p.e(f'v_add_u32 {v(PO)}, {s(S_T)}, {v(LN16)}')
        p.e(f'v_and_b32 {v(FA)}, 3, v2')
        p.e(f'v_lshlrev_b32 {v(FA)}, 2, {v(FA)}')
        p.e(f's_mul_i32 {s(S_LWO)}, {s(S_LW)}, 5120')
        p.e(f's_lshl_b32 {s(S_LV)}, {s(S_LW)}, 12')
        p.e(f's_add_u32 {s(S_LV)}, {s(S_LV)}, {VOFF}')
        p.e(f's_lshl_b32 {s(S_PL)}, {s(S_LW)}, 11')
        p.e(f's_add_u32 {s(S_PL)}, {s(S_PL)}, {PBUF}')
        p.e(f's_lshl_b32 {s(S_TV)}, {s(S_HP)}, 1')
        p.e(f's_lshl_b32 {s(S_T)}, {s(S_BG)}, 3')
        p.e(f's_and_b32 {s(S_T2)}, s2, 7')
        p.e(f's_add_u32 {s(S_T)}, {s(S_T)}, {s(S_T2)}')
        p.e(f's_lshl_b32 {s(S_T)}, {s(S_T)}, 2')
        p.e(f's_add_u32 {s(S_T)}, {s(S_T)}, {s(S_LW)}')
        p.e(f's_lshl_b32 {s(S_PF)}, {s(S_T)}, 7')
        p.e(f'v_add_u32 {v(TO)}, {s(S_LV)}, {v(LN16)}')

    def headsel(i):
        if o.order == 'own':
            p.e(f's_add_u32 {s(S_T)}, {s(S_TV)}, {i}')
        else:
            p.e(f's_add_u32 {s(S_T)}, {s(S_TV)}, {2 * (i & 3) + (i >> 2)}')
        p.e(f's_and_b32 {s(S_T)}, {s(S_T)}, 7')

    def producer(i):
        return (i >> 1) if o.order == 'own' else (i & 3)
    NOWN = 2 if o.order == 'own' else 1
    vslot = {}

    def vsoff(T):
        headsel(T >> 1)
        p.e(f's_lshl_b32 {s(S_T)}, {s(S_T)}, 13')
        if T & 1:
            p.e(f's_add_u32 {s(S_T)}, {s(S_T)}, 128')

    nt_k = ' nt' if o.nt_k else ''
    done = set()
    nspin = [0]
    checked = [1]
    ldsw = [False]

    def act(x):
        k, n = x[:2], (int(x[2:]) if len(x) > 2 else None)
        done.add(x)
        if k == 'kp':
            p.e(f's_add_u32 {s(S_T)}, {s(S_KG)}, {(n >> 1) * 32 * 8192 + (n & 1) * 4096}')
            for jj in range(4):
                p.e(f'buffer_load_dwordx4 {v(KP + 16 * n + 4 * jj, 4)}, {v(KO + jj)}, {s(SRD_K, 4)}, {s(S_T)} offen offset:{1024 * jj}{nt_k}')
            vm.add(f'K{n}', 4)
        elif k == 'kf':
            vm.wait(f'K{n}')
            p.e(f'v_add_u32 v3, {s(S_KL)}, {v(LN16)}')
            for jj in range(4):
                p.e(f'ds_write_b128 v3, {v(KP + 16 * n + 4 * jj, 4)} offset:{n * 16384 + jj * 1024}')
        elif k == 'kd':
            p.e(f's_add_u32 {s(S_T)}, {s(S_KG)}, {(n >> 1) * 32 * 8192 + (n & 1) * 4096}')
            p.e(f's_add_u32 m0, {s(S_KL)}, {n * 16384}')
            for jj in range(4):
                p.e(f'buffer_load_dwordx4 {v(KO + jj)}, {s(SRD_K, 4)}, {s(S_T)} offen offset:{1024 * jj}{nt_k} lds')
            vm.add('KD', 4)
            done.add(f'kf{n}')
        elif k == 'vp':
            vsoff(n)
            for j in range(4):
                p.e(f'buffer_load_dwordx4 {v(VP + 16 * (n & 3) + 64 * 0 + 4 * j, 4)}, {v(VO + j)}, {s(SRD_V, 4)}, {s(S_T)} offen offset:{1024 * j}')
            vm.add(f'V{n}', 4)
        elif k == 'vf':
            vm.wait(f'V{n}')
            if n & 3:
                p.e(f'v_add_u32 v3, {(n & 3) * STG}, {v(TO)}')
            for j in range(4):
                p.e(f'ds_write_b128 {"v3" if n & 3 else v(TO)}, {v(VP + 16 * (n & 3) + 4 * j, 4)} offset:{1024 * j}')
            ldsw[0] = True
        elif k == 'vd':
            vsoff(n)
            p.e(f's_add_u32 m0, {s(S_LV)}, {(n & 3) * STG}')
            for j in range(4):
                p.e(f'buffer_load_dwordx4 {v(VO + j)}, {s(SRD_V, 4)}, {s(S_T)} offen offset:{1024 * j} lds')
            vm.add(f'T{n}', 4)
        elif k == 'wd':
            headsel(n >> 1)
            p.e(f's_mul_i32 {s(S_T)}, {s(S_T)}, {128 * 1280}')
            if n & 1:
                p.e(f's_add_u32 {s(S_T)}, {s(S_T)}, {64 * 1280}')
            p.e(f's_add_u32 m0, {s(S_LWO)}, {(n & 3) * STG}')
            for j in range(4):
                p.e(f'buffer_load_dwordx4 {v(WO + j)}, {s(SRD_WO, 4)}, {s(S_T)} offen offset:{1024 * j} lds')
            p.e('s_add_u32 m0, m0, 4096')
            p.e(f'buffer_load_dwordx4 {v(WO + 4)}, {s(SRD_WO, 4)}, {s(S_T)} offen lds')
            vm.add(f'T{n}', 5)
        elif k == 'wp':
            headsel(n >> 1)
            p.e(f's_mul_i32 {s(S_T)}, {s(S_T)}, {128 * 1280}')
            if n & 1:
                p.e(f's_add_u32 {s(S_T)}, {s(S_T)}, {64 * 1280}')
            for j in range(5):
                p.e(f'buffer_load_dwordx4 {v(204 + 20 * (n & 1) + 4 * j, 4)}, {v(WO + j)}, {s(SRD_WO, 4)}, {s(S_T)} offen offset:{1024 * (j & 3)}')
            vm.add(f'W{n}', 5)
        elif k == 'wf':
            vm.wait(f'W{n}')
            p.e(f's_add_u32 {s(S_T)}, {s(S_LWO)}, {(n & 3) * STG}')
            p.e(f'v_add_u32 v3, {s(S_T)}, {v(LN16)}')
            for j in range(5):
                p.e(f'ds_write_b128 v3, {v(204 + 20 * (n & 1) + 4 * j, 4)} offset:{1024 * j}')
            done.add(f'wd{n}')
            ldsw[0] = True
        elif k == 'td':
            act(f'vd{n}'); act(f'wd{n}')
        elif k == 'pd':
            headsel(n)
            p.e(f's_lshl_b32 {s(S_T)}, {s(S_T)}, 11')
            p.e(f's_add_u32 m0, {s(S_PL)}, {(n & 1) * 8192}')
            for j in range(2):
                p.e(f'buffer_load_dwordx4 {v(PO)}, {s(SRD_P, 4)}, {s(S_T)} offen offset:{1024 * j} sc1 lds')
            vm.add(f'P{n}', 2)
        elif k == 'pp':
            p.e(f'v_add_u32 v3, {s(S_PL)}, {v(LN16)}')
            for q in range(4):
                p.e(f'ds_read_b128 {v(PR + 4 * q, 4)}, v3 offset:{(q >> 1) * 8192 + (q & 1) * 1024}')
            p.e(f's_lshl_b32 {s(S_T)}, {s(S_HP)}, 12')
            for q in range(4):
                p.e(f'buffer_store_dwordx4 {v(PR + 4 * q, 4)}, {v(PO)}, {s(SRD_P, 4)}, {s(S_T)} offen offset:{q * 1024} sc1')
            vm.add('PS', 4)
        elif k == 'pf':
            assert 'pp' in done
            p.e(f'v_mov_b32 v4, {s(S_TAG)}')
            p.e('v_mov_b32 v5, 0')
            p.e(f's_lshl_b32 {s(S_T)}, {s(S_HP)}, 2')
            p.e(f's_add_u32 {s(S_T)}, {s(S_T)}, {s(S_PF)}')
            vm.wait('PS')
            p.e(f'buffer_store_dword v4, v5, {s(SRD_FL, 4)}, {s(S_T)} offen sc1')
            vm.add('FL')
        elif k == 'po':
            p.e(f'buffer_load_dword v6, {v(FA)}, {s(SRD_FL, 4)}, {s(S_PF)} offen sc1')
            vm.add('PL')
        elif k == 'ck':
            assert 'pf' in done
            p.e('s_mov_b32 s78, 0')
            for d in range(4):
                if n >> d & 1:
                    p.e(f's_add_u32 {s(S_T)}, {s(S_HP)}, {d}')
                    p.e(f's_and_b32 {s(S_T)}, {s(S_T)}, 3')
                    p.e(f's_lshl_b32 {s(S_T)}, 0x11111111, {s(S_T)}')
                    p.e(f's_or_b32 s78, s78, {s(S_T)}')
            p.e('s_not_b32 s78, s78')
            p.e('s_mov_b32 s79, s78')
            vm.wait('PL')
            nspin[0] += 1
            spin(f'L_pspin{nspin[0]}', 6, FA, S_PF, 78, first_issued=True)
            checked[0] |= n
            st.dyn(SV)
        elif k == 'xf':
            if 'xfinit' not in done:
                done.add('xfinit')
                for r in range(4):
                    p.e(f'v_mov_b32 {v(60 + r)}, -1')
                p.e(f's_mul_i32 s82, {s(S_XQ)}, 40960')
                p.e(f's_lshl_b32 {s(S_T)}, {s(S_LW)}, 11')
                p.e(f's_add_u32 s83, s82, {s(S_T)}')
                p.e(f's_lshl_b32 {s(S_T)}, {s(S_LW)}, 9')
                p.e(f's_add_u32 s82, s82, {s(S_T)}')
                p.e('s_add_u32 s82, s82, 8192')
                p.e(f'v_lshlrev_b32 v7, 3, v2')
            p.e(f's_xor_b32 {s(S_T)}, {s(S_XQ)}, {n + 1}')
            p.e(f's_mul_i32 {s(S_T)}, {s(S_T)}, 10240')
            p.e(f's_add_u32 {s(S_T2)}, {s(S_T)}, s83')
            for h in range(2):
                p.e(f'buffer_store_dwordx4 v[60:63], {v(LN16)}, {s(SRD_XB, 4)}, {s(S_T2)} offen offset:{h * 1024} sc1')
            p.e(f's_add_u32 {s(S_T2)}, {s(S_T)}, s82')
            p.e(f'buffer_store_dwordx2 v[60:61], v7, {s(SRD_XB, 4)}, {s(S_T2)} offen sc1')
            vm.add('XF', 3)
        elif k == 'xr':
            assert all(f'xf{i}' in done for i in range(3)) and checked[0] == 15
            p.e(f's_lshr_b32 s80, s2, 2')
            p.e('s_lshl_b32 s80, s80, 7')
            p.e(f's_add_u32 s80, s80, {FL_XF}')
            p.e(f's_lshl_b32 {s(S_T)}, {s(S_XQ)}, 2')
            p.e(f's_add_u32 {s(S_T)}, {s(S_T)}, {s(S_LW)}')
            p.e(f's_lshl_b32 {s(S_T)}, {s(S_T)}, 2')
            p.e(f's_add_u32 {s(S_T)}, {s(S_T)}, s80')
            p.e(f'v_and_b32 v8, 15, v2')
            p.e('v_lshlrev_b32 v8, 2, v8')
            vm.wait('XF')
            p.e(f'buffer_store_dword v4, v5, {s(SRD_FL, 4)}, {s(S_T)} offen sc1')
            vm.add('FL')
        elif k == 'xo':
            assert 'xr' in done
            p.e(f'buffer_load_dword v6, v8, {s(SRD_FL, 4)}, s80 offen sc1')
            vm.add('XL')
        elif k == 'xc':
            p.e('s_mov_b64 s[78:79], 0')
            vm.wait('XL')
            spin('L_xrspin', 6, 8, 80, 78, first_issued=True)
        else:
            raise ValueError(x)

    st.dyn(SV)
    issue1(0)
    setup()
    issue1(1)
    make_tag()
    traces_p1 = []
    ngrp = len(o.ksched)
    if ngrp == 2:
        p.e(f's_bitcmp1_b32 {s(S_BG)}, 0')
        p.e('s_cbranch_scc1 L_kg1')
    l1b = p.pos()
    q0 = list(vm.q)
    endq = []
    for gi, ks in enumerate(o.ksched):
        if gi == 1:
            p.e('L_kg1:')
        ga = p.pos()
        vm.q = list(q0)
        for t in range(2, 10):
            bar(f'S{t - 2}')
            acts = list(ks.get(t, []))
            if 'S' not in acts: acts = ['S'] + acts
            for x in acts:
                if x == 'S':
                    issue1(t)
                else:
                    assert x[:2] in ('kp', 'vp', 'wp') or x in ('kf3', 'kd3'), x
                    act(x)
        bar('S8')
        endq.append(list(vm.q))
        if gi == 0 and ngrp == 2:
            p.e('s_branch L_kjoin')
        traces_p1.append((ga, p.pos()))
    if ngrp == 2:
        p.e('L_kjoin:')
    endq.sort(key=len)
    assert all(endq[-1][len(endq[-1]) - len(x):] == x for x in endq if x), endq
    vm.q = endq[-1]
    l2 = p.pos()
    plan_ = dict(o.plan)
    EARLY = {'B8': [], 'B9': ['wd0', 'vd0', 'vf0', 'td0', 'wf0'], 'B10': ['wd0', 'vd0', 'vf0', 'td0', 'wf0', 'wd1', 'vd1', 'vf1', 'td1', 'wf1', 'wd2']}

    def run_early(key):
        for x in plan_.get(key, []):
            if x[:2] in ('wd', 'vd', 'vf', 'td', 'wf'):
                assert x in EARLY[key], (key, x)
            assert x[:2] not in ('pd', 'pp', 'pf')
            act(x)

    run_early('B8')
    bar('S9')
    run_early('B9')
    assert all(f'kf{g}' in done for g in range(4))
    p.e('s_waitcnt lgkmcnt(0)')
    bar('KD')
    run_early('B10')
    for T in range(0, 16):
        assert f'vf{T}' in done or f'vd{T}' in done, T
        assert f'wd{T}' in done, T
        tags = [f'T{T}']
        need = [T // 2 - 1] if T % 2 == 0 and T >= 2 else []
        if T == 15: need = [7]
        for i in need:
            if i >= NOWN:
                assert f'pd{i}' in done, (T, i)
                tags.append(f'P{i}')
        if ldsw[0]:
            p.e('s_waitcnt lgkmcnt(0)')
            ldsw[0] = False
        if T == 15 and o.sent: assert 'xc' in done
        bar(*tags)
        for x in plan_.get(f'P{T}', []):
            k, n = x[:2], (int(x[2:]) if len(x) > 2 else None)
            if k in ('vd', 'wd', 'td', 'vf', 'wf'): assert n - 4 < T, (T, x)
            if k == 'pd':
                assert 2 * (n - 2) + 3 <= T, (T, x)
                assert checked[0] >> producer(n) & 1, (T, x)
                assert 'pf' in done
                assert 'pp' in done
            act(x)
    reduce_setup(42, LN16, VOUT, S_LW)
    p.e(f's_lshl_b32 {s(S_T)}, {s(S_LW)}, 12')
    p.e(f'v_add_u32 v3, {s(S_T)}, {v(LN16)}')
    p.e('s_barrier')
    st.dyn(SV)
    for q in range(4):
        p.e(f'ds_read_b128 {v(48 + 4 * q, 4)}, v3 offset:{q * 1024}')
    reduce_run(48, 64, 42, LN16, VOUT, 'L_xspin_l', SV)
    st.flush(SV, 201)
    p.e('L_end:')
    p.e('s_endpgm')
    l5 = p.pos()
    for tr in traces_p1:
        p.add_trace([(t0, t1), (l0, l1b), tr, (l2, l5)])

    p.e('L_compute:')
    c0 = p.pos()
    ACC = 0; AF = 128; BF = 160; AA = 192; BA = 200; SR = 212
    LN16c, KA, PD, WA, VA, PA, VTAG, VZ, SVC = 244, 245, 247, 248, 250, 252, 253, 254, 255
    L = 'v202'
    p.e(f'v_mov_b32 {L}, v2')
    if o.codepf:
        p.e(f's_cmp_lt_u32 {s(S_WV)}, {o.codepf}')
        p.e('s_cbranch_scc0 L_nopf')
        p.e(f's_and_b32 {s(S_T)}, {s(S_BG)}, {o.codepf_mask}')
        p.e(f's_cmp_eq_u32 {s(S_T)}, 0')
        p.e('s_cbranch_scc0 L_nopf')
        p.e('s_getpc_b64 s[76:77]')
        p.e('L_pc:')
        p.e(f's_sub_u32 s76, s76, L_pc-{KN}')
        p.e('s_subb_u32 s77, s77, 0')
        p.e('v_lshlrev_b32 v210, 7, v0')
        p.e(f'v_min_u32 v210, L_codeend-{KN}-4, v210')
        p.e('global_load_dword v246, v210, s[76:77]')
        p.e('L_nopf:')
    S_HH, S_BP = 77, 78
    p.e(f's_and_b32 {s(S_HH)}, {s(S_WV)}, 1')
    p.e(f's_lshr_b32 {s(S_BP)}, {s(S_WV)}, 1')
    p.e(f'v_bfe_u32 v203, {L}, 2, 2')
    p.e(f'v_lshrrev_b32 v204, 4, {L}')
    p.e(f'v_and_b32 v205, 3, {L}')
    p.e(f'v_and_b32 v206, 15, {L}')
    p.e('v_lshl_add_u32 v207, v204, 3, v203')
    p.e('v_and_b32 v208, 1, v204')
    p.e('v_lshl_add_u32 v209, v208, 2, v203')
    p.e('v_lshlrev_b32 v209, 5, v209')
    p.e('v_lshl_add_u32 v209, v207, 9, v209')
    p.e('v_lshl_add_u32 v209, v205, 3, v209')
    p.e(f's_lshl_b32 {s(S_T)}, {s(S_HH)}, 8')
    p.e(f's_add_u32 {s(S_T)}, {s(S_T)}, {16384 + SLOT}')
    p.e(f'v_add_u32 {v(AA)}, {s(S_T)}, v209')
    for j in range(1, 8):
        p.e(f'v_xor_b32 {v(AA + j)}, {j * 32}, {v(AA)}')
    p.e('v_lshrrev_b32 v209, 1, v206')
    p.e('v_xor_b32 v209, v209, v204')
    p.e('v_lshlrev_b32 v209, 4, v209')
    p.e('v_lshl_add_u32 v209, v206, 7, v209')
    p.e(f's_lshl_b32 {s(S_T)}, {s(S_BP)}, 13')
    p.e(f's_add_u32 {s(S_T2)}, {s(S_T)}, {SLOT}')
    p.e(f'v_add_u32 {v(BA)}, {s(S_T2)}, v209')
    p.e(f'v_xor_b32 {v(BA + 1)}, 64, {v(BA)}')
    p.e(f's_add_u32 {s(S_T2)}, {s(S_T)}, {VOFF}')
    p.e(f'v_add_u32 {v(VA)}, {s(S_T2)}, v209')
    p.e(f'v_xor_b32 {v(VA + 1)}, 64, {v(VA)}')
    p.e('v_lshrrev_b32 v209, 1, v204')
    p.e('v_xor_b32 v209, v209, v206')
    p.e('v_lshlrev_b32 v209, 4, v209')
    p.e('v_lshl_add_u32 v209, v206, 8, v209')
    p.e('v_lshl_add_u32 v209, v208, 3, v209')
    p.e(f's_lshl_b32 {s(S_T)}, {s(S_HH)}, 1')
    p.e(f's_add_u32 {s(S_T)}, {s(S_T)}, {s(S_BP)}')
    p.e(f's_lshl_b32 {s(S_T)}, {s(S_T)}, 12')
    p.e(f's_add_u32 {s(S_T2)}, {s(S_T)}, {KB}')
    p.e(f'v_add_u32 {v(KA)}, {s(S_T2)}, v209')
    p.e(f'v_lshlrev_b32 {v(LN16c)}, 4, {L}')
    p.e(f's_add_u32 {s(S_T2)}, {s(S_T)}, {PBUF}')
    p.e(f'v_add_u32 {v(PD)}, {s(S_T2)}, {v(LN16c)}')
    p.e(f's_lshl_b32 {s(S_T)}, {s(S_BP)}, 12')
    p.e(f's_add_u32 {s(S_T)}, {s(S_T)}, {PBUF}')
    p.e(f'v_add_u32 {v(PA)}, {s(S_T)}, {v(LN16c)}')
    p.e('v_mul_u32_u24 v209, 320, v207')
    p.e('v_lshl_add_u32 v209, v205, 3, v209')
    p.e(f's_mul_i32 {s(S_T)}, {s(S_HH)}, 160')
    p.e(f'v_add_u32 v209, {s(S_T)}, v209')
    p.e(f's_mul_i32 {s(S_T)}, {s(S_HH)}, -64')
    p.e(f's_add_u32 {s(S_T)}, {s(S_T)}, 32')
    p.e(f'v_mul_lo_u32 v210, {s(S_T)}, v208')
    p.e(f'v_add_u32 {v(WA)}, v209, v210')
    p.e(f'v_sub_u32 {v(WA + 1)}, v209, v210')
    for r in range(128):
        p.e(f'v_mov_b32 {v(ACC + r)}, 0')
    p.e('s_waitcnt lgkmcnt(0)')
    srds_common()
    make_tag()
    p.e(f'v_mov_b32 {v(VTAG)}, {s(S_TAG)}')
    p.e(f'v_mov_b32 {v(VZ)}, 0')
    p.e(f's_mov_b32 {s(S_CNT)}, 0')
    p.e(f's_mov_b32 {s(S_POS)}, 1')
    p.e(f's_mov_b32 {s(S_STEP)}, {SLOT}')
    cexp = (128 ** -0.5) * math.log2(math.e)
    p.e(f's_mov_b32 {s(S_C)}, {f32hex(cexp)}')
    p.e(f's_mov_b32 {s(S_C + 1)}, {f32hex(cexp)}')

    def acc(j, qt):
        return ACC + ((j >> 1) * 4 + qt) * 8 + (j & 1) * 4

    def a_reads(f):
        tp, j = f >> 3, f & 7
        return [f'ds_read_b64_tr_b16 {v(AF + j * 4 + 2 * u, 2)}, {v(AA + j)} offset:{(32 * tp + 4 * u) * 512}' for u in range(2)]

    def b_read(tp, qt):
        return f'ds_read_b128 {v(BF + tp * 16 + qt * 4, 4)}, {v(BA + tp)} offset:{qt * 2048}'

    def m1(m):
        tp, j, qt = m >> 5, (m >> 2) & 7, m & 3
        if o.hack_skip1 and (m % o.hack_skip1[1]) < o.hack_skip1[0]:
            return 's_nop 1'
        return f'{M16} {v(acc(j, qt), 4)}, {v(AF + j * 4, 4)}, {v(BF + tp * 16 + qt * 4, 4)}, {v(acc(j, qt), 4)}'

    bB = o.bB
    head_reads = [(b_read(0, 0), bB, 63)] + [(r, bB, 63) for r in a_reads(0)] + [(b_read(0, q), bB, 63) for q in (1, 2, 3)]
    nh = 0
    for f in range(1, 8):
        lo = max(bB, 4 * (f + 8) + 3)
        if len(head_reads) + 2 > 63 - bB or lo > 62:
            break
        head_reads += [(r, lo, 63) for r in a_reads(f)]
        nh = f
    G1 = Gaps(64)
    G1.fix(bB, ['s_waitcnt lgkmcnt(0)', 's_barrier'])
    body = []
    for f in range(nh + 1, 16):
        lo = max(0, 4 * (f - 8) + 3)
        body += [(r, lo, min(4 * f - 8, bB - 6)) for r in a_reads(f)]
        if f == 8:
            body += [(b_read(1, q), 0, 24) for q in range(4)]
    gend = G1.place(body)
    sal = [f's_add_u32 {s(S_POS)}, {s(S_POS)}, 1', f's_cmp_eq_u32 {s(S_POS)}, 3',
           f's_cselect_b32 {s(S_DELTA)}, {-2 * SLOT & 0xffffffff}, {s(S_STEP)}', f's_cselect_b32 {s(S_POS)}, 0, {s(S_POS)}',
           f's_add_u32 {s(S_CNT)}, {s(S_CNT)}, 1']
    G1.place([(x, 2, 30) for x in sal], step=2)
    advv = [f'v_add_u32 {v(a)}, {s(S_DELTA)}, {v(a)}' for a in list(range(AA, AA + 8)) + [BA, BA + 1]]
    G1.place([(x, gend, bB - 1) for x in advv], start=gend, step=0)
    G1.place([(f's_cmp_eq_u32 {s(S_CNT)}, 10', bB - 1, bB - 1)]) if G1.room(bB - 1, False) else G1.fix(bB - 1, [f's_cmp_eq_u32 {s(S_CNT)}, 10'])
    Gh = Gaps(64)
    Gh.place(head_reads, start=bB)

    st.dyn(SVC)
    p.e('s_barrier')
    st.dyn(SVC); st.dyn(SVC, True)
    for r, _, _ in head_reads:
        p.e(r)
    c1 = p.pos()
    p.e('L_c1:')
    for m in range(bB + 1):
        p.e(m1(m))
        for x in G1.g[m]:
            p.e(x)
    p.e('s_cbranch_scc1 L_c1_done')
    c1b = p.pos()
    for x in Gh.g[bB]:
        p.e(x)
    for m in range(bB + 1, 64):
        p.e(m1(m))
        for x in Gh.g[m]:
            p.e(x)
    p.e('s_branch L_c1')
    c2 = p.pos()
    p.e('L_c1_done:')
    st.dyn(SVC); st.dyn(SVC, True)
    assert bB == 47
    KF = [BF, AF, AF + 16, BF + 16]
    nd = 63 - bB
    ms = [m1(m) for m in range(bB + 1, 64)]
    for t in range(4):
        for bb in range(2):
            for a in range(2):
                for c in range(2):
                    d = SR + (bb * 2 + c) * 8 + a * 4
                    cc = '0' if t == 0 else v(d, 4)
                    ms.append(f'{M16} {v(d, 4)}, {v(KF[t] + (bb * 2 + a) * 4, 4)}, {v(ACC + (t * 4 + bb * 2 + c) * 8, 4)}, {cc}')
    kx = [f'v_xor_b32 {v(AA + i)}, {i * 32}, {v(KA)}' for i in range(8)]

    def k_reads(t):
        return [f'ds_read_b64 {v(KF[t] + g * 4 + 2 * h, 2)}, {v(AA + 2 * t + h)} offset:{g * 16384}' for g in range(4) for h in range(2)]

    def q_cvt(t):
        return [f'v_cvt_pk_bf16_f32 {v(ACC + (t * 4 + qt) * 8 + r)}, {v(ACC + (t * 4 + qt) * 8 + 2 * r)}, {v(ACC + (t * 4 + qt) * 8 + 2 * r + 1)}'
                for qt in range(4) for r in range(4)]

    for x in kx[:4]:
        p.e(x)
    GT = Gaps(len(ms), cap=3)
    GT.place([(r, 0, nd - 1) for r in k_reads(0) + k_reads(1)])
    GT.place([(x, 0, nd - 1) for x in q_cvt(0)] + [(x, 0, nd + 6) for x in kx[4:] + q_cvt(1)], step=0)
    GT.place([(r, nd - 1, nd + 14) for r in k_reads(2)] + [(r, nd - 1, nd + 22) for r in k_reads(3)], start=nd - 1)
    GT.place([(x, 10, nd + 14) for x in q_cvt(2)] + [(x, nd + 2, nd + 22) for x in q_cvt(3)], step=0)
    for m, x in enumerate(ms):
        p.e(x)
        for y in GT.g[m]:
            p.e(y)

    TM = AA
    U = [SR + u * 8 for u in range(4)]
    for u in range(4):
        p.e(f'v_max3_f32 {v(TM + u)}, {v(U[u])}, {v(U[u] + 1)}, {v(U[u] + 2)}')
    for u in range(4):
        p.e(f'v_max3_f32 {v(TM + 4 + u)}, {v(U[u] + 3)}, {v(U[u] + 4)}, {v(U[u] + 5)}')
    for u in range(4):
        p.e(f'v_max3_f32 {v(TM + u)}, {v(TM + u)}, {v(U[u] + 6)}, {v(U[u] + 7)}')
    for u in range(4):
        p.e(f'v_max_f32 {v(TM + u)}, {v(TM + u)}, {v(TM + 4 + u)}')

    def xreduce(op):
        a0, a1, a2, a3 = TM, TM + 1, TM + 2, TM + 3
        p.e(f'v_permlane32_swap_b32 {v(a0)}, {v(a1)}')
        p.e(f'v_permlane32_swap_b32 {v(a2)}, {v(a3)}')
        p.e(f'{op} {v(a0)}, {v(a0)}, {v(a1)}')
        p.e(f'{op} {v(a2)}, {v(a2)}, {v(a3)}')
        p.e(f'v_permlane16_swap_b32 {v(a0)}, {v(a2)}')
        p.e(f'{op} {v(a0)}, {v(a0)}, {v(a2)}')

    def xbcast():
        a0 = TM
        p.e(f'v_mov_b32 {v(TM + 4)}, {v(a0)}')
        p.e(f'v_permlane16_swap_b32 {v(a0)}, {v(TM + 4)}')
        p.e(f'v_mov_b32 {v(TM + 2)}, {v(a0)}')
        p.e(f'v_mov_b32 {v(TM + 6)}, {v(TM + 4)}')
        p.e(f'v_permlane32_swap_b32 {v(a0)}, {v(TM + 2)}')
        p.e(f'v_permlane32_swap_b32 {v(TM + 4)}, {v(TM + 6)}')

    xreduce('v_max_f32')
    p.e(f'v_mul_f32 {v(TM)}, {s(S_C)}, {v(TM)}')
    xbcast()
    for u in range(4):
        for r in range(0, 8, 2):
            p.e(f'v_pk_fma_f32 {v(U[u] + r, 2)}, {v(U[u] + r, 2)}, {s(S_C, 2)}, {v(TM + 2 * u, 2)} op_sel_hi:[1,1,0] neg_lo:[0,0,1] neg_hi:[0,0,1]')
    for u in range(4):
        for r in range(8):
            p.e(f'v_exp_f32 {v(U[u] + r)}, {v(U[u] + r)}')
    T2 = BF
    for u in range(4):
        p.e(f'v_pk_add_f32 {v(T2 + 4 * u, 2)}, {v(U[u], 2)}, {v(U[u] + 2, 2)}')
        p.e(f'v_pk_add_f32 {v(T2 + 4 * u + 2, 2)}, {v(U[u] + 4, 2)}, {v(U[u] + 6, 2)}')
    for u in range(4):
        p.e(f'v_pk_add_f32 {v(T2 + 4 * u, 2)}, {v(T2 + 4 * u, 2)}, {v(T2 + 4 * u + 2, 2)}')
    for u in range(4):
        p.e(f'v_add_f32 {v(TM + u)}, {v(T2 + 4 * u)}, {v(T2 + 4 * u + 1)}')
    xreduce('v_add_f32')
    p.e(f'v_rcp_f32 {v(TM)}, {v(TM)}')
    xbcast()
    for u in range(4):
        for r in range(0, 8, 2):
            p.e(f'v_pk_mul_f32 {v(U[u] + r, 2)}, {v(U[u] + r, 2)}, {v(TM + 2 * u, 2)} op_sel_hi:[1,0]')
        for r in range(4):
            p.e(f'v_cvt_pk_bf16_f32 {v(U[u] + r)}, {v(U[u] + 2 * r)}, {v(U[u] + 2 * r + 1)}')
        p.e(f'ds_write_b128 {v(PD)}, {v(U[u], 4)} offset:{u * 1024}')

    OUT = 0; VW = 80; VF = 160; WF = 192; NW = 5; PF = 212
    bO, bE = o.bO, o.bE
    p.e(f's_mov_b32 {s(S_CNT)}, 0')
    p.e(f's_mov_b32 {s(S_POS)}, 0')
    p.e(f's_mov_b32 {s(S_STEP)}, {STG}')

    def w_reads(f):
        ks, n = (f // 5) & 1, f % 5
        d = WF + (f % NW) * 4
        return [f'ds_read_b64_tr_b16 {v(d + 2 * u, 2)}, {v(WA + (n & 1))} offset:{(32 * ks + 4 * u) * 320 + n * 32}' for u in range(2)]

    def v_reads(ks):
        return [f'ds_read_b128 {v(VF + (ks & 1) * 16 + u * 4, 4)}, {v(VA + (ks & 1))} offset:{u * 2048}' for u in range(4)]

    def p_reads():
        return [f'ds_read_b128 {v(PF + 4 * u, 4)}, {v(PA)} offset:{1024 * u}' for u in range(4)]

    def m2(m, first):
        if m < 80:
            ks, n, u = m // 20, (m % 20) >> 2, m & 3
            d = VW + (n * 2 + (u >> 1)) * 8 + (u & 1) * 4
            cc = '0' if ks == 0 else v(d, 4)
            return f'{M16} {v(d, 4)}, {v(VF + (ks & 1) * 16 + u * 4, 4)}, {v(WF + ((m >> 2) % NW) * 4, 4)}, {cc}'
        n, u = (m - 80) >> 2, m & 3
        d = OUT + n * 16 + u * 4
        cc = '0' if first else v(d, 4)
        return f'{M16} {v(d, 4)}, {v(VW + (n * 2 + (u >> 1)) * 8, 4)}, {v(PF + 4 * u, 4)}, {cc}'

    def adv2():
        sal = [f's_add_u32 {s(S_POS)}, {s(S_POS)}, 1', f's_cmp_eq_u32 {s(S_POS)}, 4',
               f's_cselect_b32 {s(S_DELTA)}, {(-3 * STG) & 0xffffffff}, {s(S_STEP)}', f's_cselect_b32 {s(S_POS)}, 0, {s(S_POS)}']
        ad = [f'v_add_u32 {v(a)}, {s(S_DELTA)}, {v(a)}' for a in (WA, WA + 1, VA, VA + 1)]
        return sal, ad

    pre_reads = v_reads(0)[:1] + w_reads(0) + v_reads(0)[1:] + sum((w_reads(f) for f in range(1, 5)), []) + v_reads(1)

    def head_gaps(last):
        G = Gaps(100)
        G.fix(bO, ['s_waitcnt lgkmcnt(0)', 's_barrier'])
        if not last:
            G.fix(bE, ['s_waitcnt lgkmcnt(0)', 's_barrier'])
        ge = G.place([(r, 4 * (f - 5) + 3, bO - 5) for f in range(5, 10) for r in w_reads(f)])
        sal, ad = adv2()
        G.place([(x, 1, 20) for x in sal], step=2)
        G.place([(x, ge, bO - 1) for x in ad], start=ge, step=0)
        it = [(v_reads(2)[0], bO + 1, 34)] + [(r, bO + 1, 34) for r in w_reads(10)] + [(r, bO + 1, 36) for r in v_reads(2)[1:]]
        for f in range(11, 20):
            it += [(r, max(bO + 1, 4 * (f - 5) + 3), min(4 * f - 5, bE - 5)) for r in w_reads(f)]
            if f == 14:
                it += [(r, 39, 54) for r in v_reads(3)]
        go = G.place(it)
        if not last:
            sal, ad = adv2()
            G.place([(x, bO + 2, 55) for x in sal], step=2)
            G.place([(x, go, bE - 1) for x in ad], start=go, step=0)
        slot_free = lambda f: 4 * (f + 15) + 3
        nx = [(r, bE + 1, 76) for r in p_reads()]
        if not last:
            v0 = v_reads(0); v1 = v_reads(1)
            nx += [(v0[0], bE + 1, 99)] + [(r, slot_free(0), 99) for r in w_reads(0)] + [(r, bE + 1, 99) for r in v0[1:]]
            for f in range(1, 5):
                nx += [(r, slot_free(f), 99) for r in w_reads(f)]
            nx += [(r, 79, 99) for r in v1]
        G.place(nx, start=bE + 1)
        if not last:
            G.place([(f'v_xor_b32 {v(PA)}, 8192, {v(PA)}', 78, 99)])
        cv = []
        for n in range(5):
            for bb in range(2):
                b = VW + (n * 2 + bb) * 8
                cv += [(f'v_cvt_pk_bf16_f32 {v(b + r)}, {v(b + 2 * r)}, {v(b + 2 * r + 1)}', 60 + 4 * n + 2 * bb + 1 + 3, 80 + 4 * n + 2 * bb - 2) for r in range(4)]
        G.place(cv, step=0)
        return G

    def emit_head(G, first, lo=0, hi=100):
        for m in range(lo, hi):
            p.e(m2(m, first))
            for x in G.g[m]:
                p.e(x)

    p.e('s_waitcnt lgkmcnt(0)')
    st.dyn(SVC)
    p.e('s_barrier')
    st.dyn(SVC); st.dyn(SVC, True)
    for r in pre_reads:
        p.e(r)
    emit_head(head_gaps(False), True)
    c3 = p.pos()
    p.e('L_c2:')
    Gm = head_gaps(False)
    Gm.place([(f's_add_u32 {s(S_CNT)}, {s(S_CNT)}, 1', 94, 98), (f's_cmp_lt_u32 {s(S_CNT)}, 6', 95, 99)])
    Gm.fix(99, ['s_cbranch_scc1 L_c2'])
    emit_head(Gm, False)
    c4 = p.pos()
    Gl = head_gaps(True)
    Gl.place([(x, 40, 79) for x in [f's_mul_i32 s76, {s(S_WV)}, 40960', f's_mul_i32 {s(S_T)}, {s(S_XQ)}, 10240', f's_add_u32 s76, s76, {s(S_T)}',
                                     's_add_u32 s77, s76, 4096', 's_add_u32 s78, s76, 8192', f's_cmp_eq_u32 {s(S_WV)}, {s(S_XQ)}']], step=0)
    emit_head(Gl, False, 0, 80)
    p.e('s_cbranch_scc1 L_keeper')
    c5 = p.pos()
    Gs = [list(x) for x in Gl.g] + [[] for _ in range(8)]
    for pc in range(10):
        b = OUT + 8 * pc
        d = VF + pc * 4
        g = 80 + 2 * pc + 1 + 3
        Gs[g] += [f'v_cvt_pk_bf16_f32 {v(d + r)}, {v(b + 2 * r)}, {v(b + 2 * r + 1)}' for r in range(4)]
        Gs[g] += [f'buffer_store_dwordx4 {v(d, 4)}, {v(LN16c)}, {s(SRD_XB, 4)}, {s(76 + pc // 4)} offen offset:{(pc % 4) * 1024} sc1']
    for m in range(80, 108):
        if m < 100: p.e(m2(m, False))
        for x in Gs[m]:
            p.e(x)
    st.dyn(SVC); st.dyn(SVC, True)
    p.e('s_barrier')
    if not o.sent:
        p.e(f's_and_b32 {s(S_T)}, s2, 0xfc')
        p.e(f's_add_u32 {s(S_T)}, {s(S_T)}, {s(S_WV)}')
        p.e(f's_lshl_b32 {s(S_T)}, {s(S_T)}, 7')
        p.e(f's_lshl_b32 {s(S_T2)}, {s(S_XQ)}, 2')
        p.e(f's_add_u32 {s(S_T)}, {s(S_T)}, {s(S_T2)}')
        p.e(f's_add_u32 {s(S_T)}, {s(S_T)}, {FL_XF}')
        p.e('s_waitcnt vmcnt(0)')
        st.dyn(SVC)
        p.e(f'buffer_store_dword {v(VTAG)}, {v(VZ)}, {s(SRD_FL, 4)}, {s(S_T)} offen sc1')
    elif o.stamps:
        p.e('s_waitcnt vmcnt(0)')
        st.dyn(SVC)
    st.flush(SVC, 132)
    p.e('s_endpgm')
    c6 = p.pos()
    p.e('L_keeper:')
    Gk = [list(x) for x in Gl.g] + [[] for _ in range(8)]
    for q in range(16):
        Gk[80 + q + 4] += [f'ds_write_b128 {v(LN16c)}, {v(OUT + 4 * q, 4)} offset:{q * 1024}']
    for m in range(80, 108):
        if m < 100: p.e(m2(m, False))
        for x in Gk[m]:
            p.e(x)
    st.dyn(SVC); st.dyn(SVC, True)
    p.e(f's_mov_b32 {s(S_T)}, 4')
    reduce_setup(230, LN16c, 228, S_T)
    p.e('s_waitcnt lgkmcnt(0)')
    p.e('s_barrier')
    reduce_run(64, 160, 230, LN16c, 228, 'L_xspin_k')
    p.e(f's_or_b32 {s(S_T)}, {s(S_XQ)}, {s(S_HP)}')
    p.e(f's_cmp_eq_u32 {s(S_T)}, 0')
    p.e('s_cbranch_scc0 L_kdone')
    p.e(f'buffer_store_dword {v(VTAG)}, {v(VZ)}, {s(SRD_FL, 4)}, {s(S_EP)} offen sc1')
    p.e('L_kdone:')
    st.flush(SVC, 138)
    p.e('s_endpgm')
    p.e('L_codeend:')
    c7 = p.pos()
    pre = [(t0, t1), (c0, c1), (c1, c2), (c1, c2), (c1, c1b), (c2, c3), (c3, c4), (c3, c4), (c4, c5)]
    p.add_trace(pre + [(c5, c6)])
    p.add_trace(pre + [(c6, c7)])


def kd(name, vgpr=256, sgpr=100):
    acc = (vgpr + 3) // 4 * 4
    return f'''.p2align 6
.amdhsa_kernel {name}
  .amdhsa_next_free_vgpr {vgpr}
  .amdhsa_next_free_sgpr {sgpr}
  .amdhsa_accum_offset {acc}
  .amdhsa_group_segment_fixed_size 0
  .amdhsa_kernarg_size 104
  .amdhsa_user_sgpr_count 2
  .amdhsa_user_sgpr_kernarg_segment_ptr 1
  .amdhsa_system_sgpr_workgroup_id_x 1
.end_amdhsa_kernel
'''


def build(o):
    p = Prog()
    p.lg_hi, p.lg_lo = o.lg
    gen(p, o)
    txt = HEADER + '; @launch grid=(256,1,1) block=(512,1,1) lds=163840\n.amdgcn_target "amdgcn-amd-amdhsa--gfx950"\n.text\n'
    txt += p.text()
    txt += '.section .rodata,"a"\n' + kd(KN)
    return txt


if __name__ == '__main__':
    o = Opt()
    out = sys.argv[1]
    for a in sys.argv[2:]:
        k, val = a.split('=', 1)
        setattr(o, k, eval(val))
    open(out, 'w').write(build(o))
    from chk import check
    check(out)
```

```python
OT = {'P5': ['pd3', 'td7'], 'P6': ['td8'], 'P7': ['pd4', 'td9'], 'P8': ['td10'], 'P9': ['pd5', 'td11'],
      'P10': ['td12'], 'P11': ['pd6', 'td13'], 'P12': ['td14'], 'P13': ['pd7', 'td15']}
KC = [{3: ['kd3', 'kp0'], 5: ['kp1', 'kp2'], 7: ['vp0', 'vp1']},
      {4: ['kd3', 'kp0'], 6: ['kp1', 'kp2'], 8: ['vp0', 'vp1']}]
E2 = dict({'B8': ['vp2', 'vp3', 'kf0'], 'B9': ['wd0', 'kf1', 'kf2'], 'B10': ['wd1', 'wd2', 'vf0', 'vf1'],
      'P0': ['pp', 'wd3', 'vf2'], 'P1': ['vf3', 'pf'], 'P2': ['td4'], 'P3': ['td5'], 'P4': ['po', 'td6', 'ck14', 'pd2']}, **OT)

OS = {'P5': ['pd3', 'td7'], 'P6': ['td8', 'xf0'], 'P7': ['pd4', 'td9'], 'P8': ['td10', 'xf1'], 'P9': ['pd5', 'td11'],
      'P10': ['td12', 'xf2'], 'P11': ['pd6', 'td13'], 'P12': ['xr', 'td14'], 'P13': ['pd7', 'td15'], 'P14': ['xo', 'xc']}
E2S = dict(E2, **OS)

K2 = [{3: ['kd3', 'kp0'], 5: ['kp1', 'kp2']}, {4: ['kd3', 'kp0'], 6: ['kp1', 'kp2']}]
K2b = [{4: ['kd3', 'kp0'], 7: ['kp1', 'kp2']}, {5: ['kd3', 'kp0'], 8: ['kp1', 'kp2']}]
K1 = [{4: ['kd3', 'kp0']}, {6: ['kd3', 'kp0']}]
EOT = {'P9': ['pd5', 'td11'], 'P10': ['td12'], 'P11': ['pd6', 'td13'], 'P12': ['td14'], 'P13': ['pd7', 'td15']}
EO1 = dict({'B8': ['vp0', 'vp1', 'kf0'], 'B9': ['wd0', 'kf1', 'kf2'], 'B10': ['wd1', 'vf0', 'vf1'],
       'P0': ['pp', 'td2'], 'P1': ['pf', 'td3'], 'P2': ['po', 'td4', 'ck2', 'pd1'], 'P3': ['td5', 'vp8', 'vp9'], 'P4': ['po', 'td6', 'ck12', 'pd2'],
       'P5': ['pd3', 'td7', 'wd8'], 'P6': ['wd9', 'vf8'], 'P7': ['pd4', 'vf9'], 'P8': ['td10']}, **EOT)
EO2 = dict({'B8': ['kd1', 'kd2', 'kf0'], 'B9': ['td0'], 'B10': ['td1'],
       'P0': ['pp', 'td2'], 'P1': ['pf', 'td3'], 'P2': ['po', 'td4', 'ck2', 'pd1'], 'P3': ['td5', 'vp8', 'vp9'], 'P4': ['po', 'td6', 'ck12', 'pd2'],
       'P5': ['pd3', 'td7', 'wd8'], 'P6': ['wd9', 'vf8'], 'P7': ['pd4', 'vf9'], 'P8': ['td10']}, **EOT)
EO3 = dict({'B8': ['vp0', 'vp1', 'kf0'], 'B9': ['wd0', 'kf1', 'kf2'], 'B10': ['wd1', 'vf0', 'vf1', 'vp8', 'vp9'],
       'P0': ['pp', 'td2'], 'P1': ['pf', 'td3'], 'P2': ['td4'], 'P3': ['po', 'ck2', 'pd1', 'td5'], 'P4': ['po', 'td6', 'ck12', 'pd2'],
       'P5': ['pd3', 'td7', 'wd8'], 'P6': ['wd9', 'vf8'], 'P7': ['pd4', 'vf9'], 'P8': ['td10']}, **EOT)
E3T = {'P9': ['pd5', 'td12'], 'P10': ['td13'], 'P11': ['pd6', 'td14'], 'P12': ['td15'], 'P13': ['pd7']}
EO4 = dict({'B8': ['vp0', 'vp1', 'kf0'], 'B9': ['wd0', 'kf1', 'kf2'], 'B10': ['wd1', 'vf0', 'vf1', 'wd2'],
       'P0': ['pp', 'vd2', 'pf'], 'P1': ['td3'], 'P2': ['td4', 'po', 'td5'], 'P3': ['ck2', 'pd1', 'po', 'td6'], 'P4': ['ck12', 'pd2', 'td7', 'vp8'],
       'P5': ['pd3', 'wd8'], 'P6': ['td9', 'vf8'], 'P7': ['pd4', 'td10'], 'P8': ['td11']}, **E3T)
EO5 = dict({'B8': ['vp0', 'vp1', 'kf0'], 'B9': ['wd0', 'kf1', 'kf2'], 'B10': ['wd1', 'vf0', 'vf1', 'vp8', 'vp9'],
       'P0': ['pp', 'td2', 'pf'], 'P1': ['td3'], 'P2': ['td4', 'po', 'td5'], 'P3': ['ck2', 'pd1', 'po', 'td6'], 'P4': ['ck12', 'pd2', 'td7'],
       'P5': ['pd3', 'wd8', 'vf8'], 'P6': ['wd9', 'vf9'], 'P7': ['pd4', 'td10'], 'P8': ['td11']}, **E3T)
EO6 = dict({'B8': ['vp0', 'vp1', 'kf0'], 'B9': ['wd0', 'kf1', 'kf2'], 'B10': ['wd1', 'vf0', 'vf1', 'vp8'],
       'P0': ['pp', 'td2', 'pf'], 'P1': ['td3'], 'P2': ['td4', 'po'], 'P3': ['ck2', 'pd1', 'po', 'td5'], 'P4': ['ck12', 'pd2', 'td6', 'td7'],
       'P5': ['pd3', 'wd8', 'vf8'], 'P6': ['td9'], 'P7': ['pd4', 'td10'], 'P8': ['td11']}, **E3T)
K3 = [{3: ['kd3', 'kp0'], 6: ['kp1', 'kp2']}, {4: ['kd3', 'kp0'], 7: ['kp1', 'kp2']}]

SB2 = {'B8': ['vp2', 'vp3', 'kf0'], 'B9': ['wd0', 'kf1', 'kf2'], 'B10': ['wd1', 'wd2', 'vf0', 'vf1'],
       'P0': ['pp', 'wd3', 'vf2'], 'P1': ['vf3', 'pf', 'td4'], 'P2': ['td5'], 'P3': ['td6'], 'P4': ['po', 'td7', 'ck14', 'pd2'],
       'P6': ['pd3', 'td8', 'td9'], 'P8': ['pd4', 'td10', 'td11'], 'P10': ['pd5', 'td12', 'td13'], 'P12': ['pd6', 'td14', 'td15'], 'P14': ['pd7']}
SB3 = {'B8': ['vp2', 'vp3', 'kf0'], 'B9': ['wd0', 'kf1', 'kf2'], 'B10': ['wd1', 'wd2', 'vf0', 'vf1'],
       'P0': ['pp', 'wd3', 'vf2'], 'P1': ['vf3', 'pf'], 'P2': ['td4', 'td5'], 'P3': ['td6'], 'P4': ['po', 'td7', 'ck14', 'pd2'], 'P5': ['pd3', 'td8'],
       'P6': ['td9'], 'P8': ['pd4', 'td10', 'td11'], 'P10': ['pd5', 'td12', 'td13'], 'P12': ['pd6', 'td14', 'td15'], 'P14': ['pd7']}
E2H = {k: E2[k] for k in ('B8', 'B9', 'B10', 'P0', 'P1', 'P2', 'P3')}
E4 = dict(E2H, **{'P4': ['po', 'td6', 'ck14', 'pd2'], 'P5': ['td7'], 'P6': ['td8', 'pd3'], 'P7': ['td9'], 'P8': ['td10', 'pd4'], 'P9': ['td11'],
      'P10': ['td12', 'pd5'], 'P11': ['td13'], 'P12': ['td14', 'pd6'], 'P13': ['td15', 'pd7']})
E5 = dict(E2H, **{'P4': ['po', 'td6', 'ck14', 'pd2'], 'P5': ['td7'], 'P6': ['td8', 'vd9'], 'P7': ['pd3', 'wd9'], 'P8': ['td10', 'vd11'], 'P9': ['pd4', 'wd11'],
      'P10': ['td12', 'vd13'], 'P11': ['pd5', 'wd13'], 'P12': ['td14', 'vd15', 'pd6'], 'P13': ['wd15', 'pd7']})
E6 = dict(E2H, **{'P4': ['po', 'td6', 'ck14', 'pd2'], 'P5': ['td7'], 'P6': ['td8', 'vd9', 'pd3'], 'P7': ['wd9'], 'P8': ['td10', 'vd11', 'pd4'], 'P9': ['wd11'],
      'P10': ['td12', 'vd13', 'pd5'], 'P11': ['wd13'], 'P12': ['td14', 'vd15', 'pd6'], 'P13': ['wd15', 'pd7']})

E4T = {k: E4[k] for k in E4 if k[0] == 'P' and int(k[1:]) >= 5}
F1 = dict({'B8': ['vp2', 'vp3', 'kf0'], 'B9': ['wd0', 'kf1', 'kf2'], 'B10': ['wd1', 'vf0', 'vf1'], 'BK': ['wd2', 'wd3', 'vf2', 'vf3'],
      'P0': ['pp'], 'P1': ['pf', 'td4'], 'P2': ['td5'], 'P3': ['po'], 'P4': ['ck14', 'td6', 'pd2']}, **E4T)
F2 = dict({'B8': ['vp2', 'vp3', 'kf0'], 'B9': ['wd0', 'kf1', 'kf2'], 'B10': ['wd1', 'wd2'], 'BK': ['vf0', 'vf1', 'wd3', 'vf2', 'vf3'],
      'P0': ['pp'], 'P1': ['pf'], 'P2': ['td4'], 'P3': ['td5'], 'P4': ['po', 'td6', 'ck14', 'pd2']}, **E4T)
F3 = dict({'B8': ['vp2', 'vp3', 'kf0'], 'B9': ['wd0', 'kf1', 'kf2'], 'B10': ['wd1', 'wd2', 'vf0', 'vf1'],
      'P0': ['pp', 'wd3'], 'P1': ['vf2', 'pf'], 'P2': ['td4', 'vf3'], 'P3': ['td5'], 'P4': ['po', 'td6', 'ck14', 'pd2']}, **E4T)
KV1 = [{4: ['kd3', 'kp0'], 7: ['vp0', 'vp1']}, {5: ['kd3', 'kp0'], 8: ['vp0', 'vp1']}]
KV2 = [{3: ['kd3', 'kp0'], 6: ['vp0', 'vp1']}, {4: ['kd3', 'kp0'], 7: ['vp0', 'vp1']}]
GT = {'P9': ['td11'], 'P10': ['td12', 'pd5'], 'P11': ['td13'], 'P12': ['td14', 'pd6'], 'P13': ['td15', 'pd7']}
GE = {'B8': ['kd1', 'kd2', 'kf0'], 'B9': ['wd0', 'vf0'], 'B10': ['wd1', 'vf1', 'wd2']}
G1 = dict(GE, **{'P0': ['pp', 'vd2'], 'P1': ['td3', 'pf'], 'P2': ['td4', 'po', 'wd5'], 'P3': ['ck2', 'pd1', 'po', 'vd5', 'wd6'],
      'P4': ['ck12', 'pd2', 'vd6', 'td7'], 'P5': ['td8'], 'P6': ['pd3', 'td9'], 'P7': [], 'P8': ['td10', 'pd4']}, **GT)
G2 = dict(GE, **{'P0': ['pp', 'vd2', 'pf'], 'P1': ['td3'], 'P2': ['td4', 'po', 'ck2', 'pd1'], 'P3': ['po', 'td5'],
      'P4': ['ck12', 'pd2', 'td6', 'vd7'], 'P5': ['wd7', 'vd8'], 'P6': ['pd3', 'wd8', 'vd9'], 'P7': ['wd9'], 'P8': ['td10', 'pd4']}, **GT)
G3 = dict(GE, **{'P0': ['pp', 'vd2', 'wd3'], 'P1': ['pf', 'vd3', 'wd4'], 'P2': ['vd4', 'po', 'td5'], 'P3': ['ck2', 'pd1', 'po', 'td6'],
      'P4': ['ck12', 'pd2', 'td7'], 'P5': ['pd3', 'td8'], 'P6': ['td9'], 'P7': [], 'P8': ['td10', 'pd4']}, **GT)
KH1 = [{2: ['kd3', 'kp0'], 4: ['kp1', 'kp2'], 6: ['vp0', 'vp1']}, {3: ['kd3', 'kp0'], 5: ['kp1', 'kp2'], 7: ['vp0', 'vp1']}]
KH2 = [{2: ['kd3', 'kp0'], 3: ['kp1', 'kp2'], 5: ['vp0', 'vp1']}, {2: ['kd3', 'kp0'], 4: ['kp1', 'kp2'], 6: ['vp0', 'vp1']}]
KH3 = [{2: ['kd3', 'kp0'], 3: ['kp1'], 4: ['kp2'], 6: ['vp0', 'vp1']}, {2: ['kd3'], 3: ['kp0', 'kp1'], 4: ['kp2'], 7: ['vp0', 'vp1']}]
KH4 = [{2: ['kd3', 'kp0'], 4: ['kp1', 'kp2'], 6: ['vp0', 'vp1'], 8: ['vp2']}, {3: ['kd3', 'kp0'], 5: ['kp1', 'kp2'], 7: ['vp0', 'vp1'], 8: ['vp2']}]
E4b = dict(E4, **{'B8': ['vp3', 'kf0']})
KH5 = [{3: ['kd3', 'kp0'], 4: ['kp1', 'kp2'], 7: ['vp0', 'vp1']}, {3: ['kd3', 'kp0'], 5: ['kp1', 'kp2'], 8: ['vp0', 'vp1']}]

A_, B_, C_, D_ = ['kd3', 'kp0'], ['kp1', 'kp2'], ['vp0', 'vp1'], ['vp2', 'vp3']
def aft(x): return ['S'] + x
def bef(x): return x + ['S']
Q1 = [{2: aft(A_), 4: aft(B_), 6: aft(C_)}, {3: bef(A_), 5: bef(B_), 7: bef(C_)}, {3: aft(A_), 5: aft(B_), 7: aft(C_)}, {4: bef(A_), 6: bef(B_), 8: bef(C_)}]
Q2 = [{2: bef(A_), 4: bef(B_), 6: bef(C_)}, {2: aft(A_), 4: aft(B_), 6: aft(C_)}, {3: bef(A_), 5: bef(B_), 7: bef(C_)}, {3: aft(A_), 5: aft(B_), 7: aft(C_)}]
Q3 = [{2: bef(A_), 4: bef(B_), 6: bef(C_), 8: bef(D_)}, {2: aft(A_), 4: aft(B_), 6: aft(C_), 8: aft(D_)}, {3: bef(A_), 5: bef(B_), 7: bef(C_), 9: bef(D_)}, {3: aft(A_), 5: aft(B_), 7: aft(C_), 9: bef(D_)}]
E4c = dict(E4, **{'B8': ['wp0', 'wp1', 'kf0'], 'B9': ['kf1', 'kf2'], 'B10': ['wd2', 'wf0', 'vf0', 'wf1', 'vf1']})
E4d = dict(E4, **{'B8': ['kf0', 'kf1'], 'B9': ['wd0', 'kf2', 'vf0'], 'B10': ['wd1', 'wd2', 'vf1']})
L1 = [{3: aft(A_ + B_ + C_)}, {6: aft(A_ + B_ + C_)}]
L2 = [{2: aft(A_ + B_ + C_)}, {5: aft(A_ + B_ + C_)}]
L3 = [{2: aft(A_ + B_), 6: aft(C_)}, {4: aft(A_ + B_), 7: aft(C_)}]
L4 = [{3: aft(A_ + B_ + C_ + D_)}, {7: aft(A_ + B_ + C_ + D_)}]
L5 = [{2: aft(A_ + B_ + C_)}, {4: aft(A_ + B_ + C_)}, {6: aft(A_ + B_ + C_)}, {7: aft(A_ + B_ + C_)}]
L6 = [{2: aft(A_ + B_), 5: aft(C_ + D_)}, {4: aft(A_ + B_), 7: aft(C_ + D_)}]

M1 = [{2: aft(A_), 3: ['N'] + B_, 4: ['S', 'S'], 6: aft(C_)}, {4: aft(A_), 5: ['N'] + B_, 6: ['S', 'S'], 8: aft(C_)}]
M2 = [{2: aft(A_), 3: ['N'] + B_, 4: ['S', 'S'], 7: aft(C_)}, {3: aft(A_), 4: ['N'] + B_, 5: ['S', 'S'], 8: aft(C_)}]
M3 = [{2: aft(A_), 3: ['N'] + B_, 4: C_ + ['S', 'S']}, {5: aft(A_), 6: ['N'] + B_, 7: C_ + ['S', 'S']}]
M4 = [{2: aft(A_), 3: ['N'] + B_, 4: ['S', 'S'], 6: aft(C_), 7: ['N'] + D_, 8: ['S', 'S']}, {4: aft(A_), 5: ['N'] + B_, 6: ['S', 'S'], 8: aft(C_), 9: D_ + ['S']}]
M5 = [{2: aft(A_), 5: aft(B_), 6: ['N'] + C_, 7: ['S', 'S']}, {3: aft(A_), 4: ['N'] + B_, 5: ['S', 'S'], 8: aft(C_)}]
E4U = {k: E4[k] for k in E4 if k[0] == 'P' and int(k[1:]) >= 4}
H1 = dict({'B8': ['vp2', 'vp3', 'kf0', 'kf1'], 'B9': ['wd0', 'kf2', 'vf0'], 'B10': ['wd1', 'wd2', 'vf1'],
      'P0': ['pp', 'wd3'], 'P1': ['vf2', 'pf'], 'P2': ['td4', 'vf3'], 'P3': ['td5']}, **E4U)
H2 = dict({'B8': ['vp2', 'vp3', 'kf0'], 'B9': ['wd0', 'kf1', 'kf2'], 'B10': ['wd1', 'wd2'], 'BK': ['vf0', 'vf1', 'wd3', 'vf2'],
      'P0': ['pp'], 'P1': ['pf'], 'P2': ['vf3', 'td4'], 'P3': ['td5']}, **E4U)
H3 = dict({'B8': ['vp2', 'kf0', 'kf1'], 'B9': ['wd0', 'kf2', 'vf0'], 'B10': ['wd1', 'wd2'], 'BK': ['td3', 'vf1', 'vf2'],
      'P0': ['pp'], 'P1': ['pf'], 'P2': ['td4'], 'P3': ['td5']}, **E4U)
H4 = dict({'B8': ['kf0', 'kf1'], 'B9': ['wd0', 'kf2', 'vf0'], 'B10': ['wd1', 'wd2'], 'BK': ['vd2', 'td3', 'vf1'],
      'P0': ['pp'], 'P1': ['pf'], 'P2': ['td4'], 'P3': ['td5']}, **E4U)
H5 = dict({'B8': ['pr3', 'vp2', 'vp3', 'kf0'], 'B9': ['wd0', 'kf1', 'kf2'], 'B10': ['wd1', 'wd2'], 'BK': ['vf0', 'vf1', 'wd3', 'vf2', 'vf3'],
      'P0': ['pp'], 'P1': ['pf'], 'P2': ['td4'], 'P3': ['td5']}, **E4U)
```

```python
import sys, math, struct
from asmlib import Prog, v, s
from plans6 import *

NAME = 'concat_heads__gqa_block_cached__gqa_block_cached__near_ridge'
KN = NAME + '_kernel'
M16 = 'v_mfma_f32_16x16x32_bf16'


def f32hex(x):
    return '0x%08x' % struct.unpack('<I', struct.pack('<f', x))[0]


class Opt:
    stamps = False
    grp = 4
    ksched = KH1
    plan = E4
    nt_k = True
    codepf = 4
    codepf_mask = 3
    bB = 47
    bO = 27
    bE = 67
    lg = (9, 7)
    onepoll = False
    seplines = False
    lane1 = False
    mpoll = 0
    mgap = 2
    post = False
    bk = False
    n2b = 8
    hack_skip1 = None
    order = 'own'
    sent = False
    xsleep = 0
    z = None


WS_XB = 4 << 20
WS_FL = 16 << 20
FL_XF = 32768
FL_EP = 32768 + 131072
FL_SIZE = FL_EP + 2048
WS_STAMP = 64 << 20
X_BYTES = 1024 * 640 * 2
KV_BYTES = 32 * 32 * 32 * 128 * 2
W_BYTES = 640 * 4096 * 2
OUT_BYTES = 1024 * 1280 * 2

HEADER = open('cdna_kernels/%s.s.ref' % NAME).read().split('; Override launch')[0]

S_X, S_K, S_V, S_WQ, S_WO = 8, 10, 12, 14, 16
S_OUT, S_WS = 32, 36
SRD_X, SRD_WQ, SRD_K, SRD_V, SRD_WO, SRD_P, SRD_XB, SRD_OUT, SRD_FL = 40, 44, 48, 52, 56, 60, 64, 68, 72
S_BR, S_XQ, S_BG, S_HP, S_CT, S_WV, S_T, S_T2 = 18, 19, 20, 21, 22, 23, 24, 25
S_EP, S_TAG = 26, 27
S_CNT, S_DELTA, S_POS, S_STEP = 28, 29, 30, 31
S_C = 34


def srd(p, d, base, off_s, size_total):
    p.e(f's_add_u32 {s(d)}, {s(base)}, {s(off_s)}')
    p.e(f's_addc_u32 {s(d+1)}, {s(base+1)}, 0')
    p.e(f's_sub_u32 {s(d+2)}, {size_total}, {s(off_s)}')
    p.e(f's_mov_b32 {s(d+3)}, 0x20000')


class Stamper:
    def __init__(self, p, o):
        self.p, self.o = p, o

    def start(self):
        if not self.o.stamps: return
        self.p.e('s_memrealtime s[92:93]')
        self.p.e('s_memtime s[94:95]')
        self.p.e('s_mov_b32 s90, 3')

    def dyn(self, vr, real=False):
        if not self.o.stamps: return
        if self.o.post and vr == 255: return
        p = self.p
        p.e('s_memrealtime s[88:89]' if real else 's_memtime s[88:89]')
        p.e('s_mov_b32 s91, m0')
        p.e('s_mov_b32 m0, s90')
        p.e('s_waitcnt lgkmcnt(0)')
        p.e(f'v_writelane_b32 v{vr}, s88, m0')
        p.e('s_add_u32 s90, s90, 1')
        p.e('s_mov_b32 m0, s91')

    def flush(self, vr, vtmp):
        if not self.o.stamps: return
        p = self.p
        p.e('s_memtime s[88:89]')
        p.e('s_memrealtime s[96:97]')
        p.e('s_mov_b32 m0, s90')
        p.e('s_waitcnt vmcnt(0) lgkmcnt(0)')
        p.e(f'v_writelane_b32 v{vr}, s88, m0')
        p.e(f'v_writelane_b32 v{vr}, s92, 0')
        p.e(f'v_writelane_b32 v{vr}, s96, 1')
        p.e(f'v_writelane_b32 v{vr}, s94, 2')
        p.e(f'v_writelane_b32 v{vr}, s90, 63')
        p.e('s_getreg_b32 s88, hwreg(HW_REG_XCC_ID)')
        p.e(f'v_writelane_b32 v{vr}, s88, 62')
        p.e('s_lshl_b32 s88, s2, 3')
        p.e(f's_add_u32 s88, s88, {s(S_WV)}')
        p.e('s_lshl_b32 s88, s88, 8')
        p.e(f's_add_u32 s88, s88, {WS_STAMP}')
        p.e(f's_add_u32 s92, {s(S_WS)}, s88')
        p.e(f's_addc_u32 s93, {s(S_WS+1)}, 0')
        p.e('s_mov_b32 s94, 256')
        p.e('s_mov_b32 s95, 0x20000')
        p.e(f'v_mbcnt_lo_u32_b32 v{vtmp}, -1, 0')
        p.e(f'v_mbcnt_hi_u32_b32 v{vtmp}, -1, v{vtmp}')
        p.e(f'v_lshlrev_b32 v{vtmp}, 2, v{vtmp}')
        p.e(f'buffer_store_dword v{vr}, v{vtmp}, s[92:95], 0 offen')


class Gaps:
    def __init__(self, n, cap=2):
        self.n = n
        self.g = [[] for _ in range(n)]
        self.cap = cap

    def room(self, g, ds):
        cur = self.g[g]
        if len(cur) >= self.cap: return False
        if ds and any(x.startswith('ds_') for x in cur): return False
        return True

    def fix(self, g, items):
        self.g[g] += items

    def place(self, items, start=0, step=1):
        g = start
        for (t, lo, hi) in items:
            g = max(g, lo)
            ds = t.startswith('ds_')
            while g < self.n and not self.room(g, ds):
                g += 1
            assert g < self.n and g <= hi, (t, lo, hi, g)
            self.g[g].append(t)
            g += step
        return g


def gen(p, o):
    st = Stamper(p, o)
    p.e(f'.globl {KN}\n.p2align 8\n.type {KN},@function\n{KN}:')
    t0 = p.pos()
    SLOT = 49152
    KB = 98304
    STG = 36864; VOFF = 20480; PBUF = 4 * STG
    p.e('s_cmp_ge_u32 s2, 256')
    p.e('s_cbranch_scc1 L_end')
    p.e(f's_bfe_u32 {s(S_BR)}, s2, 0x10002')
    p.e(f's_mul_i32 s3, {s(S_BR)}, 40')
    p.e('s_load_dwordx8 s[8:15], s[0:1], s3')
    p.e('s_add_u32 s3, s3, 32')
    p.e('s_load_dwordx2 s[16:17], s[0:1], s3')
    p.e('s_load_dwordx2 s[32:33], s[0:1], 80')
    p.e('s_load_dwordx2 s[36:37], s[0:1], 96')
    st.start()
    p.e('v_lshrrev_b32 v1, 6, v0')
    p.e('v_and_b32 v2, 63, v0')
    p.e(f'v_readfirstlane_b32 {s(S_WV)}, v1')
    p.e(f's_and_b32 {s(S_XQ)}, s2, 3')
    p.e(f's_lshr_b32 {s(S_BG)}, s2, 5')
    p.e(f's_bfe_u32 {s(S_HP)}, s2, 0x20003')
    p.e(f's_add_u32 {s(S_CT)}, {s(S_HP)}, {s(S_BG)}')
    p.e(f's_and_b32 {s(S_CT)}, {s(S_CT)}, 3')
    p.e(f's_cmp_lt_u32 {s(S_WV)}, 4')
    p.e('s_cbranch_scc1 L_compute')
    t1 = p.pos()

    def srds_loader():
        p.e(f's_lshl_b32 s76, {s(S_BG)}, 7')
        p.e(f's_lshl_b32 {s(S_T)}, {s(S_XQ)}, 3')
        p.e(f's_add_u32 s76, s76, {s(S_T)}')
        p.e(f's_lshl_b32 {s(S_T)}, s76, 13')
        srd(p, SRD_V, S_V, S_T, KV_BYTES)
        p.e(f's_lshl_b32 {s(S_T2)}, {s(S_HP)}, 14')
        p.e(f's_add_u32 {s(S_T)}, {s(S_T)}, {s(S_T2)}')
        srd(p, SRD_K, S_K, S_T, KV_BYTES)
        p.e(f's_mul_i32 {s(S_T)}, {s(S_XQ)}, {1024 * 1280}')
        p.e(f's_mul_i32 {s(S_T2)}, {s(S_CT)}, 320')
        p.e(f's_add_u32 {s(S_T)}, {s(S_T)}, {s(S_T2)}')
        srd(p, SRD_WO, S_WO, S_T, W_BYTES)
        p.e(f's_lshl_b32 {s(S_T)}, {s(S_BR)}, 10')
        p.e(f's_add_u32 {s(S_T)}, {s(S_T)}, s76')
        p.e(f's_lshl_b32 {s(S_T)}, {s(S_T)}, 11')
        srd(p, SRD_P, S_WS, S_T, 4 << 20)

    def srds_common():
        p.e(f's_and_b32 {s(S_T)}, s2, 0xfc')
        p.e(f's_mul_i32 {s(S_T)}, {s(S_T)}, 40960')
        p.e(f's_add_u32 {s(S_T)}, {s(S_T)}, {WS_XB}')
        srd(p, SRD_XB, S_WS, S_T, WS_XB + 256 * 40960)
        p.e(f's_mov_b32 {s(S_T)}, {WS_FL}')
        srd(p, SRD_FL, S_WS, S_T, WS_FL + FL_SIZE)
        p.e(f's_lshr_b32 {s(S_T)}, {s(S_XQ)}, 1')
        p.e(f's_lshl_b32 {s(S_T2)}, {s(S_BG)}, 1')
        p.e(f's_add_u32 {s(S_T)}, {s(S_T)}, {s(S_T2)}')
        p.e(f's_mul_i32 {s(S_T)}, {s(S_T)}, {64 * 2560}')
        p.e(f's_lshl_b32 {s(S_T2)}, {s(S_BR)}, 2')
        p.e(f's_add_u32 {s(S_T2)}, {s(S_T2)}, {s(S_CT)}')
        p.e(f's_lshl_b32 {s(S_T2)}, {s(S_T2)}, 1')
        p.e(f's_and_b32 s76, {s(S_XQ)}, 1')
        p.e(f's_add_u32 {s(S_T2)}, {s(S_T2)}, s76')
        p.e(f's_mul_i32 {s(S_T2)}, {s(S_T2)}, 160')
        p.e(f's_add_u32 {s(S_T)}, {s(S_T)}, {s(S_T2)}')
        srd(p, SRD_OUT, S_OUT, S_T, OUT_BYTES)
        p.e(f's_lshl_b32 {s(S_T)}, {s(S_BR)}, 3')
        p.e(f's_add_u32 {s(S_T)}, {s(S_T)}, {s(S_BG)}')
        p.e(f's_lshl_b32 {s(S_T)}, {s(S_T)}, 7')
        p.e(f's_add_u32 {s(S_EP)}, {s(S_T)}, {FL_EP}')
        p.e(f's_load_dword {s(S_TAG)}, {s(SRD_FL, 2)}, {s(S_EP)}')

    def make_tag():
        p.e('s_waitcnt lgkmcnt(0)')
        p.e(f's_mul_i32 {s(S_TAG)}, {s(S_TAG)}, 0x9E3779B1')
        p.e(f's_add_u32 {s(S_TAG)}, {s(S_TAG)}, 0x7F4A7C15')

    def spin(label, vdst, vaddr, soff, mask_s, first_issued=False):
        p.e('s_mov_b32 s86, 0')
        if first_issued:
            p.e(f's_branch {label}_chk')
        p.e(f'{label}:')
        p.e(f'buffer_load_dword {v(vdst)}, {v(vaddr)}, {s(SRD_FL, 4)}, {s(soff)} offen sc1')
        p.e('s_waitcnt vmcnt(0)')
        p.e(f'{label}_chk:')
        p.e(f'v_cmp_eq_u32 vcc, {s(S_TAG)}, {v(vdst)}')
        p.e('s_add_u32 s86, s86, 1')
        p.e(f's_or_b64 vcc, vcc, {s(mask_s, 2)}')
        p.e('s_cmp_eq_u64 vcc, -1')
        p.e(f's_cbranch_scc1 {label}_ok')
        p.e('s_cmp_lt_u32 s86, 200000')
        p.e(f's_cbranch_scc1 {label}')
        p.e(f'{label}_ok:')

    def reduce_setup(tmp, vlane16, vout, n_s):
        p.e(f's_lshl_b32 s80, s2, {9 if o.seplines else 7}')
        p.e(f's_add_u32 s80, s80, {FL_XF}')
        p.e('s_mov_b32 s82, 0x11111111')
        p.e(f's_lshl_b32 s82, s82, {s(S_XQ)}')
        p.e('s_mov_b32 s83, s82')
        p.e(f's_mul_i32 s81, {s(S_XQ)}, 40960')
        p.e(f's_lshl_b32 s84, {s(n_s)}, 11')
        p.e('s_add_u32 s81, s81, s84')
        p.e(f's_lshl_b32 s79, {s(n_s)}, 5')
        p.e(f's_add_u32 s85, s79, {32 * 2560}')
        for d in range(3):
            p.e(f's_xor_b32 s84, {s(S_XQ)}, {d + 1}')
            p.e('s_mul_i32 s84, s84, 10240')
            p.e(f's_add_u32 {s(76 + d)}, s81, s84')
        p.e(f'v_bfe_u32 {v(tmp)}, {v(vlane16)}, 4, 5')
        p.e(f'v_mul_u32_u24 {v(vout)}, 2560, {v(tmp)}')
        p.e(f'v_lshrrev_b32 {v(tmp)}, 9, {v(vlane16)}')
        p.e(f'v_lshl_add_u32 {v(vout)}, {v(tmp)}, 4, {v(vout)}')
        p.e(f'v_lshrrev_b32 {v(tmp)}, 2, {v(vlane16)}')
        p.e(f'v_and_b32 {v(tmp)}, 12, {v(tmp)}')
        if o.seplines:
            p.e(f'v_lshlrev_b32 {v(tmp)}, 5, {v(tmp)}')

    def reduce_run(acc, ld, tmp, vlane16, vout, label, sv=None):
        def loads(d):
            for h in range(2):
                p.e(f'buffer_load_dwordx4 {v(ld + d * 8 + h * 4, 4)}, {v(vlane16)}, {s(SRD_XB, 4)}, {s(76 + d)} offen offset:{h * 1024} sc1')
        if not o.sent and o.mpoll:
            NP = o.mpoll
            for i in range(NP):
                p.e(f'buffer_load_dword {v(ld + i)}, {v(tmp)}, {s(SRD_FL, 4)}, s80 offen sc1')
                if i < NP - 1: p.e(f's_sleep {o.mgap}')
            p.e('s_mov_b32 s86, 0')
            p.e(f'{label}:')
            for i in range(NP):
                p.e(f's_waitcnt vmcnt({NP - 1})')
                p.e(f'v_cmp_eq_u32 vcc, {s(S_TAG)}, {v(ld + i)}')
                p.e('s_add_u32 s86, s86, 1')
                p.e('s_or_b64 vcc, vcc, s[82:83]')
                p.e('s_cmp_eq_u64 vcc, -1')
                p.e(f's_cbranch_scc1 {label}_ok')
                p.e(f'buffer_load_dword {v(ld + i)}, {v(tmp)}, {s(SRD_FL, 4)}, s80 offen sc1')
            p.e('s_cmp_lt_u32 s86, 400000')
            p.e(f's_cbranch_scc1 {label}')
            p.e(f'{label}_ok:')
            if sv is not None: st.dyn(sv)
        elif not o.sent and o.onepoll:
            if sv is not None:
                p.e(f's_cmp_lg_u32 {s(S_WV)}, 4')
                p.e(f's_cbranch_scc1 {label}_ok')
                spin(label, tmp + 1, tmp, 80, 82)
            p.e('s_barrier')
            if sv is not None: st.dyn(sv)
        elif not o.sent:
            spin(label, tmp + 1, tmp, 80, 82)
            if sv is not None: st.dyn(sv)
        for d in range(3):
            loads(d)
        p.e('s_mov_b32 s86, 0')
        for d in range(3):
            p.e(f's_waitcnt vmcnt({4 - 2 * d})')
            if o.sent:
                b = ld + d * 8
                p.e(f's_branch {label}_c{d}')
                p.e(f'{label}_r{d}:')
                if o.xsleep: p.e(f's_sleep {o.xsleep}')
                for dd in range(d, 3):
                    loads(dd)
                p.e(f's_waitcnt vmcnt({4 - 2 * d})')
                p.e(f'{label}_c{d}:')
                p.e(f'v_max3_u32 {v(tmp)}, {v(b)}, {v(b + 1)}, {v(b + 2)}')
                p.e(f'v_max3_u32 {v(tmp + 1)}, {v(b + 3)}, {v(b + 4)}, {v(b + 5)}')
                p.e(f'v_max3_u32 {v(tmp)}, {v(tmp)}, {v(b + 6)}, {v(b + 7)}')
                p.e(f'v_max_u32 {v(tmp)}, {v(tmp)}, {v(tmp + 1)}')
                p.e(f'v_cmp_eq_u32 vcc, -1, {v(tmp)}')
                p.e('s_add_u32 s86, s86, 1')
                p.e('s_cmp_eq_u64 vcc, 0')
                p.e(f's_cbranch_scc1 {label}_k{d}')
                p.e('s_cmp_lt_u32 s86, 30000')
                p.e(f's_cbranch_scc1 {label}_r{d}')
                p.e(f'{label}_k{d}:')
                if d == 2 and sv is not None: st.dyn(sv)
            for r in range(8):
                t_ = tmp + 2 + 2 * (r & 1)
                p.e(f'v_lshlrev_b32 {v(t_)}, 16, {v(ld + d * 8 + r)}')
                p.e(f'v_and_b32 {v(t_ + 1)}, 0xffff0000, {v(ld + d * 8 + r)}')
                p.e(f'v_pk_add_f32 {v(acc + 2 * r, 2)}, {v(acc + 2 * r, 2)}, {v(t_, 2)}')
        for r in range(8):
            p.e(f'v_cvt_pk_bf16_f32 {v(acc + r)}, {v(acc + 2 * r)}, {v(acc + 2 * r + 1)}')
        for h in range(2):
            p.e(f'v_permlane16_swap_b32 {v(acc + 4 * h)}, {v(acc + 4 * h + 2)}')
            p.e(f'v_permlane16_swap_b32 {v(acc + 4 * h + 1)}, {v(acc + 4 * h + 3)}')
        if sv is not None: st.dyn(sv)
        p.e(f'buffer_store_dwordx4 {v(acc, 4)}, {v(vout)}, {s(SRD_OUT, 4)}, s79 offen')
        p.e(f'buffer_store_dwordx4 {v(acc + 4, 4)}, {v(vout)}, {s(SRD_OUT, 4)}, s85 offen')
        if sv is not None and o.stamps:
            p.e('s_waitcnt vmcnt(0)')

    l0 = p.pos()
    XO = 10; WQO = 14; KO = 22; WO = 26; VO = 32; PO = 36; TO = 37; LN16 = 38; FA = 39; VOUT = 40; PR = 44; SV = 200
    KP = 64; VP = 128
    S_LW, S_SLOT, S_SX, S_SW, S_LX, S_LWQ = 39, 77, 78, 79, 80, 81
    S_LWO, S_LV, S_PL, S_TV, S_PF, S_KG, S_KL = 4, 5, 6, 7, 87, 84, 85
    p.e(f's_sub_u32 {s(S_LW)}, {s(S_WV)}, 4')
    p.e('v_lshrrev_b32 v3, 3, v2')
    p.e(f's_lshl_b32 {s(S_T)}, {s(S_LW)}, 5')
    p.e(f'v_add_u32 v3, {s(S_T)}, v3')
    p.e('v_mul_u32_u24 v3, 1280, v3')
    p.e('v_and_b32 v4, 7, v2')
    p.e('v_lshrrev_b32 v5, 4, v2')
    p.e('v_xor_b32 v4, v4, v5')
    p.e('v_lshl_add_u32 v6, v4, 4, v3')
    p.e('v_xor_b32 v7, 64, v6')
    for j in range(4):
        p.e(f'v_add_u32 {v(XO + j)}, {j * (8 * 1280 - 1024)}, {"v7" if j & 1 else "v6"}')
    p.e('v_lshrrev_b32 v3, 5, v2')
    p.e('v_and_b32 v4, 31, v2')
    p.e('v_lshlrev_b32 v5, 1, v3')
    p.e('v_xor_b32 v4, v4, v5')
    p.e(f's_lshl_b32 {s(S_T)}, {s(S_LW)}, 4')
    p.e(f'v_add_u32 v3, {s(S_T)}, v3')
    p.e('v_lshlrev_b32 v3, 13, v3')
    p.e('v_lshl_add_u32 v6, v4, 4, v3')
    for j in range(8):
        x = (((j & 1) << 1) | ((j >> 2) << 2)) << 5
        if x:
            p.e(f'v_xor_b32 v7, {x}, v6')
        p.e(f'v_add_u32 {v(WQO + j)}, {j * 16384 - 1024 * (j & 3)}, {"v7" if x else "v6"}')
    p.e(f's_lshl_b32 {s(S_LX)}, {s(S_LW)}, 12')
    p.e(f's_lshl_b32 {s(S_LWQ)}, {s(S_LW)}, 13')
    p.e(f's_add_u32 {s(S_LWQ)}, {s(S_LWQ)}, 16384')
    if o.grp == 2:
        p.e(f's_and_b32 {s(S_T)}, {s(S_CT)}, 1')
        p.e(f's_mul_i32 {s(S_SX)}, {s(S_T)}, {5 * 128}')
    elif o.grp == 4:
        p.e(f's_mul_i32 {s(S_T)}, {s(S_CT)}, 5')
        p.e(f's_lshr_b32 {s(S_T)}, {s(S_T)}, 1')
        p.e(f's_lshl_b32 {s(S_SX)}, {s(S_T)}, 7')
    else:
        p.e(f's_mov_b32 {s(S_SX)}, 0')
    p.e(f's_mul_i32 {s(S_T)}, {s(S_BG)}, {128 * 1280}')
    p.e(f's_lshl_b32 {s(S_T2)}, {s(S_XQ)}, 2')
    p.e(f's_add_u32 {s(S_T2)}, {s(S_T2)}, {s(S_HP)}')
    p.e(f's_lshl_b32 {s(S_T2)}, {s(S_T2)}, 9')
    p.e('s_waitcnt lgkmcnt(0)')
    srd(p, SRD_WQ, S_WQ, S_T2, W_BYTES)
    srd(p, SRD_X, S_X, S_T, X_BYTES)

    class VM:
        def __init__(self): self.q = []
        def add(self, tag, n=1): self.q += [tag] * n
        def wait(self, *tags):
            last = -1
            for i, x in enumerate(self.q):
                if x in tags: last = i
            if last < 0: return
            n = len(self.q) - 1 - last
            assert n < 64
            p.e(f's_waitcnt vmcnt({n})')
            self.q = self.q[len(self.q) - n:] if n else []
    vm = VM()

    def issue1(t):
        slot = ((t + 1) % 3) * SLOT
        p.e(f's_lshl_b32 {s(S_SW)}, {s(S_SX)}, 12')
        p.e(f's_add_u32 m0, {s(S_LWQ)}, {slot}')
        for j in range(4):
            p.e(f'buffer_load_dwordx4 {v(WQO + j)}, {s(SRD_WQ, 4)}, {s(S_SW)} offen offset:{1024 * j} lds')
        p.e('s_add_u32 m0, m0, 4096')
        for j in range(4):
            p.e(f'buffer_load_dwordx4 {v(WQO + 4 + j)}, {s(SRD_WQ, 4)}, {s(S_SW)} offen offset:{1024 * j} lds')
        p.e(f's_add_u32 m0, {s(S_LX)}, {slot}')
        for j in range(4):
            p.e(f'buffer_load_dwordx4 {v(XO + j)}, {s(SRD_X, 4)}, {s(S_SX)} offen offset:{1024 * j} lds')
        if t < 9:
            p.e(f's_add_u32 {s(S_SX)}, {s(S_SX)}, 128')
            p.e(f's_cmp_eq_u32 {s(S_SX)}, 1280')
            p.e(f's_cselect_b32 {s(S_SX)}, 0, {s(S_SX)}')
        vm.add(f'S{t}', 12)

    def bar(*tags):
        vm.wait(*tags)
        if not o.post: st.dyn(SV)
        p.e('s_barrier')
        if o.post: st.dyn(SV)

    def setup():
        srds_loader()
        srds_common()
        p.e(f's_and_b32 s82, {s(S_LW)}, 1')
        p.e(f's_lshr_b32 s83, {s(S_LW)}, 1')
        p.e(f's_lshl_b32 {s(S_KG)}, s83, 6')
        p.e(f's_add_u32 {s(S_KG)}, {s(S_KG)}, s82')
        p.e(f's_lshl_b32 {s(S_KG)}, {s(S_KG)}, 13')
        p.e('s_lshl_b32 s82, s82, 1')
        p.e('s_add_u32 s82, s82, s83')
        p.e('s_lshl_b32 s82, s82, 12')
        p.e(f's_add_u32 {s(S_KL)}, s82, {KB}')
        p.e('v_lshrrev_b32 v3, 4, v2')
        p.e('v_and_b32 v4, 15, v2')
        p.e('v_xor_b32 v4, v3, v4')
        p.e('v_lshlrev_b32 v4, 4, v4')
        p.e(f'v_lshl_add_u32 {v(KO)}, v3, 8, v4')
        for jj in range(1, 4):
            p.e(f'v_xor_b32 {v(KO + jj)}, {64 * jj}, {v(KO)}')
        p.e(f'v_lshlrev_b32 {v(LN16)}, 4, v2')
        p.e(f's_mul_i32 {s(S_T)}, {s(S_LW)}, 20480')
        p.e(f's_mov_b32 {s(S_T2)}, 52429')
        for j in range(5):
            p.e(f'v_add_u32 v3, {64 * j}, v2')
            p.e(f'v_mul_u32_u24 v4, {s(S_T2)}, v3')
            p.e('v_lshrrev_b32 v4, 20, v4')
            p.e('v_and_b32 v5, 8, v4')
            p.e('v_lshrrev_b32 v5, 2, v5')
            p.e('v_xor_b32 v3, v3, v5')
            p.e('v_mul_u32_u24 v4, 960, v4')
            p.e('v_lshl_add_u32 v4, v3, 4, v4')
            p.e(f'v_add_u32 v4, {s(S_T)}, v4')
            p.e(f'v_subrev_u32 {v(WO + j)}, {1024 * (j & 3)}, v4')
        p.e('v_lshrrev_b32 v3, 3, v2')
        p.e('v_lshlrev_b32 v3, 8, v3')
        p.e(f's_lshl_b32 {s(S_T)}, {s(S_LW)}, 18')
        p.e(f'v_add_u32 v3, {s(S_T)}, v3')
        p.e('v_and_b32 v4, 7, v2')
        p.e('v_lshrrev_b32 v5, 4, v2')
        p.e('v_xor_b32 v4, v4, v5')
        p.e('v_lshl_add_u32 v6, v4, 4, v3')
        p.e('v_xor_b32 v7, 64, v6')
        for j in range(4):
            p.e(f'v_add_u32 {v(VO + j)}, {1024 * j}, {"v7" if j & 1 else "v6"}')
        p.e(f's_lshl_b32 {s(S_T)}, {s(S_LW)}, 16')
        p.e(f'v_add_u32 {v(PO)}, {s(S_T)}, {v(LN16)}')
        p.e(f'v_and_b32 {v(FA)}, 3, v2')
        p.e(f'v_lshlrev_b32 {v(FA)}, 2, {v(FA)}')
        p.e(f's_mul_i32 {s(S_LWO)}, {s(S_LW)}, 5120')
        p.e(f's_lshl_b32 {s(S_LV)}, {s(S_LW)}, 12')
        p.e(f's_add_u32 {s(S_LV)}, {s(S_LV)}, {VOFF}')
        p.e(f's_lshl_b32 {s(S_PL)}, {s(S_LW)}, 11')
        p.e(f's_add_u32 {s(S_PL)}, {s(S_PL)}, {PBUF}')
        p.e(f's_lshl_b32 {s(S_TV)}, {s(S_HP)}, 1')
        p.e(f's_lshl_b32 {s(S_T)}, {s(S_BG)}, 3')
        p.e(f's_and_b32 {s(S_T2)}, s2, 7')
        p.e(f's_add_u32 {s(S_T)}, {s(S_T)}, {s(S_T2)}')
        p.e(f's_lshl_b32 {s(S_T)}, {s(S_T)}, 2')
        p.e(f's_add_u32 {s(S_T)}, {s(S_T)}, {s(S_LW)}')
        p.e(f's_lshl_b32 {s(S_PF)}, {s(S_T)}, 7')
        p.e(f'v_add_u32 {v(TO)}, {s(S_LV)}, {v(LN16)}')

    def headsel(i):
        if o.order == 'own':
            p.e(f's_add_u32 {s(S_T)}, {s(S_TV)}, {i}')
        else:
            p.e(f's_add_u32 {s(S_T)}, {s(S_TV)}, {2 * (i & 3) + (i >> 2)}')
        p.e(f's_and_b32 {s(S_T)}, {s(S_T)}, 7')

    def producer(i):
        return (i >> 1) if o.order == 'own' else (i & 3)
    NOWN = 2 if o.order == 'own' else 1
    vslot = {}

    def vsoff(T):
        headsel(T >> 1)
        p.e(f's_lshl_b32 {s(S_T)}, {s(S_T)}, 13')
        if T & 1:
            p.e(f's_add_u32 {s(S_T)}, {s(S_T)}, 128')

    nt_k = ' nt' if o.nt_k else ''
    done = set()
    nspin = [0]
    checked = [1]
    ldsw = set()

    def act(x):
        k, n = x[:2], (int(x[2:]) if len(x) > 2 else None)
        done.add(x)
        if k == 'kp':
            p.e(f's_add_u32 {s(S_T)}, {s(S_KG)}, {(n >> 1) * 32 * 8192 + (n & 1) * 4096}')
            for jj in range(4):
                p.e(f'buffer_load_dwordx4 {v(KP + 16 * n + 4 * jj, 4)}, {v(KO + jj)}, {s(SRD_K, 4)}, {s(S_T)} offen offset:{1024 * jj}{nt_k}')
            vm.add(f'K{n}', 4)
        elif k == 'kf':
            vm.wait(f'K{n}')
            p.e(f'v_add_u32 v3, {s(S_KL)}, {v(LN16)}')
            for jj in range(4):
                p.e(f'ds_write_b128 v3, {v(KP + 16 * n + 4 * jj, 4)} offset:{n * 16384 + jj * 1024}')
        elif k == 'kd':
            p.e(f's_add_u32 {s(S_T)}, {s(S_KG)}, {(n >> 1) * 32 * 8192 + (n & 1) * 4096}')
            p.e(f's_add_u32 m0, {s(S_KL)}, {n * 16384}')
            for jj in range(4):
                p.e(f'buffer_load_dwordx4 {v(KO + jj)}, {s(SRD_K, 4)}, {s(S_T)} offen offset:{1024 * jj}{nt_k} lds')
            vm.add('KD', 4)
            done.add(f'kf{n}')
        elif k == 'vp':
            vsoff(n)
            for j in range(4):
                p.e(f'buffer_load_dwordx4 {v(VP + 16 * (n & 3) + 64 * 0 + 4 * j, 4)}, {v(VO + j)}, {s(SRD_V, 4)}, {s(S_T)} offen offset:{1024 * j}')
            vm.add(f'V{n}', 4)
        elif k == 'vf':
            vm.wait(f'V{n}')
            if n & 3:
                p.e(f'v_add_u32 v3, {(n & 3) * STG}, {v(TO)}')
            for j in range(4):
                p.e(f'ds_write_b128 {"v3" if n & 3 else v(TO)}, {v(VP + 16 * (n & 3) + 4 * j, 4)} offset:{1024 * j}')
            ldsw.add(n)
        elif k == 'vd':
            vsoff(n)
            p.e(f's_add_u32 m0, {s(S_LV)}, {(n & 3) * STG}')
            for j in range(4):
                p.e(f'buffer_load_dwordx4 {v(VO + j)}, {s(SRD_V, 4)}, {s(S_T)} offen offset:{1024 * j} lds')
            vm.add(f'T{n}', 4)
        elif k == 'wd':
            headsel(n >> 1)
            p.e(f's_mul_i32 {s(S_T)}, {s(S_T)}, {128 * 1280}')
            if n & 1:
                p.e(f's_add_u32 {s(S_T)}, {s(S_T)}, {64 * 1280}')
            p.e(f's_add_u32 m0, {s(S_LWO)}, {(n & 3) * STG}')
            for j in range(4):
                p.e(f'buffer_load_dwordx4 {v(WO + j)}, {s(SRD_WO, 4)}, {s(S_T)} offen offset:{1024 * j} lds')
            p.e('s_add_u32 m0, m0, 4096')
            p.e(f'buffer_load_dwordx4 {v(WO + 4)}, {s(SRD_WO, 4)}, {s(S_T)} offen lds')
            vm.add(f'T{n}', 5)
        elif k == 'wp':
            headsel(n >> 1)
            p.e(f's_mul_i32 {s(S_T)}, {s(S_T)}, {128 * 1280}')
            if n & 1:
                p.e(f's_add_u32 {s(S_T)}, {s(S_T)}, {64 * 1280}')
            for j in range(5):
                p.e(f'buffer_load_dwordx4 {v(204 + 20 * (n & 1) + 4 * j, 4)}, {v(WO + j)}, {s(SRD_WO, 4)}, {s(S_T)} offen offset:{1024 * (j & 3)}')
            vm.add(f'W{n}', 5)
        elif k == 'wf':
            vm.wait(f'W{n}')
            p.e(f's_add_u32 {s(S_T)}, {s(S_LWO)}, {(n & 3) * STG}')
            p.e(f'v_add_u32 v3, {s(S_T)}, {v(LN16)}')
            for j in range(5):
                p.e(f'ds_write_b128 v3, {v(204 + 20 * (n & 1) + 4 * j, 4)} offset:{1024 * j}')
            done.add(f'wd{n}')
            ldsw.add(n)
        elif k == 'pr':
            p.e(f's_setprio {n}')
        elif k == 'td':
            act(f'vd{n}'); act(f'wd{n}')
        elif k == 'pd':
            headsel(n)
            p.e(f's_lshl_b32 {s(S_T)}, {s(S_T)}, 11')
            p.e(f's_add_u32 m0, {s(S_PL)}, {(n & 1) * 8192}')
            for j in range(2):
                p.e(f'buffer_load_dwordx4 {v(PO)}, {s(SRD_P, 4)}, {s(S_T)} offen offset:{1024 * j} sc1 lds')
            vm.add(f'P{n}', 2)
        elif k == 'pp':
            p.e(f'v_add_u32 v3, {s(S_PL)}, {v(LN16)}')
            for q in range(4):
                p.e(f'ds_read_b128 {v(PR + 4 * q, 4)}, v3 offset:{(q >> 1) * 8192 + (q & 1) * 1024}')
            p.e(f's_lshl_b32 {s(S_T)}, {s(S_HP)}, 12')
            for q in range(4):
                p.e(f'buffer_store_dwordx4 {v(PR + 4 * q, 4)}, {v(PO)}, {s(SRD_P, 4)}, {s(S_T)} offen offset:{q * 1024} sc1')
            vm.add('PS', 4)
        elif k == 'pf':
            assert 'pp' in done
            p.e(f'v_mov_b32 v4, {s(S_TAG)}')
            p.e('v_mov_b32 v5, 0')
            p.e(f's_lshl_b32 {s(S_T)}, {s(S_HP)}, 2')
            p.e(f's_add_u32 {s(S_T)}, {s(S_T)}, {s(S_PF)}')
            vm.wait('PS')
            p.e(f'buffer_store_dword v4, v5, {s(SRD_FL, 4)}, {s(S_T)} offen sc1')
            vm.add('FL')
        elif k == 'po':
            p.e(f'buffer_load_dword v6, {v(FA)}, {s(SRD_FL, 4)}, {s(S_PF)} offen sc1')
            vm.add('PL')
        elif k == 'ck':
            assert 'pf' in done
            p.e('s_mov_b32 s78, 0')
            for d in range(4):
                if n >> d & 1:
                    p.e(f's_add_u32 {s(S_T)}, {s(S_HP)}, {d}')
                    p.e(f's_and_b32 {s(S_T)}, {s(S_T)}, 3')
                    p.e(f's_lshl_b32 {s(S_T)}, 0x11111111, {s(S_T)}')
                    p.e(f's_or_b32 s78, s78, {s(S_T)}')
            p.e('s_not_b32 s78, s78')
            p.e('s_mov_b32 s79, s78')
            vm.wait('PL')
            nspin[0] += 1
            spin(f'L_pspin{nspin[0]}', 6, FA, S_PF, 78, first_issued=True)
            checked[0] |= n
            if not o.post: st.dyn(SV)
        elif k == 'xf':
            if 'xfinit' not in done:
                done.add('xfinit')
                for r in range(4):
                    p.e(f'v_mov_b32 {v(60 + r)}, -1')
                p.e(f's_mul_i32 s82, {s(S_XQ)}, 40960')
                p.e(f's_lshl_b32 {s(S_T)}, {s(S_LW)}, 11')
                p.e(f's_add_u32 s83, s82, {s(S_T)}')
                p.e(f's_lshl_b32 {s(S_T)}, {s(S_LW)}, 9')
                p.e(f's_add_u32 s82, s82, {s(S_T)}')
                p.e('s_add_u32 s82, s82, 8192')
                p.e(f'v_lshlrev_b32 v7, 3, v2')
            p.e(f's_xor_b32 {s(S_T)}, {s(S_XQ)}, {n + 1}')
            p.e(f's_mul_i32 {s(S_T)}, {s(S_T)}, 10240')
            p.e(f's_add_u32 {s(S_T2)}, {s(S_T)}, s83')
            for h in range(2):
                p.e(f'buffer_store_dwordx4 v[60:63], {v(LN16)}, {s(SRD_XB, 4)}, {s(S_T2)} offen offset:{h * 1024} sc1')
            p.e(f's_add_u32 {s(S_T2)}, {s(S_T)}, s82')
            p.e(f'buffer_store_dwordx2 v[60:61], v7, {s(SRD_XB, 4)}, {s(S_T2)} offen sc1')
            vm.add('XF', 3)
        elif k == 'xr':
            assert all(f'xf{i}' in done for i in range(3)) and checked[0] == 15
            p.e(f's_lshr_b32 s80, s2, 2')
            p.e('s_lshl_b32 s80, s80, 7')
            p.e(f's_add_u32 s80, s80, {FL_XF}')
            p.e(f's_lshl_b32 {s(S_T)}, {s(S_XQ)}, 2')
            p.e(f's_add_u32 {s(S_T)}, {s(S_T)}, {s(S_LW)}')
            p.e(f's_lshl_b32 {s(S_T)}, {s(S_T)}, 2')
            p.e(f's_add_u32 {s(S_T)}, {s(S_T)}, s80')
            p.e(f'v_and_b32 v8, 15, v2')
            p.e('v_lshlrev_b32 v8, 2, v8')
            vm.wait('XF')
            p.e(f'buffer_store_dword v4, v5, {s(SRD_FL, 4)}, {s(S_T)} offen sc1')
            vm.add('FL')
        elif k == 'xo':
            assert 'xr' in done
            p.e(f'buffer_load_dword v6, v8, {s(SRD_FL, 4)}, s80 offen sc1')
            vm.add('XL')
        elif k == 'xc':
            p.e('s_mov_b64 s[78:79], 0')
            vm.wait('XL')
            spin('L_xrspin', 6, 8, 80, 78, first_issued=True)
        else:
            raise ValueError(x)

    st.dyn(SV)
    issue1(0)
    setup()
    issue1(1)
    make_tag()
    traces_p1 = []
    ngrp = len(o.ksched)
    if ngrp > 1:
        p.e(f's_and_b32 {s(S_T)}, {s(S_BG)}, {ngrp - 1}')
        for gi in range(1, ngrp):
            p.e(f's_cmp_eq_u32 {s(S_T)}, {gi}')
            p.e(f's_cbranch_scc1 L_kg{gi}')
    l1b = p.pos()
    q0 = list(vm.q)
    endq = []
    for gi, ks in enumerate(o.ksched):
        if gi >= 1:
            p.e(f'L_kg{gi}:')
        ga = p.pos()
        vm.q = list(q0)
        nxt = 2
        for t in range(2, 10):
            assert nxt > t - 2
            bar(f'S{t - 2}')
            acts = list(ks.get(t, []))
            if 'S' not in acts and 'N' not in acts: acts = ['S'] + acts
            for x in acts:
                if x == 'N':
                    pass
                elif x == 'S':
                    assert nxt <= t
                    issue1(nxt); nxt += 1
                else:
                    assert x[:2] in ('kp', 'vp', 'wp') or x in ('kf3', 'kd3'), x
                    act(x)
        assert nxt == 10
        bar('S8')
        endq.append(list(vm.q))
        if gi < ngrp - 1:
            p.e('s_branch L_kjoin')
        traces_p1.append((ga, p.pos()))
    if ngrp > 1:
        p.e('L_kjoin:')
    endq.sort(key=len)
    assert all(endq[-1][len(endq[-1]) - len(x):] == x for x in endq if x), endq
    vm.q = endq[-1]
    l2 = p.pos()
    plan_ = dict(o.plan)
    EARLY = {'B8': [], 'B9': ['wd0', 'vd0', 'vf0', 'td0', 'wf0'], 'B10': ['wd0', 'vd0', 'vf0', 'td0', 'wf0', 'wd1', 'vd1', 'vf1', 'td1', 'wf1', 'wd2']}

    EARLY['BK'] = EARLY['B10'] + ['vd2', 'vf2', 'td2', 'wd3', 'vd3', 'vf3', 'td3']

    def run_early(key):
        for x in plan_.get(key, []):
            if x[:2] in ('wd', 'vd', 'vf', 'td', 'wf'):
                assert x in EARLY[key], (key, x)
            assert x[:2] not in ('pd', 'pp', 'pf')
            act(x)

    run_early('B8')
    bar('S9')
    run_early('B9')
    assert all(f'kf{g}' in done for g in range(4))
    p.e('s_waitcnt lgkmcnt(0)')
    bar('KD')
    run_early('B10')
    if o.bk:
        bar()
        run_early('BK')
    for T in range(0, 16):
        single = (T >> 1) >= o.n2b
        if single and T & 1:
            assert not plan_.get(f'P{T}'), T
            continue
        tags = []
        for TT in ([T, T + 1] if single else [T]):
            assert f'vf{TT}' in done or f'vd{TT}' in done, TT
            assert f'wd{TT}' in done, TT
            tags.append(f'T{TT}')
        need = [T // 2 - 1] if T % 2 == 0 and T >= 2 else []
        if T == 15: need = need + [7]
        for i in need:
            if i >= NOWN:
                assert f'pd{i}' in done, (T, i)
                tags.append(f'P{i}')
        if T in ldsw or (single and T + 1 in ldsw):
            p.e('s_waitcnt lgkmcnt(0)')
            ldsw.clear()
        if T == 15 and o.sent: assert 'xc' in done
        bar(*tags)
        for x in plan_.get(f'P{T}', []):
            k, n = x[:2], (int(x[2:]) if len(x) > 2 else None)
            if k in ('vd', 'wd', 'td', 'vf', 'wf'): assert n - 4 < T, (T, x)
            if k == 'pd':
                assert 2 * (n - 2) + 3 <= T, (T, x)
                assert checked[0] >> producer(n) & 1, (T, x)
                assert 'pf' in done
                assert 'pp' in done
            act(x)
    if o.n2b < 8:
        assert 'pd7' in done
        if o.sent: assert 'xc' in done
        bar('P7')
    reduce_setup(42, LN16, VOUT, S_LW)
    p.e(f's_lshl_b32 {s(S_T)}, {s(S_LW)}, 12')
    p.e(f'v_add_u32 v3, {s(S_T)}, {v(LN16)}')
    p.e('s_barrier')
    st.dyn(SV)
    for q in range(4):
        p.e(f'ds_read_b128 {v(48 + 4 * q, 4)}, v3 offset:{q * 1024}')
    reduce_run(48, 64, 42, LN16, VOUT, 'L_xspin_l', SV)
    st.flush(SV, 201)
    p.e('L_end:')
    p.e('s_endpgm')
    l5 = p.pos()
    for tr in traces_p1:
        p.add_trace([(t0, t1), (l0, l1b), tr, (l2, l5)])

    p.e('L_compute:')
    c0 = p.pos()
    ACC = 0; AF = 128; BF = 160; AA = 192; BA = 200; SR = 212
    LN16c, KA, PD, WA, VA, PA, VTAG, VZ, SVC = 244, 245, 247, 248, 250, 252, 253, 254, 255
    L = 'v202'
    p.e(f'v_mov_b32 {L}, v2')
    if o.codepf:
        p.e(f's_cmp_lt_u32 {s(S_WV)}, {o.codepf}')
        p.e('s_cbranch_scc0 L_nopf')
        p.e(f's_and_b32 {s(S_T)}, {s(S_BG)}, {o.codepf_mask}')
        p.e(f's_cmp_eq_u32 {s(S_T)}, 0')
        p.e('s_cbranch_scc0 L_nopf')
        p.e('s_getpc_b64 s[76:77]')
        p.e('L_pc:')
        p.e(f's_sub_u32 s76, s76, L_pc-{KN}')
        p.e('s_subb_u32 s77, s77, 0')
        p.e('v_lshlrev_b32 v210, 7, v0')
        p.e(f'v_min_u32 v210, L_codeend-{KN}-4, v210')
        p.e('global_load_dword v246, v210, s[76:77]')
        p.e('L_nopf:')
    S_HH, S_BP = 77, 78
    p.e(f's_and_b32 {s(S_HH)}, {s(S_WV)}, 1')
    p.e(f's_lshr_b32 {s(S_BP)}, {s(S_WV)}, 1')
    p.e(f'v_bfe_u32 v203, {L}, 2, 2')
    p.e(f'v_lshrrev_b32 v204, 4, {L}')
    p.e(f'v_and_b32 v205, 3, {L}')
    p.e(f'v_and_b32 v206, 15, {L}')
    p.e('v_lshl_add_u32 v207, v204, 3, v203')
    p.e('v_and_b32 v208, 1, v204')
    p.e('v_lshl_add_u32 v209, v208, 2, v203')
    p.e('v_lshlrev_b32 v209, 5, v209')
    p.e('v_lshl_add_u32 v209, v207, 9, v209')
    p.e('v_lshl_add_u32 v209, v205, 3, v209')
    p.e(f's_lshl_b32 {s(S_T)}, {s(S_HH)}, 8')
    p.e(f's_add_u32 {s(S_T)}, {s(S_T)}, {16384 + SLOT}')
    p.e(f'v_add_u32 {v(AA)}, {s(S_T)}, v209')
    for j in range(1, 8):
        p.e(f'v_xor_b32 {v(AA + j)}, {j * 32}, {v(AA)}')
    p.e('v_lshrrev_b32 v209, 1, v206')
    p.e('v_xor_b32 v209, v209, v204')
    p.e('v_lshlrev_b32 v209, 4, v209')
    p.e('v_lshl_add_u32 v209, v206, 7, v209')
    p.e(f's_lshl_b32 {s(S_T)}, {s(S_BP)}, 13')
    p.e(f's_add_u32 {s(S_T2)}, {s(S_T)}, {SLOT}')
    p.e(f'v_add_u32 {v(BA)}, {s(S_T2)}, v209')
    p.e(f'v_xor_b32 {v(BA + 1)}, 64, {v(BA)}')
    p.e(f's_add_u32 {s(S_T2)}, {s(S_T)}, {VOFF}')
    p.e(f'v_add_u32 {v(VA)}, {s(S_T2)}, v209')
    p.e(f'v_xor_b32 {v(VA + 1)}, 64, {v(VA)}')
    p.e('v_lshrrev_b32 v209, 1, v204')
    p.e('v_xor_b32 v209, v209, v206')
    p.e('v_lshlrev_b32 v209, 4, v209')
    p.e('v_lshl_add_u32 v209, v206, 8, v209')
    p.e('v_lshl_add_u32 v209, v208, 3, v209')
    p.e(f's_lshl_b32 {s(S_T)}, {s(S_HH)}, 1')
    p.e(f's_add_u32 {s(S_T)}, {s(S_T)}, {s(S_BP)}')
    p.e(f's_lshl_b32 {s(S_T)}, {s(S_T)}, 12')
    p.e(f's_add_u32 {s(S_T2)}, {s(S_T)}, {KB}')
    p.e(f'v_add_u32 {v(KA)}, {s(S_T2)}, v209')
    p.e(f'v_lshlrev_b32 {v(LN16c)}, 4, {L}')
    p.e(f's_add_u32 {s(S_T2)}, {s(S_T)}, {PBUF}')
    p.e(f'v_add_u32 {v(PD)}, {s(S_T2)}, {v(LN16c)}')
    p.e(f's_lshl_b32 {s(S_T)}, {s(S_BP)}, 12')
    p.e(f's_add_u32 {s(S_T)}, {s(S_T)}, {PBUF}')
    p.e(f'v_add_u32 {v(PA)}, {s(S_T)}, {v(LN16c)}')
    p.e('v_mul_u32_u24 v209, 320, v207')
    p.e('v_lshl_add_u32 v209, v205, 3, v209')
    p.e(f's_mul_i32 {s(S_T)}, {s(S_HH)}, 160')
    p.e(f'v_add_u32 v209, {s(S_T)}, v209')
    p.e(f's_mul_i32 {s(S_T)}, {s(S_HH)}, -64')
    p.e(f's_add_u32 {s(S_T)}, {s(S_T)}, 32')
    p.e(f'v_mul_lo_u32 v210, {s(S_T)}, v208')
    p.e(f'v_add_u32 {v(WA)}, v209, v210')
    p.e(f'v_sub_u32 {v(WA + 1)}, v209, v210')
    for r in range(128):
        p.e(f'v_mov_b32 {v(ACC + r)}, 0')
    p.e('s_waitcnt lgkmcnt(0)')
    srds_common()
    make_tag()
    p.e(f'v_mov_b32 {v(VTAG)}, {s(S_TAG)}')
    p.e(f'v_mov_b32 {v(VZ)}, 0')
    p.e(f's_mov_b32 {s(S_CNT)}, 0')
    p.e(f's_mov_b32 {s(S_POS)}, 1')
    p.e(f's_mov_b32 {s(S_STEP)}, {SLOT}')
    cexp = (128 ** -0.5) * math.log2(math.e)
    p.e(f's_mov_b32 {s(S_C)}, {f32hex(cexp)}')
    p.e(f's_mov_b32 {s(S_C + 1)}, {f32hex(cexp)}')

    def acc(j, qt):
        return ACC + ((j >> 1) * 4 + qt) * 8 + (j & 1) * 4

    def a_reads(f):
        tp, j = f >> 3, f & 7
        return [f'ds_read_b64_tr_b16 {v(AF + j * 4 + 2 * u, 2)}, {v(AA + j)} offset:{(32 * tp + 4 * u) * 512}' for u in range(2)]

    def b_read(tp, qt):
        return f'ds_read_b128 {v(BF + tp * 16 + qt * 4, 4)}, {v(BA + tp)} offset:{qt * 2048}'

    def m1(m):
        tp, j, qt = m >> 5, (m >> 2) & 7, m & 3
        if o.hack_skip1 and (m % o.hack_skip1[1]) < o.hack_skip1[0]:
            return 's_nop 1'
        return f'{M16} {v(acc(j, qt), 4)}, {v(AF + j * 4, 4)}, {v(BF + tp * 16 + qt * 4, 4)}, {v(acc(j, qt), 4)}'

    bB = o.bB
    head_reads = [(b_read(0, 0), bB, 63)] + [(r, bB, 63) for r in a_reads(0)] + [(b_read(0, q), bB, 63) for q in (1, 2, 3)]
    nh = 0
    for f in range(1, 8):
        lo = max(bB, 4 * (f + 8) + 3)
        if len(head_reads) + 2 > 63 - bB or lo > 62:
            break
        head_reads += [(r, lo, 63) for r in a_reads(f)]
        nh = f
    G1 = Gaps(64)
    G1.fix(bB, ['s_waitcnt lgkmcnt(0)', 's_barrier'])
    body = []
    for f in range(nh + 1, 16):
        lo = max(0, 4 * (f - 8) + 3)
        body += [(r, lo, min(4 * f - 8, bB - 6)) for r in a_reads(f)]
        if f == 8:
            body += [(b_read(1, q), 0, 24) for q in range(4)]
    gend = G1.place(body)
    sal = [f's_add_u32 {s(S_POS)}, {s(S_POS)}, 1', f's_cmp_eq_u32 {s(S_POS)}, 3',
           f's_cselect_b32 {s(S_DELTA)}, {-2 * SLOT & 0xffffffff}, {s(S_STEP)}', f's_cselect_b32 {s(S_POS)}, 0, {s(S_POS)}',
           f's_add_u32 {s(S_CNT)}, {s(S_CNT)}, 1']
    G1.place([(x, 2, 30) for x in sal], step=2)
    advv = [f'v_add_u32 {v(a)}, {s(S_DELTA)}, {v(a)}' for a in list(range(AA, AA + 8)) + [BA, BA + 1]]
    G1.place([(x, gend, bB - 1) for x in advv], start=gend, step=0)
    G1.place([(f's_cmp_eq_u32 {s(S_CNT)}, 10', bB - 1, bB - 1)]) if G1.room(bB - 1, False) else G1.fix(bB - 1, [f's_cmp_eq_u32 {s(S_CNT)}, 10'])
    Gh = Gaps(64)
    Gh.place(head_reads, start=bB)

    st.dyn(SVC)
    p.e('s_barrier')
    st.dyn(SVC); st.dyn(SVC, True)
    for r, _, _ in head_reads:
        p.e(r)
    c1 = p.pos()
    p.e('L_c1:')
    for m in range(bB + 1):
        p.e(m1(m))
        for x in G1.g[m]:
            p.e(x)
    p.e('s_cbranch_scc1 L_c1_done')
    c1b = p.pos()
    for x in Gh.g[bB]:
        p.e(x)
    for m in range(bB + 1, 64):
        p.e(m1(m))
        for x in Gh.g[m]:
            p.e(x)
    p.e('s_branch L_c1')
    c2 = p.pos()
    p.e('L_c1_done:')
    st.dyn(SVC); st.dyn(SVC, True)
    assert bB == 47
    KF = [BF, AF, AF + 16, BF + 16]
    nd = 63 - bB
    ms = [m1(m) for m in range(bB + 1, 64)]
    for t in range(4):
        for bb in range(2):
            for a in range(2):
                for c in range(2):
                    d = SR + (bb * 2 + c) * 8 + a * 4
                    cc = '0' if t == 0 else v(d, 4)
                    ms.append(f'{M16} {v(d, 4)}, {v(KF[t] + (bb * 2 + a) * 4, 4)}, {v(ACC + (t * 4 + bb * 2 + c) * 8, 4)}, {cc}')
    kx = [f'v_xor_b32 {v(AA + i)}, {i * 32}, {v(KA)}' for i in range(8)]

    def k_reads(t):
        return [f'ds_read_b64 {v(KF[t] + g * 4 + 2 * h, 2)}, {v(AA + 2 * t + h)} offset:{g * 16384}' for g in range(4) for h in range(2)]

    def q_cvt(t):
        return [f'v_cvt_pk_bf16_f32 {v(ACC + (t * 4 + qt) * 8 + r)}, {v(ACC + (t * 4 + qt) * 8 + 2 * r)}, {v(ACC + (t * 4 + qt) * 8 + 2 * r + 1)}'
                for qt in range(4) for r in range(4)]

    for x in kx[:4]:
        p.e(x)
    GT = Gaps(len(ms), cap=3)
    GT.place([(r, 0, nd - 1) for r in k_reads(0) + k_reads(1)])
    GT.place([(x, 0, nd - 1) for x in q_cvt(0)] + [(x, 0, nd + 6) for x in kx[4:] + q_cvt(1)], step=0)
    GT.place([(r, nd - 1, nd + 14) for r in k_reads(2)] + [(r, nd - 1, nd + 22) for r in k_reads(3)], start=nd - 1)
    GT.place([(x, 10, nd + 14) for x in q_cvt(2)] + [(x, nd + 2, nd + 22) for x in q_cvt(3)], step=0)
    for m, x in enumerate(ms):
        p.e(x)
        for y in GT.g[m]:
            p.e(y)

    if o.bk:
        p.e('s_waitcnt lgkmcnt(0)')
        p.e('s_barrier')
    TM = AA
    U = [SR + u * 8 for u in range(4)]
    for u in range(4):
        p.e(f'v_max3_f32 {v(TM + u)}, {v(U[u])}, {v(U[u] + 1)}, {v(U[u] + 2)}')
    for u in range(4):
        p.e(f'v_max3_f32 {v(TM + 4 + u)}, {v(U[u] + 3)}, {v(U[u] + 4)}, {v(U[u] + 5)}')
    for u in range(4):
        p.e(f'v_max3_f32 {v(TM + u)}, {v(TM + u)}, {v(U[u] + 6)}, {v(U[u] + 7)}')
    for u in range(4):
        p.e(f'v_max_f32 {v(TM + u)}, {v(TM + u)}, {v(TM + 4 + u)}')

    def xreduce(op):
        a0, a1, a2, a3 = TM, TM + 1, TM + 2, TM + 3
        p.e(f'v_permlane32_swap_b32 {v(a0)}, {v(a1)}')
        p.e(f'v_permlane32_swap_b32 {v(a2)}, {v(a3)}')
        p.e(f'{op} {v(a0)}, {v(a0)}, {v(a1)}')
        p.e(f'{op} {v(a2)}, {v(a2)}, {v(a3)}')
        p.e(f'v_permlane16_swap_b32 {v(a0)}, {v(a2)}')
        p.e(f'{op} {v(a0)}, {v(a0)}, {v(a2)}')

    def xbcast():
        a0 = TM
        p.e(f'v_mov_b32 {v(TM + 4)}, {v(a0)}')
        p.e(f'v_permlane16_swap_b32 {v(a0)}, {v(TM + 4)}')
        p.e(f'v_mov_b32 {v(TM + 2)}, {v(a0)}')
        p.e(f'v_mov_b32 {v(TM + 6)}, {v(TM + 4)}')
        p.e(f'v_permlane32_swap_b32 {v(a0)}, {v(TM + 2)}')
        p.e(f'v_permlane32_swap_b32 {v(TM + 4)}, {v(TM + 6)}')

    xreduce('v_max_f32')
    p.e(f'v_mul_f32 {v(TM)}, {s(S_C)}, {v(TM)}')
    xbcast()
    for u in range(4):
        for r in range(0, 8, 2):
            p.e(f'v_pk_fma_f32 {v(U[u] + r, 2)}, {v(U[u] + r, 2)}, {s(S_C, 2)}, {v(TM + 2 * u, 2)} op_sel_hi:[1,1,0] neg_lo:[0,0,1] neg_hi:[0,0,1]')
    for u in range(4):
        for r in range(8):
            p.e(f'v_exp_f32 {v(U[u] + r)}, {v(U[u] + r)}')
    T2 = BF
    for u in range(4):
        p.e(f'v_pk_add_f32 {v(T2 + 4 * u, 2)}, {v(U[u], 2)}, {v(U[u] + 2, 2)}')
        p.e(f'v_pk_add_f32 {v(T2 + 4 * u + 2, 2)}, {v(U[u] + 4, 2)}, {v(U[u] + 6, 2)}')
    for u in range(4):
        p.e(f'v_pk_add_f32 {v(T2 + 4 * u, 2)}, {v(T2 + 4 * u, 2)}, {v(T2 + 4 * u + 2, 2)}')
    for u in range(4):
        p.e(f'v_add_f32 {v(TM + u)}, {v(T2 + 4 * u)}, {v(T2 + 4 * u + 1)}')
    xreduce('v_add_f32')
    p.e(f'v_rcp_f32 {v(TM)}, {v(TM)}')
    xbcast()
    for u in range(4):
        for r in range(0, 8, 2):
            p.e(f'v_pk_mul_f32 {v(U[u] + r, 2)}, {v(U[u] + r, 2)}, {v(TM + 2 * u, 2)} op_sel_hi:[1,0]')
        for r in range(4):
            p.e(f'v_cvt_pk_bf16_f32 {v(U[u] + r)}, {v(U[u] + 2 * r)}, {v(U[u] + 2 * r + 1)}')
        p.e(f'ds_write_b128 {v(PD)}, {v(U[u], 4)} offset:{u * 1024}')

    OUT = 0; VW = 80; VF = 160; WF = 192; NW = 5; PF = 212
    bO, bE = o.bO, o.bE
    p.e(f's_mov_b32 {s(S_CNT)}, 0')
    p.e(f's_mov_b32 {s(S_POS)}, 0')
    p.e(f's_mov_b32 {s(S_STEP)}, {STG}')

    def w_reads(f):
        ks, n = (f // 5) & 1, f % 5
        d = WF + (f % NW) * 4
        return [f'ds_read_b64_tr_b16 {v(d + 2 * u, 2)}, {v(WA + (n & 1))} offset:{(32 * ks + 4 * u) * 320 + n * 32}' for u in range(2)]

    def v_reads(ks):
        return [f'ds_read_b128 {v(VF + (ks & 1) * 16 + u * 4, 4)}, {v(VA + (ks & 1))} offset:{u * 2048}' for u in range(4)]

    def p_reads():
        return [f'ds_read_b128 {v(PF + 4 * u, 4)}, {v(PA)} offset:{1024 * u}' for u in range(4)]

    def m2(m, first):
        if m < 80:
            ks, n, u = m // 20, (m % 20) >> 2, m & 3
            d = VW + (n * 2 + (u >> 1)) * 8 + (u & 1) * 4
            cc = '0' if ks == 0 else v(d, 4)
            return f'{M16} {v(d, 4)}, {v(VF + (ks & 1) * 16 + u * 4, 4)}, {v(WF + ((m >> 2) % NW) * 4, 4)}, {cc}'
        n, u = (m - 80) >> 2, m & 3
        d = OUT + n * 16 + u * 4
        cc = '0' if first else v(d, 4)
        return f'{M16} {v(d, 4)}, {v(VW + (n * 2 + (u >> 1)) * 8, 4)}, {v(PF + 4 * u, 4)}, {cc}'

    def adv2():
        sal = [f's_add_u32 {s(S_POS)}, {s(S_POS)}, 1', f's_cmp_eq_u32 {s(S_POS)}, 4',
               f's_cselect_b32 {s(S_DELTA)}, {(-3 * STG) & 0xffffffff}, {s(S_STEP)}', f's_cselect_b32 {s(S_POS)}, 0, {s(S_POS)}']
        ad = [f'v_add_u32 {v(a)}, {s(S_DELTA)}, {v(a)}' for a in (WA, WA + 1, VA, VA + 1)]
        return sal, ad

    pre_reads = v_reads(0)[:1] + w_reads(0) + v_reads(0)[1:] + sum((w_reads(f) for f in range(1, 5)), []) + v_reads(1)

    def head_gaps(last, two=True):
        G = Gaps(100)
        bO = o.bO if two else 22
        if two:
            G.fix(bO, ['s_waitcnt lgkmcnt(0)', 's_barrier'])
        if not last:
            G.fix(bE, ['s_waitcnt lgkmcnt(0)', 's_barrier'])
        elif not two:
            G.fix(bE, ['s_barrier'])
        ge = G.place([(r, 4 * (f - 5) + 3, o.bO - 5) for f in range(5, 10) for r in w_reads(f)])
        sal, ad = adv2()
        G.place([(x, 1, 20) for x in sal], step=2)
        G.place([(x, ge, bO) for x in ad], start=ge, step=0)
        it = [(v_reads(2)[0], bO + 1, 34)] + [(r, bO + 1, 34) for r in w_reads(10)] + [(r, bO + 1, 36) for r in v_reads(2)[1:]]
        for f in range(11, 20):
            it += [(r, max(bO + 1, 4 * (f - 5) + 3), min(4 * f - 5, bE - 5)) for r in w_reads(f)]
            if f == 14:
                it += [(r, 39, 54) for r in v_reads(3)]
        go = G.place(it)
        if not last:
            sal, ad = adv2()
            G.place([(x, bO + 2, 55) for x in sal], step=2)
            G.place([(x, go, bE - 1) for x in ad], start=go, step=0)
        slot_free = lambda f: 4 * (f + 15) + 3
        nx = [(r, bE + 1, 76) for r in p_reads()]
        if not last:
            v0 = v_reads(0); v1 = v_reads(1)
            nx += [(v0[0], bE + 1, 99)] + [(r, slot_free(0), 99) for r in w_reads(0)] + [(r, bE + 1, 99) for r in v0[1:]]
            for f in range(1, 5):
                nx += [(r, slot_free(f), 99) for r in w_reads(f)]
            nx += [(r, 79, 99) for r in v1]
        G.place(nx, start=bE + 1)
        if not last:
            G.place([(f'v_xor_b32 {v(PA)}, 8192, {v(PA)}', 78, 99)])
        cv = []
        for n in range(5):
            for bb in range(2):
                b = VW + (n * 2 + bb) * 8
                cv += [(f'v_cvt_pk_bf16_f32 {v(b + r)}, {v(b + 2 * r)}, {v(b + 2 * r + 1)}', 60 + 4 * n + 2 * bb + 1 + 3, 80 + 4 * n + 2 * bb - 2) for r in range(4)]
        G.place(cv, step=0)
        return G

    def emit_head(G, first, lo=0, hi=100):
        for m in range(lo, hi):
            p.e(m2(m, first))
            for x in G.g[m]:
                p.e(x)

    p.e('s_waitcnt lgkmcnt(0)')
    st.dyn(SVC)
    p.e('s_barrier')
    st.dyn(SVC); st.dyn(SVC, True)
    for r in pre_reads:
        p.e(r)
    emit_head(head_gaps(False, o.n2b > 0), True)
    npeel = 1
    if 1 < o.n2b < 7:
        for _ in range(1, o.n2b):
            emit_head(head_gaps(False, True), False)
        npeel = o.n2b
    c3 = p.pos()
    p.e('L_c2:')
    Gm = head_gaps(False, o.n2b >= 7)
    Gm.place([(f's_add_u32 {s(S_CNT)}, {s(S_CNT)}, 1', 94, 98), (f's_cmp_lt_u32 {s(S_CNT)}, {7 - npeel}', 95, 99)])
    Gm.fix(99, ['s_cbranch_scc1 L_c2'])
    emit_head(Gm, False)
    c4 = p.pos()
    Gl = head_gaps(True, o.n2b >= 8)
    Gl.place([(x, 40, 79) for x in [f's_mul_i32 s76, {s(S_WV)}, 40960', f's_mul_i32 {s(S_T)}, {s(S_XQ)}, 10240', f's_add_u32 s76, s76, {s(S_T)}',
                                     's_add_u32 s77, s76, 4096', 's_add_u32 s78, s76, 8192', f's_cmp_eq_u32 {s(S_WV)}, {s(S_XQ)}']], step=0)
    emit_head(Gl, False, 0, 80)
    p.e('s_cbranch_scc1 L_keeper')
    c5 = p.pos()
    Gs = [list(x) for x in Gl.g] + [[] for _ in range(8)]
    for pc in range(10):
        b = OUT + 8 * pc
        d = VF + pc * 4
        g = 80 + 2 * pc + 1 + 3
        Gs[g] += [f'v_cvt_pk_bf16_f32 {v(d + r)}, {v(b + 2 * r)}, {v(b + 2 * r + 1)}' for r in range(4)]
        Gs[g] += [f'buffer_store_dwordx4 {v(d, 4)}, {v(LN16c)}, {s(SRD_XB, 4)}, {s(76 + pc // 4)} offen offset:{(pc % 4) * 1024} sc1']
    for m in range(80, 108):
        if m < 100: p.e(m2(m, False))
        for x in Gs[m]:
            p.e(x)
    st.dyn(SVC); st.dyn(SVC, True)
    p.e('s_barrier')
    if not o.sent:
        p.e(f's_and_b32 {s(S_T)}, s2, 0xfc')
        p.e(f's_add_u32 {s(S_T)}, {s(S_T)}, {s(S_WV)}')
        p.e(f's_lshl_b32 {s(S_T)}, {s(S_T)}, {9 if o.seplines else 7}')
        p.e(f's_lshl_b32 {s(S_T2)}, {s(S_XQ)}, {7 if o.seplines else 2}')
        p.e(f's_add_u32 {s(S_T)}, {s(S_T)}, {s(S_T2)}')
        p.e(f's_add_u32 {s(S_T)}, {s(S_T)}, {FL_XF}')
        p.e('s_waitcnt vmcnt(0)')
        st.dyn(SVC)
        if o.lane1: p.e('s_mov_b64 exec, 1')
        p.e(f'buffer_store_dword {v(VTAG)}, {v(VZ)}, {s(SRD_FL, 4)}, {s(S_T)} offen sc1')
        if o.lane1: p.e('s_mov_b64 exec, -1')
    elif o.stamps:
        p.e('s_waitcnt vmcnt(0)')
        st.dyn(SVC)
    st.flush(SVC, 132)
    p.e('s_endpgm')
    c6 = p.pos()
    p.e('L_keeper:')
    Gk = [list(x) for x in Gl.g] + [[] for _ in range(8)]
    for q in range(16):
        Gk[80 + q + 4] += [f'ds_write_b128 {v(LN16c)}, {v(OUT + 4 * q, 4)} offset:{q * 1024}']
    for m in range(80, 108):
        if m < 100: p.e(m2(m, False))
        for x in Gk[m]:
            p.e(x)
    st.dyn(SVC); st.dyn(SVC, True)
    p.e(f's_mov_b32 {s(S_T)}, 4')
    reduce_setup(230, LN16c, 228, S_T)
    p.e('s_waitcnt lgkmcnt(0)')
    p.e('s_barrier')
    reduce_run(64, 160, 230, LN16c, 228, 'L_xspin_k')
    p.e(f's_or_b32 {s(S_T)}, {s(S_XQ)}, {s(S_HP)}')
    p.e(f's_cmp_eq_u32 {s(S_T)}, 0')
    p.e('s_cbranch_scc0 L_kdone')
    p.e(f'buffer_store_dword {v(VTAG)}, {v(VZ)}, {s(SRD_FL, 4)}, {s(S_EP)} offen sc1')
    p.e('L_kdone:')
    st.flush(SVC, 138)
    p.e('s_endpgm')
    p.e('L_codeend:')
    c7 = p.pos()
    pre = [(t0, t1), (c0, c1), (c1, c2), (c1, c2), (c1, c1b), (c2, c3), (c3, c4), (c3, c4), (c4, c5)]
    p.add_trace(pre + [(c5, c6)])
    p.add_trace(pre + [(c6, c7)])


def kd(name, vgpr=256, sgpr=100):
    acc = (vgpr + 3) // 4 * 4
    return f'''.p2align 6
.amdhsa_kernel {name}
  .amdhsa_next_free_vgpr {vgpr}
  .amdhsa_next_free_sgpr {sgpr}
  .amdhsa_accum_offset {acc}
  .amdhsa_group_segment_fixed_size 0
  .amdhsa_kernarg_size 104
  .amdhsa_user_sgpr_count 2
  .amdhsa_user_sgpr_kernarg_segment_ptr 1
  .amdhsa_system_sgpr_workgroup_id_x 1
.end_amdhsa_kernel
'''


def build(o):
    p = Prog()
    p.lg_hi, p.lg_lo = o.lg
    gen(p, o)
    txt = HEADER + '; @launch grid=(256,1,1) block=(512,1,1) lds=163840\n.amdgcn_target "amdgcn-amd-amdhsa--gfx950"\n.text\n'
    txt += p.text()
    txt += '.section .rodata,"a"\n' + kd(KN)
    return txt


if __name__ == '__main__':
    o = Opt()
    out = sys.argv[1]
    for a in sys.argv[2:]:
        k, val = a.split('=', 1)
        setattr(o, k, eval(val))
    open(out, 'w').write(build(o))
    from chk import check
    check(out)
```

```python
OT = {'P5': ['pd3', 'td7'], 'P6': ['td8'], 'P7': ['pd4', 'td9'], 'P8': ['td10'], 'P9': ['pd5', 'td11'],
      'P10': ['td12'], 'P11': ['pd6', 'td13'], 'P12': ['td14'], 'P13': ['pd7', 'td15']}
KC = [{3: ['kd3', 'kp0'], 5: ['kp1', 'kp2'], 7: ['vp0', 'vp1']},
      {4: ['kd3', 'kp0'], 6: ['kp1', 'kp2'], 8: ['vp0', 'vp1']}]
E2 = dict({'B8': ['vp2', 'vp3', 'kf0'], 'B9': ['wd0', 'kf1', 'kf2'], 'B10': ['wd1', 'wd2', 'vf0', 'vf1'],
      'P0': ['pp', 'wd3', 'vf2'], 'P1': ['vf3', 'pf'], 'P2': ['td4'], 'P3': ['td5'], 'P4': ['po', 'td6', 'ck14', 'pd2']}, **OT)

OS = {'P5': ['pd3', 'td7'], 'P6': ['td8', 'xf0'], 'P7': ['pd4', 'td9'], 'P8': ['td10', 'xf1'], 'P9': ['pd5', 'td11'],
      'P10': ['td12', 'xf2'], 'P11': ['pd6', 'td13'], 'P12': ['xr', 'td14'], 'P13': ['pd7', 'td15'], 'P14': ['xo', 'xc']}
E2S = dict(E2, **OS)

K2 = [{3: ['kd3', 'kp0'], 5: ['kp1', 'kp2']}, {4: ['kd3', 'kp0'], 6: ['kp1', 'kp2']}]
K2b = [{4: ['kd3', 'kp0'], 7: ['kp1', 'kp2']}, {5: ['kd3', 'kp0'], 8: ['kp1', 'kp2']}]
K1 = [{4: ['kd3', 'kp0']}, {6: ['kd3', 'kp0']}]
EOT = {'P9': ['pd5', 'td11'], 'P10': ['td12'], 'P11': ['pd6', 'td13'], 'P12': ['td14'], 'P13': ['pd7', 'td15']}
EO1 = dict({'B8': ['vp0', 'vp1', 'kf0'], 'B9': ['wd0', 'kf1', 'kf2'], 'B10': ['wd1', 'vf0', 'vf1'],
       'P0': ['pp', 'td2'], 'P1': ['pf', 'td3'], 'P2': ['po', 'td4', 'ck2', 'pd1'], 'P3': ['td5', 'vp8', 'vp9'], 'P4': ['po', 'td6', 'ck12', 'pd2'],
       'P5': ['pd3', 'td7', 'wd8'], 'P6': ['wd9', 'vf8'], 'P7': ['pd4', 'vf9'], 'P8': ['td10']}, **EOT)
EO2 = dict({'B8': ['kd1', 'kd2', 'kf0'], 'B9': ['td0'], 'B10': ['td1'],
       'P0': ['pp', 'td2'], 'P1': ['pf', 'td3'], 'P2': ['po', 'td4', 'ck2', 'pd1'], 'P3': ['td5', 'vp8', 'vp9'], 'P4': ['po', 'td6', 'ck12', 'pd2'],
       'P5': ['pd3', 'td7', 'wd8'], 'P6': ['wd9', 'vf8'], 'P7': ['pd4', 'vf9'], 'P8': ['td10']}, **EOT)
EO3 = dict({'B8': ['vp0', 'vp1', 'kf0'], 'B9': ['wd0', 'kf1', 'kf2'], 'B10': ['wd1', 'vf0', 'vf1', 'vp8', 'vp9'],
       'P0': ['pp', 'td2'], 'P1': ['pf', 'td3'], 'P2': ['td4'], 'P3': ['po', 'ck2', 'pd1', 'td5'], 'P4': ['po', 'td6', 'ck12', 'pd2'],
       'P5': ['pd3', 'td7', 'wd8'], 'P6': ['wd9', 'vf8'], 'P7': ['pd4', 'vf9'], 'P8': ['td10']}, **EOT)
E3T = {'P9': ['pd5', 'td12'], 'P10': ['td13'], 'P11': ['pd6', 'td14'], 'P12': ['td15'], 'P13': ['pd7']}
EO4 = dict({'B8': ['vp0', 'vp1', 'kf0'], 'B9': ['wd0', 'kf1', 'kf2'], 'B10': ['wd1', 'vf0', 'vf1', 'wd2'],
       'P0': ['pp', 'vd2', 'pf'], 'P1': ['td3'], 'P2': ['td4', 'po', 'td5'], 'P3': ['ck2', 'pd1', 'po', 'td6'], 'P4': ['ck12', 'pd2', 'td7', 'vp8'],
       'P5': ['pd3', 'wd8'], 'P6': ['td9', 'vf8'], 'P7': ['pd4', 'td10'], 'P8': ['td11']}, **E3T)
EO5 = dict({'B8': ['vp0', 'vp1', 'kf0'], 'B9': ['wd0', 'kf1', 'kf2'], 'B10': ['wd1', 'vf0', 'vf1', 'vp8', 'vp9'],
       'P0': ['pp', 'td2', 'pf'], 'P1': ['td3'], 'P2': ['td4', 'po', 'td5'], 'P3': ['ck2', 'pd1', 'po', 'td6'], 'P4': ['ck12', 'pd2', 'td7'],
       'P5': ['pd3', 'wd8', 'vf8'], 'P6': ['wd9', 'vf9'], 'P7': ['pd4', 'td10'], 'P8': ['td11']}, **E3T)
EO6 = dict({'B8': ['vp0', 'vp1', 'kf0'], 'B9': ['wd0', 'kf1', 'kf2'], 'B10': ['wd1', 'vf0', 'vf1', 'vp8'],
       'P0': ['pp', 'td2', 'pf'], 'P1': ['td3'], 'P2': ['td4', 'po'], 'P3': ['ck2', 'pd1', 'po', 'td5'], 'P4': ['ck12', 'pd2', 'td6', 'td7'],
       'P5': ['pd3', 'wd8', 'vf8'], 'P6': ['td9'], 'P7': ['pd4', 'td10'], 'P8': ['td11']}, **E3T)
K3 = [{3: ['kd3', 'kp0'], 6: ['kp1', 'kp2']}, {4: ['kd3', 'kp0'], 7: ['kp1', 'kp2']}]

SB2 = {'B8': ['vp2', 'vp3', 'kf0'], 'B9': ['wd0', 'kf1', 'kf2'], 'B10': ['wd1', 'wd2', 'vf0', 'vf1'],
       'P0': ['pp', 'wd3', 'vf2'], 'P1': ['vf3', 'pf', 'td4'], 'P2': ['td5'], 'P3': ['td6'], 'P4': ['po', 'td7', 'ck14', 'pd2'],
       'P6': ['pd3', 'td8', 'td9'], 'P8': ['pd4', 'td10', 'td11'], 'P10': ['pd5', 'td12', 'td13'], 'P12': ['pd6', 'td14', 'td15'], 'P14': ['pd7']}
SB3 = {'B8': ['vp2', 'vp3', 'kf0'], 'B9': ['wd0', 'kf1', 'kf2'], 'B10': ['wd1', 'wd2', 'vf0', 'vf1'],
       'P0': ['pp', 'wd3', 'vf2'], 'P1': ['vf3', 'pf'], 'P2': ['td4', 'td5'], 'P3': ['td6'], 'P4': ['po', 'td7', 'ck14', 'pd2'], 'P5': ['pd3', 'td8'],
       'P6': ['td9'], 'P8': ['pd4', 'td10', 'td11'], 'P10': ['pd5', 'td12', 'td13'], 'P12': ['pd6', 'td14', 'td15'], 'P14': ['pd7']}
E2H = {k: E2[k] for k in ('B8', 'B9', 'B10', 'P0', 'P1', 'P2', 'P3')}
E4 = dict(E2H, **{'P4': ['po', 'td6', 'ck14', 'pd2'], 'P5': ['td7'], 'P6': ['td8', 'pd3'], 'P7': ['td9'], 'P8': ['td10', 'pd4'], 'P9': ['td11'],
      'P10': ['td12', 'pd5'], 'P11': ['td13'], 'P12': ['td14', 'pd6'], 'P13': ['td15', 'pd7']})
E5 = dict(E2H, **{'P4': ['po', 'td6', 'ck14', 'pd2'], 'P5': ['td7'], 'P6': ['td8', 'vd9'], 'P7': ['pd3', 'wd9'], 'P8': ['td10', 'vd11'], 'P9': ['pd4', 'wd11'],
      'P10': ['td12', 'vd13'], 'P11': ['pd5', 'wd13'], 'P12': ['td14', 'vd15', 'pd6'], 'P13': ['wd15', 'pd7']})
E6 = dict(E2H, **{'P4': ['po', 'td6', 'ck14', 'pd2'], 'P5': ['td7'], 'P6': ['td8', 'vd9', 'pd3'], 'P7': ['wd9'], 'P8': ['td10', 'vd11', 'pd4'], 'P9': ['wd11'],
      'P10': ['td12', 'vd13', 'pd5'], 'P11': ['wd13'], 'P12': ['td14', 'vd15', 'pd6'], 'P13': ['wd15', 'pd7']})

E4T = {k: E4[k] for k in E4 if k[0] == 'P' and int(k[1:]) >= 5}
F1 = dict({'B8': ['vp2', 'vp3', 'kf0'], 'B9': ['wd0', 'kf1', 'kf2'], 'B10': ['wd1', 'vf0', 'vf1'], 'BK': ['wd2', 'wd3', 'vf2', 'vf3'],
      'P0': ['pp'], 'P1': ['pf', 'td4'], 'P2': ['td5'], 'P3': ['po'], 'P4': ['ck14', 'td6', 'pd2']}, **E4T)
F2 = dict({'B8': ['vp2', 'vp3', 'kf0'], 'B9': ['wd0', 'kf1', 'kf2'], 'B10': ['wd1', 'wd2'], 'BK': ['vf0', 'vf1', 'wd3', 'vf2', 'vf3'],
      'P0': ['pp'], 'P1': ['pf'], 'P2': ['td4'], 'P3': ['td5'], 'P4': ['po', 'td6', 'ck14', 'pd2']}, **E4T)
F3 = dict({'B8': ['vp2', 'vp3', 'kf0'], 'B9': ['wd0', 'kf1', 'kf2'], 'B10': ['wd1', 'wd2', 'vf0', 'vf1'],
      'P0': ['pp', 'wd3'], 'P1': ['vf2', 'pf'], 'P2': ['td4', 'vf3'], 'P3': ['td5'], 'P4': ['po', 'td6', 'ck14', 'pd2']}, **E4T)
KV1 = [{4: ['kd3', 'kp0'], 7: ['vp0', 'vp1']}, {5: ['kd3', 'kp0'], 8: ['vp0', 'vp1']}]
KV2 = [{3: ['kd3', 'kp0'], 6: ['vp0', 'vp1']}, {4: ['kd3', 'kp0'], 7: ['vp0', 'vp1']}]
GT = {'P9': ['td11'], 'P10': ['td12', 'pd5'], 'P11': ['td13'], 'P12': ['td14', 'pd6'], 'P13': ['td15', 'pd7']}
GE = {'B8': ['kd1', 'kd2', 'kf0'], 'B9': ['wd0', 'vf0'], 'B10': ['wd1', 'vf1', 'wd2']}
G1 = dict(GE, **{'P0': ['pp', 'vd2'], 'P1': ['td3', 'pf'], 'P2': ['td4', 'po', 'wd5'], 'P3': ['ck2', 'pd1', 'po', 'vd5', 'wd6'],
      'P4': ['ck12', 'pd2', 'vd6', 'td7'], 'P5': ['td8'], 'P6': ['pd3', 'td9'], 'P7': [], 'P8': ['td10', 'pd4']}, **GT)
G2 = dict(GE, **{'P0': ['pp', 'vd2', 'pf'], 'P1': ['td3'], 'P2': ['td4', 'po', 'ck2', 'pd1'], 'P3': ['po', 'td5'],
      'P4': ['ck12', 'pd2', 'td6', 'vd7'], 'P5': ['wd7', 'vd8'], 'P6': ['pd3', 'wd8', 'vd9'], 'P7': ['wd9'], 'P8': ['td10', 'pd4']}, **GT)
G3 = dict(GE, **{'P0': ['pp', 'vd2', 'wd3'], 'P1': ['pf', 'vd3', 'wd4'], 'P2': ['vd4', 'po', 'td5'], 'P3': ['ck2', 'pd1', 'po', 'td6'],
      'P4': ['ck12', 'pd2', 'td7'], 'P5': ['pd3', 'td8'], 'P6': ['td9'], 'P7': [], 'P8': ['td10', 'pd4']}, **GT)
KH1 = [{2: ['kd3', 'kp0'], 4: ['kp1', 'kp2'], 6: ['vp0', 'vp1']}, {3: ['kd3', 'kp0'], 5: ['kp1', 'kp2'], 7: ['vp0', 'vp1']}]
KH2 = [{2: ['kd3', 'kp0'], 3: ['kp1', 'kp2'], 5: ['vp0', 'vp1']}, {2: ['kd3', 'kp0'], 4: ['kp1', 'kp2'], 6: ['vp0', 'vp1']}]
KH3 = [{2: ['kd3', 'kp0'], 3: ['kp1'], 4: ['kp2'], 6: ['vp0', 'vp1']}, {2: ['kd3'], 3: ['kp0', 'kp1'], 4: ['kp2'], 7: ['vp0', 'vp1']}]
KH4 = [{2: ['kd3', 'kp0'], 4: ['kp1', 'kp2'], 6: ['vp0', 'vp1'], 8: ['vp2']}, {3: ['kd3', 'kp0'], 5: ['kp1', 'kp2'], 7: ['vp0', 'vp1'], 8: ['vp2']}]
E4b = dict(E4, **{'B8': ['vp3', 'kf0']})
KH5 = [{3: ['kd3', 'kp0'], 4: ['kp1', 'kp2'], 7: ['vp0', 'vp1']}, {3: ['kd3', 'kp0'], 5: ['kp1', 'kp2'], 8: ['vp0', 'vp1']}]

A_, B_, C_, D_ = ['kd3', 'kp0'], ['kp1', 'kp2'], ['vp0', 'vp1'], ['vp2', 'vp3']
def aft(x): return ['S'] + x
def bef(x): return x + ['S']
Q1 = [{2: aft(A_), 4: aft(B_), 6: aft(C_)}, {3: bef(A_), 5: bef(B_), 7: bef(C_)}, {3: aft(A_), 5: aft(B_), 7: aft(C_)}, {4: bef(A_), 6: bef(B_), 8: bef(C_)}]
Q2 = [{2: bef(A_), 4: bef(B_), 6: bef(C_)}, {2: aft(A_), 4: aft(B_), 6: aft(C_)}, {3: bef(A_), 5: bef(B_), 7: bef(C_)}, {3: aft(A_), 5: aft(B_), 7: aft(C_)}]
Q3 = [{2: bef(A_), 4: bef(B_), 6: bef(C_), 8: bef(D_)}, {2: aft(A_), 4: aft(B_), 6: aft(C_), 8: aft(D_)}, {3: bef(A_), 5: bef(B_), 7: bef(C_), 9: bef(D_)}, {3: aft(A_), 5: aft(B_), 7: aft(C_), 9: bef(D_)}]
E4c = dict(E4, **{'B8': ['wp0', 'wp1', 'kf0'], 'B9': ['kf1', 'kf2'], 'B10': ['wd2', 'wf0', 'vf0', 'wf1', 'vf1']})
E4d = dict(E4, **{'B8': ['kf0', 'kf1'], 'B9': ['wd0', 'kf2', 'vf0'], 'B10': ['wd1', 'wd2', 'vf1']})
L1 = [{3: aft(A_ + B_ + C_)}, {6: aft(A_ + B_ + C_)}]
L2 = [{2: aft(A_ + B_ + C_)}, {5: aft(A_ + B_ + C_)}]
L3 = [{2: aft(A_ + B_), 6: aft(C_)}, {4: aft(A_ + B_), 7: aft(C_)}]
L4 = [{3: aft(A_ + B_ + C_ + D_)}, {7: aft(A_ + B_ + C_ + D_)}]
L5 = [{2: aft(A_ + B_ + C_)}, {4: aft(A_ + B_ + C_)}, {6: aft(A_ + B_ + C_)}, {7: aft(A_ + B_ + C_)}]
L6 = [{2: aft(A_ + B_), 5: aft(C_ + D_)}, {4: aft(A_ + B_), 7: aft(C_ + D_)}]

M1 = [{2: aft(A_), 3: ['N'] + B_, 4: ['S', 'S'], 6: aft(C_)}, {4: aft(A_), 5: ['N'] + B_, 6: ['S', 'S'], 8: aft(C_)}]
M2 = [{2: aft(A_), 3: ['N'] + B_, 4: ['S', 'S'], 7: aft(C_)}, {3: aft(A_), 4: ['N'] + B_, 5: ['S', 'S'], 8: aft(C_)}]
M3 = [{2: aft(A_), 3: ['N'] + B_, 4: C_ + ['S', 'S']}, {5: aft(A_), 6: ['N'] + B_, 7: C_ + ['S', 'S']}]
M4 = [{2: aft(A_), 3: ['N'] + B_, 4: ['S', 'S'], 6: aft(C_), 7: ['N'] + D_, 8: ['S', 'S']}, {4: aft(A_), 5: ['N'] + B_, 6: ['S', 'S'], 8: aft(C_), 9: D_ + ['S']}]
M5 = [{2: aft(A_), 5: aft(B_), 6: ['N'] + C_, 7: ['S', 'S']}, {3: aft(A_), 4: ['N'] + B_, 5: ['S', 'S'], 8: aft(C_)}]
E4U = {k: E4[k] for k in E4 if k[0] == 'P' and int(k[1:]) >= 4}
H1 = dict({'B8': ['vp2', 'vp3', 'kf0', 'kf1'], 'B9': ['wd0', 'kf2', 'vf0'], 'B10': ['wd1', 'wd2', 'vf1'],
      'P0': ['pp', 'wd3'], 'P1': ['vf2', 'pf'], 'P2': ['td4', 'vf3'], 'P3': ['td5']}, **E4U)
H2 = dict({'B8': ['vp2', 'vp3', 'kf0'], 'B9': ['wd0', 'kf1', 'kf2'], 'B10': ['wd1', 'wd2'], 'BK': ['vf0', 'vf1', 'wd3', 'vf2'],
      'P0': ['pp'], 'P1': ['pf'], 'P2': ['vf3', 'td4'], 'P3': ['td5']}, **E4U)
H3 = dict({'B8': ['vp2', 'kf0', 'kf1'], 'B9': ['wd0', 'kf2', 'vf0'], 'B10': ['wd1', 'wd2'], 'BK': ['td3', 'vf1', 'vf2'],
      'P0': ['pp'], 'P1': ['pf'], 'P2': ['td4'], 'P3': ['td5']}, **E4U)
H4 = dict({'B8': ['kf0', 'kf1'], 'B9': ['wd0', 'kf2', 'vf0'], 'B10': ['wd1', 'wd2'], 'BK': ['vd2', 'td3', 'vf1'],
      'P0': ['pp'], 'P1': ['pf'], 'P2': ['td4'], 'P3': ['td5']}, **E4U)
H5 = dict({'B8': ['pr3', 'vp2', 'vp3', 'kf0'], 'B9': ['wd0', 'kf1', 'kf2'], 'B10': ['wd1', 'wd2'], 'BK': ['vf0', 'vf1', 'wd3', 'vf2', 'vf3'],
      'P0': ['pp'], 'P1': ['pf'], 'P2': ['td4'], 'P3': ['td5']}, **E4U)

KT1 = [{2: aft(A_), 4: aft(B_), 6: aft(['vt0'])}, {3: aft(A_), 5: aft(B_), 7: aft(['vt0'])}]
T1 = dict({'B8': ['vt1', 'kf0'], 'B9': ['td0', 'kf1', 'kf2'], 'B10': ['td1', 'wd2'],
      'P0': ['pp', 'vd2'], 'P1': ['td3', 'pf'], 'P2': ['td4'], 'P3': ['td5']}, **E4U)
T2 = dict({'B8': ['vt1', 'kf0'], 'B9': ['td0', 'kf1', 'kf2'], 'B10': ['td1', 'wd2'], 'BK': ['wd3', 'vd2', 'vd3'],
      'P0': ['pp'], 'P1': ['pf'], 'P2': ['td4'], 'P3': ['td5']}, **E4U)
T3 = dict({'B8': ['vt1', 'kf0'], 'B9': ['wd0', 'kf1', 'kf2'], 'B10': ['wd1', 'wd2', 'vf0', 'vf1'],
      'P0': ['pp', 'wd3', 'vd2'], 'P1': ['vd3', 'pf'], 'P2': ['td4'], 'P3': ['td5']}, **E4U)
KT2 = [{2: aft(['kd3', 'kp2']), 4: aft(['kt0']), 6: aft(['vt0'])}, {3: aft(['kd3', 'kp2']), 5: aft(['kt0']), 7: aft(['vt0'])}]
T4 = dict({'B8': ['kd0', 'kd1', 'vt1'], 'B9': ['td0', 'kf2'], 'B10': ['td1', 'wd2'],
      'P0': ['pp', 'vd2'], 'P1': ['td3', 'pf'], 'P2': ['td4'], 'P3': ['td5']}, **E4U)

W1 = [{2: aft(A_), 4: aft(B_), 6: aft(C_), 8: aft(['wt0']), 9: aft(['wt1'])}, {3: aft(A_), 5: aft(B_), 7: aft(C_), 8: aft(['wt0']), 9: aft(['wt1'])}]
W2 = [{2: aft(A_), 4: aft(B_), 6: aft(C_), 9: aft(['wt0', 'wt1'])}, {3: aft(A_), 5: aft(B_), 7: aft(C_), 9: aft(['wt0', 'wt1'])}]
W3 = [{2: aft(A_), 4: aft(B_), 6: aft(C_), 9: aft(D_)}, {3: aft(A_), 5: aft(B_), 7: aft(C_), 9: aft(D_)}]
U1 = dict(E4, **{'B8': ['wt0', 'wt1', 'kf0']})
U2 = dict(E4, **{'B8': ['wt1', 'kf0', 'kf1'], 'B9': ['wd0', 'kf2', 'vf0'], 'B10': ['wd1', 'wd2', 'vf1']})
W4 = [{2: aft(A_), 4: aft(B_), 6: aft(['vt0']), 9: aft(['vt1'])}, {3: aft(A_), 5: aft(B_), 7: aft(['vt0']), 9: aft(['vt1'])}]
U3 = dict(T1, **{'B8': ['wt0', 'wt1', 'kf0']})

X1 = dict({'B8': ['vt1', 'kf0'], 'B9': ['td0', 'kf1', 'kf2'], 'B10': ['td1', 'wd2'],
      'P0': ['wd3', 'vd2'], 'P1': ['vd3', 'pp'], 'P2': ['td4', 'pf'], 'P3': ['td5'], 'P4': ['td6', 'po'], 'P5': ['ck14', 'pd2', 'td7']},
      **{k: E4[k] for k in E4 if k[0] == 'P' and int(k[1:]) >= 6})
X2 = dict({'B8': ['vt1', 'kf0'], 'B9': ['td0', 'kf1', 'kf2'], 'B10': ['td1', 'wd2'],
      'P0': ['pp', 'pf', 'wd3', 'vd2'], 'P1': ['vd3'], 'P2': ['td4'], 'P3': ['td5', 'po'], 'P4': ['ck14', 'td6', 'pd2']}, **E4T)
X3 = dict(E4, **{'P3': ['td5', 'po'], 'P4': ['ck14', 'td6', 'pd2']})
X4 = dict({'B8': ['vt1', 'kf0', 'kf1'], 'B9': ['td0', 'kf2'], 'B10': ['td1', 'wd2'],
      'P0': ['pp', 'pf', 'wd3', 'vd2'], 'P1': ['vd3'], 'P2': ['td4'], 'P3': ['td5', 'po'], 'P4': ['ck14', 'td6', 'pd2']}, **E4T)

Y1 = dict(E4, **{'P4': ['po', 'td6', 'ck2', 'pd2'], 'P6': ['po', 'td8', 'ck12', 'pd3']})

KS1 = [{2: aft(A_), 4: aft(B_), 6: aft(C_), 8: aft(['xf0']), 9: aft(['xf1', 'xf2'])}, {3: aft(A_), 5: aft(B_), 7: aft(C_), 8: aft(['xf0']), 9: aft(['xf1', 'xf2'])}]
Z1 = dict(E4, **{'P6': ['xr', 'td8', 'pd3'], 'P12': ['xo', 'td14', 'pd6', 'xc']})
Z2 = dict(E4, **{'P6': ['td8', 'pd3', 'xf0'], 'P8': ['td10', 'pd4', 'xf1'], 'P10': ['td12', 'pd5', 'xf2'], 'P12': ['xr', 'td14', 'pd6'], 'P14': ['xo', 'xc']})
```

```python
import sys, math, struct
from asmlib import Prog, v, s
from plans6 import *

NAME = 'concat_heads__gqa_block_cached__gqa_block_cached__near_ridge'
KN = NAME + '_kernel'
M16 = 'v_mfma_f32_16x16x32_bf16'


def f32hex(x):
    return '0x%08x' % struct.unpack('<I', struct.pack('<f', x))[0]


class Opt:
    stamps = False
    grp = 4
    ksched = KH1
    plan = E4
    nt_k = True
    codepf = 4
    codepf_mask = 3
    bB = 47
    bO = 27
    bE = 67
    lg = (9, 7)
    xlat = False
    dmapol = ''
    al1 = None
    al2 = None
    cpub = 0
    nt_wq = 99
    nt_x = 99
    onepoll = False
    seplines = False
    lane1 = False
    mpoll = 0
    mgap = 2
    post = False
    bk = False
    n2b = 8
    hack_skip1 = None
    order = 'own'
    sent = False
    xsleep = 0
    z = None


WS_XB = 4 << 20
WS_FL = 16 << 20
FL_XF = 32768
FL_EP = 32768 + 131072
FL_SIZE = FL_EP + 2048
WS_STAMP = 64 << 20
X_BYTES = 1024 * 640 * 2
KV_BYTES = 32 * 32 * 32 * 128 * 2
W_BYTES = 640 * 4096 * 2
OUT_BYTES = 1024 * 1280 * 2

HEADER = open('cdna_kernels/%s.s.ref' % NAME).read().split('; Override launch')[0]

S_X, S_K, S_V, S_WQ, S_WO = 8, 10, 12, 14, 16
S_OUT, S_WS = 32, 36
SRD_X, SRD_WQ, SRD_K, SRD_V, SRD_WO, SRD_P, SRD_XB, SRD_OUT, SRD_FL = 40, 44, 48, 52, 56, 60, 64, 68, 72
S_BR, S_XQ, S_BG, S_HP, S_CT, S_WV, S_T, S_T2 = 18, 19, 20, 21, 22, 23, 24, 25
S_EP, S_TAG = 26, 27
S_CNT, S_DELTA, S_POS, S_STEP = 28, 29, 30, 31
S_C = 34


def srd(p, d, base, off_s, size_total):
    p.e(f's_add_u32 {s(d)}, {s(base)}, {s(off_s)}')
    p.e(f's_addc_u32 {s(d+1)}, {s(base+1)}, 0')
    p.e(f's_sub_u32 {s(d+2)}, {size_total}, {s(off_s)}')
    p.e(f's_mov_b32 {s(d+3)}, 0x20000')


class Stamper:
    def __init__(self, p, o):
        self.p, self.o = p, o

    def start(self):
        if not self.o.stamps: return
        self.p.e('s_memrealtime s[92:93]')
        self.p.e('s_memtime s[94:95]')
        self.p.e('s_mov_b32 s90, 3')

    def dyn(self, vr, real=False):
        if not self.o.stamps: return
        if self.o.post and vr == 255: return
        p = self.p
        p.e('s_memrealtime s[88:89]' if real else 's_memtime s[88:89]')
        p.e('s_mov_b32 s91, m0')
        p.e('s_mov_b32 m0, s90')
        p.e('s_waitcnt lgkmcnt(0)')
        p.e(f'v_writelane_b32 v{vr}, s88, m0')
        p.e('s_add_u32 s90, s90, 1')
        p.e('s_mov_b32 m0, s91')

    def fixed(self, vr, lane):
        if not (self.o.stamps and self.o.xlat): return
        p = self.p
        p.e('s_memrealtime s[88:89]')
        p.e('s_waitcnt lgkmcnt(0)')
        p.e(f'v_writelane_b32 v{vr}, s88, {lane}')

    def flush(self, vr, vtmp):
        if not self.o.stamps: return
        p = self.p
        p.e('s_memtime s[88:89]')
        p.e('s_memrealtime s[96:97]')
        p.e('s_mov_b32 m0, s90')
        p.e('s_waitcnt vmcnt(0) lgkmcnt(0)')
        p.e(f'v_writelane_b32 v{vr}, s88, m0')
        p.e(f'v_writelane_b32 v{vr}, s92, 0')
        p.e(f'v_writelane_b32 v{vr}, s96, 1')
        p.e(f'v_writelane_b32 v{vr}, s94, 2')
        p.e(f'v_writelane_b32 v{vr}, s90, 63')
        p.e('s_getreg_b32 s88, hwreg(HW_REG_XCC_ID)')
        p.e(f'v_writelane_b32 v{vr}, s88, 62')
        p.e('s_lshl_b32 s88, s2, 3')
        p.e(f's_add_u32 s88, s88, {s(S_WV)}')
        p.e('s_lshl_b32 s88, s88, 8')
        p.e(f's_add_u32 s88, s88, {WS_STAMP}')
        p.e(f's_add_u32 s92, {s(S_WS)}, s88')
        p.e(f's_addc_u32 s93, {s(S_WS+1)}, 0')
        p.e('s_mov_b32 s94, 256')
        p.e('s_mov_b32 s95, 0x20000')
        p.e(f'v_mbcnt_lo_u32_b32 v{vtmp}, -1, 0')
        p.e(f'v_mbcnt_hi_u32_b32 v{vtmp}, -1, v{vtmp}')
        p.e(f'v_lshlrev_b32 v{vtmp}, 2, v{vtmp}')
        p.e(f'buffer_store_dword v{vr}, v{vtmp}, s[92:95], 0 offen')


class Gaps:
    def __init__(self, n, cap=2):
        self.n = n
        self.g = [[] for _ in range(n)]
        self.cap = cap

    def room(self, g, ds):
        cur = self.g[g]
        if len(cur) >= self.cap: return False
        if ds and any(x.startswith('ds_') for x in cur): return False
        return True

    def fix(self, g, items):
        self.g[g] += items

    def place(self, items, start=0, step=1):
        g = start
        for (t, lo, hi) in items:
            g = max(g, lo)
            ds = t.startswith('ds_')
            while g < self.n and not self.room(g, ds):
                g += 1
            assert g < self.n and g <= hi, (t, lo, hi, g)
            self.g[g].append(t)
            g += step
        return g


def gen(p, o):
    st = Stamper(p, o)
    p.e(f'.globl {KN}\n.p2align 8\n.type {KN},@function\n{KN}:')
    t0 = p.pos()
    SLOT = 49152
    KB = 98304
    STG = 36864; VOFF = 20480; PBUF = 4 * STG
    p.e('s_cmp_ge_u32 s2, 256')
    p.e('s_cbranch_scc1 L_end')
    p.e(f's_bfe_u32 {s(S_BR)}, s2, 0x10002')
    p.e(f's_mul_i32 s3, {s(S_BR)}, 40')
    p.e('s_load_dwordx8 s[8:15], s[0:1], s3')
    p.e('s_add_u32 s3, s3, 32')
    p.e('s_load_dwordx2 s[16:17], s[0:1], s3')
    p.e('s_load_dwordx2 s[32:33], s[0:1], 80')
    p.e('s_load_dwordx2 s[36:37], s[0:1], 96')
    st.start()
    p.e('v_lshrrev_b32 v1, 6, v0')
    p.e('v_and_b32 v2, 63, v0')
    p.e(f'v_readfirstlane_b32 {s(S_WV)}, v1')
    p.e(f's_and_b32 {s(S_XQ)}, s2, 3')
    p.e(f's_lshr_b32 {s(S_BG)}, s2, 5')
    p.e(f's_bfe_u32 {s(S_HP)}, s2, 0x20003')
    p.e(f's_add_u32 {s(S_CT)}, {s(S_HP)}, {s(S_BG)}')
    p.e(f's_and_b32 {s(S_CT)}, {s(S_CT)}, 3')
    p.e(f's_cmp_lt_u32 {s(S_WV)}, 4')
    p.e('s_cbranch_scc1 L_compute')
    t1 = p.pos()

    def srds_loader():
        p.e(f's_lshl_b32 s76, {s(S_BG)}, 7')
        p.e(f's_lshl_b32 {s(S_T)}, {s(S_XQ)}, 3')
        p.e(f's_add_u32 s76, s76, {s(S_T)}')
        p.e(f's_lshl_b32 {s(S_T)}, s76, 13')
        srd(p, SRD_V, S_V, S_T, KV_BYTES)
        p.e(f's_lshl_b32 {s(S_T2)}, {s(S_HP)}, 14')
        p.e(f's_add_u32 {s(S_T)}, {s(S_T)}, {s(S_T2)}')
        srd(p, SRD_K, S_K, S_T, KV_BYTES)
        p.e(f's_mul_i32 {s(S_T)}, {s(S_XQ)}, {1024 * 1280}')
        p.e(f's_mul_i32 {s(S_T2)}, {s(S_CT)}, 320')
        p.e(f's_add_u32 {s(S_T)}, {s(S_T)}, {s(S_T2)}')
        srd(p, SRD_WO, S_WO, S_T, W_BYTES)
        p.e(f's_lshl_b32 {s(S_T)}, {s(S_BR)}, 10')
        p.e(f's_add_u32 {s(S_T)}, {s(S_T)}, s76')
        p.e(f's_lshl_b32 {s(S_T)}, {s(S_T)}, 11')
        srd(p, SRD_P, S_WS, S_T, 4 << 20)

    def srds_common():
        p.e(f's_and_b32 {s(S_T)}, s2, 0xfc')
        p.e(f's_mul_i32 {s(S_T)}, {s(S_T)}, 40960')
        p.e(f's_add_u32 {s(S_T)}, {s(S_T)}, {WS_XB}')
        srd(p, SRD_XB, S_WS, S_T, WS_XB + 256 * 40960)
        p.e(f's_mov_b32 {s(S_T)}, {WS_FL}')
        srd(p, SRD_FL, S_WS, S_T, WS_FL + FL_SIZE)
        p.e(f's_lshr_b32 {s(S_T)}, {s(S_XQ)}, 1')
        p.e(f's_lshl_b32 {s(S_T2)}, {s(S_BG)}, 1')
        p.e(f's_add_u32 {s(S_T)}, {s(S_T)}, {s(S_T2)}')
        p.e(f's_mul_i32 {s(S_T)}, {s(S_T)}, {64 * 2560}')
        p.e(f's_lshl_b32 {s(S_T2)}, {s(S_BR)}, 2')
        p.e(f's_add_u32 {s(S_T2)}, {s(S_T2)}, {s(S_CT)}')
        p.e(f's_lshl_b32 {s(S_T2)}, {s(S_T2)}, 1')
        p.e(f's_and_b32 s76, {s(S_XQ)}, 1')
        p.e(f's_add_u32 {s(S_T2)}, {s(S_T2)}, s76')
        p.e(f's_mul_i32 {s(S_T2)}, {s(S_T2)}, 160')
        p.e(f's_add_u32 {s(S_T)}, {s(S_T)}, {s(S_T2)}')
        srd(p, SRD_OUT, S_OUT, S_T, OUT_BYTES)
        p.e(f's_lshl_b32 {s(S_T)}, {s(S_BR)}, 3')
        p.e(f's_add_u32 {s(S_T)}, {s(S_T)}, {s(S_BG)}')
        p.e(f's_lshl_b32 {s(S_T)}, {s(S_T)}, 7')
        p.e(f's_add_u32 {s(S_EP)}, {s(S_T)}, {FL_EP}')
        p.e(f's_load_dword {s(S_TAG)}, {s(SRD_FL, 2)}, {s(S_EP)}')

    def make_tag():
        p.e('s_waitcnt lgkmcnt(0)')
        p.e(f's_mul_i32 {s(S_TAG)}, {s(S_TAG)}, 0x9E3779B1')
        p.e(f's_add_u32 {s(S_TAG)}, {s(S_TAG)}, 0x7F4A7C15')

    def spin(label, vdst, vaddr, soff, mask_s, first_issued=False):
        p.e('s_mov_b32 s86, 0')
        if first_issued:
            p.e(f's_branch {label}_chk')
        p.e(f'{label}:')
        p.e(f'buffer_load_dword {v(vdst)}, {v(vaddr)}, {s(SRD_FL, 4)}, {s(soff)} offen sc1')
        p.e('s_waitcnt vmcnt(0)')
        p.e(f'{label}_chk:')
        p.e(f'v_cmp_eq_u32 vcc, {s(S_TAG)}, {v(vdst)}')
        p.e('s_add_u32 s86, s86, 1')
        p.e(f's_or_b64 vcc, vcc, {s(mask_s, 2)}')
        p.e('s_cmp_eq_u64 vcc, -1')
        p.e(f's_cbranch_scc1 {label}_ok')
        p.e('s_cmp_lt_u32 s86, 200000')
        p.e(f's_cbranch_scc1 {label}')
        p.e(f'{label}_ok:')

    def reduce_setup(tmp, vlane16, vout, n_s):
        p.e(f's_lshl_b32 s80, s2, {9 if o.seplines else 7}')
        p.e(f's_add_u32 s80, s80, {FL_XF}')
        p.e('s_mov_b32 s82, 0x11111111')
        p.e(f's_lshl_b32 s82, s82, {s(S_XQ)}')
        p.e('s_mov_b32 s83, s82')
        p.e(f's_mul_i32 s81, {s(S_XQ)}, 40960')
        p.e(f's_lshl_b32 s84, {s(n_s)}, 11')
        p.e('s_add_u32 s81, s81, s84')
        p.e(f's_lshl_b32 s79, {s(n_s)}, 5')
        p.e(f's_add_u32 s85, s79, {32 * 2560}')
        for d in range(3):
            p.e(f's_xor_b32 s84, {s(S_XQ)}, {d + 1}')
            p.e('s_mul_i32 s84, s84, 10240')
            p.e(f's_add_u32 {s(76 + d)}, s81, s84')
        p.e(f'v_bfe_u32 {v(tmp)}, {v(vlane16)}, 4, 5')
        p.e(f'v_mul_u32_u24 {v(vout)}, 2560, {v(tmp)}')
        p.e(f'v_lshrrev_b32 {v(tmp)}, 9, {v(vlane16)}')
        p.e(f'v_lshl_add_u32 {v(vout)}, {v(tmp)}, 4, {v(vout)}')
        p.e(f'v_lshrrev_b32 {v(tmp)}, 2, {v(vlane16)}')
        p.e(f'v_and_b32 {v(tmp)}, 12, {v(tmp)}')
        if o.seplines:
            p.e(f'v_lshlrev_b32 {v(tmp)}, 5, {v(tmp)}')

    def reduce_run(acc, ld, tmp, vlane16, vout, label, sv=None):
        def loads(d):
            for h in range(2):
                p.e(f'buffer_load_dwordx4 {v(ld + d * 8 + h * 4, 4)}, {v(vlane16)}, {s(SRD_XB, 4)}, {s(76 + d)} offen offset:{h * 1024} sc1')
        if not o.sent and o.mpoll:
            NP = o.mpoll
            for i in range(NP):
                p.e(f'buffer_load_dword {v(ld + i)}, {v(tmp)}, {s(SRD_FL, 4)}, s80 offen sc1')
                if i < NP - 1: p.e(f's_sleep {o.mgap}')
            p.e('s_mov_b32 s86, 0')
            p.e(f'{label}:')
            for i in range(NP):
                p.e(f's_waitcnt vmcnt({NP - 1})')
                p.e(f'v_cmp_eq_u32 vcc, {s(S_TAG)}, {v(ld + i)}')
                p.e('s_add_u32 s86, s86, 1')
                p.e('s_or_b64 vcc, vcc, s[82:83]')
                p.e('s_cmp_eq_u64 vcc, -1')
                p.e(f's_cbranch_scc1 {label}_ok')
                p.e(f'buffer_load_dword {v(ld + i)}, {v(tmp)}, {s(SRD_FL, 4)}, s80 offen sc1')
            p.e('s_cmp_lt_u32 s86, 400000')
            p.e(f's_cbranch_scc1 {label}')
            p.e(f'{label}_ok:')
            if sv is not None: st.dyn(sv)
        elif not o.sent and o.onepoll:
            if sv is not None:
                p.e(f's_cmp_lg_u32 {s(S_WV)}, 4')
                p.e(f's_cbranch_scc1 {label}_ok')
                spin(label, tmp + 1, tmp, 80, 82)
            p.e('s_barrier')
            if sv is not None: st.dyn(sv)
        elif not o.sent or o.sent == 2:
            if sv is not None: st.fixed(sv, 57)
            spin(label, tmp + 1, tmp, 80, 82)
            if sv is not None: st.fixed(sv, 58)
            if sv is not None and o.stamps and o.xlat: p.e(f'v_writelane_b32 v{sv}, s86, 56')
            if sv is not None: st.dyn(sv)
        for d in range(3):
            loads(d)
        p.e('s_mov_b32 s86, 0')
        for d in range(3):
            p.e(f's_waitcnt vmcnt({4 - 2 * d})')
            if o.sent:
                b = ld + d * 8
                p.e(f's_branch {label}_c{d}')
                p.e(f'{label}_r{d}:')
                if o.xsleep: p.e(f's_sleep {o.xsleep}')
                for dd in range(d, 3):
                    loads(dd)
                p.e(f's_waitcnt vmcnt({4 - 2 * d})')
                p.e(f'{label}_c{d}:')
                p.e(f'v_max3_u32 {v(tmp)}, {v(b)}, {v(b + 1)}, {v(b + 2)}')
                p.e(f'v_max3_u32 {v(tmp + 1)}, {v(b + 3)}, {v(b + 4)}, {v(b + 5)}')
                p.e(f'v_max3_u32 {v(tmp)}, {v(tmp)}, {v(b + 6)}, {v(b + 7)}')
                p.e(f'v_max_u32 {v(tmp)}, {v(tmp)}, {v(tmp + 1)}')
                p.e(f'v_cmp_eq_u32 vcc, -1, {v(tmp)}')
                p.e('s_add_u32 s86, s86, 1')
                p.e('s_cmp_eq_u64 vcc, 0')
                p.e(f's_cbranch_scc1 {label}_k{d}')
                p.e('s_cmp_lt_u32 s86, 30000')
                p.e(f's_cbranch_scc1 {label}_r{d}')
                p.e(f'{label}_k{d}:')
                if d == 2 and sv is not None and o.sent != 2: st.dyn(sv)
            for r in range(8):
                t_ = tmp + 2 + 2 * (r & 1)
                p.e(f'v_lshlrev_b32 {v(t_)}, 16, {v(ld + d * 8 + r)}')
                p.e(f'v_and_b32 {v(t_ + 1)}, 0xffff0000, {v(ld + d * 8 + r)}')
                p.e(f'v_pk_add_f32 {v(acc + 2 * r, 2)}, {v(acc + 2 * r, 2)}, {v(t_, 2)}')
        for r in range(8):
            p.e(f'v_cvt_pk_bf16_f32 {v(acc + r)}, {v(acc + 2 * r)}, {v(acc + 2 * r + 1)}')
        for h in range(2):
            p.e(f'v_permlane16_swap_b32 {v(acc + 4 * h)}, {v(acc + 4 * h + 2)}')
            p.e(f'v_permlane16_swap_b32 {v(acc + 4 * h + 1)}, {v(acc + 4 * h + 3)}')
        if sv is not None: st.fixed(sv, 59)
        if sv is not None: st.dyn(sv)
        p.e(f'buffer_store_dwordx4 {v(acc, 4)}, {v(vout)}, {s(SRD_OUT, 4)}, s79 offen')
        p.e(f'buffer_store_dwordx4 {v(acc + 4, 4)}, {v(vout)}, {s(SRD_OUT, 4)}, s85 offen')
        if sv is not None and o.stamps:
            p.e('s_waitcnt vmcnt(0)')

    l0 = p.pos()
    XO = 10; WQO = 14; KO = 22; WO = 26; VO = 32; PO = 36; TO = 37; LN16 = 38; FA = 39; VOUT = 40; PR = 44; SV = 200
    KP = 64; VP = 128
    S_LW, S_SLOT, S_SX, S_SW, S_LX, S_LWQ = 39, 77, 78, 79, 80, 81
    S_LWO, S_LV, S_PL, S_TV, S_PF, S_KG, S_KL = 4, 5, 6, 7, 87, 84, 85
    p.e(f's_sub_u32 {s(S_LW)}, {s(S_WV)}, 4')
    p.e('v_lshrrev_b32 v3, 3, v2')
    p.e(f's_lshl_b32 {s(S_T)}, {s(S_LW)}, 5')
    p.e(f'v_add_u32 v3, {s(S_T)}, v3')
    p.e('v_mul_u32_u24 v3, 1280, v3')
    p.e('v_and_b32 v4, 7, v2')
    p.e('v_lshrrev_b32 v5, 4, v2')
    p.e('v_xor_b32 v4, v4, v5')
    p.e('v_lshl_add_u32 v6, v4, 4, v3')
    p.e('v_xor_b32 v7, 64, v6')
    for j in range(4):
        p.e(f'v_add_u32 {v(XO + j)}, {j * (8 * 1280 - 1024)}, {"v7" if j & 1 else "v6"}')
    p.e('v_lshrrev_b32 v3, 5, v2')
    p.e('v_and_b32 v4, 31, v2')
    p.e('v_lshlrev_b32 v5, 1, v3')
    p.e('v_xor_b32 v4, v4, v5')
    p.e(f's_lshl_b32 {s(S_T)}, {s(S_LW)}, 4')
    p.e(f'v_add_u32 v3, {s(S_T)}, v3')
    p.e('v_lshlrev_b32 v3, 13, v3')
    p.e('v_lshl_add_u32 v6, v4, 4, v3')
    for j in range(8):
        x = (((j & 1) << 1) | ((j >> 2) << 2)) << 5
        if x:
            p.e(f'v_xor_b32 v7, {x}, v6')
        p.e(f'v_add_u32 {v(WQO + j)}, {j * 16384 - 1024 * (j & 3)}, {"v7" if x else "v6"}')
    p.e(f's_lshl_b32 {s(S_LX)}, {s(S_LW)}, 12')
    p.e(f's_lshl_b32 {s(S_LWQ)}, {s(S_LW)}, 13')
    p.e(f's_add_u32 {s(S_LWQ)}, {s(S_LWQ)}, 16384')
    if o.grp == 2:
        p.e(f's_and_b32 {s(S_T)}, {s(S_CT)}, 1')
        p.e(f's_mul_i32 {s(S_SX)}, {s(S_T)}, {5 * 128}')
    elif o.grp == 4:
        p.e(f's_mul_i32 {s(S_T)}, {s(S_CT)}, 5')
        p.e(f's_lshr_b32 {s(S_T)}, {s(S_T)}, 1')
        p.e(f's_lshl_b32 {s(S_SX)}, {s(S_T)}, 7')
    else:
        p.e(f's_mov_b32 {s(S_SX)}, 0')
    p.e(f's_mul_i32 {s(S_T)}, {s(S_BG)}, {128 * 1280}')
    p.e(f's_lshl_b32 {s(S_T2)}, {s(S_XQ)}, 2')
    p.e(f's_add_u32 {s(S_T2)}, {s(S_T2)}, {s(S_HP)}')
    p.e(f's_lshl_b32 {s(S_T2)}, {s(S_T2)}, 9')
    p.e('s_waitcnt lgkmcnt(0)')
    srd(p, SRD_WQ, S_WQ, S_T2, W_BYTES)
    srd(p, SRD_X, S_X, S_T, X_BYTES)

    class VM:
        def __init__(self): self.q = []
        def add(self, tag, n=1): self.q += [tag] * n
        def wait(self, *tags):
            last = -1
            for i, x in enumerate(self.q):
                if x in tags: last = i
            if last < 0: return
            n = len(self.q) - 1 - last
            assert n < 64
            p.e(f's_waitcnt vmcnt({n})')
            self.q = self.q[len(self.q) - n:] if n else []
    vm = VM()

    def issue1(t):
        slot = ((t + 1) % 3) * SLOT
        ntw = ' nt' if t >= o.nt_wq else ''
        ntx = ' nt' if t >= o.nt_x else ''
        p.e(f's_lshl_b32 {s(S_SW)}, {s(S_SX)}, 12')
        p.e(f's_add_u32 m0, {s(S_LWQ)}, {slot}')
        for j in range(4):
            p.e(f'buffer_load_dwordx4 {v(WQO + j)}, {s(SRD_WQ, 4)}, {s(S_SW)} offen offset:{1024 * j}{ntw} lds')
        p.e('s_add_u32 m0, m0, 4096')
        for j in range(4):
            p.e(f'buffer_load_dwordx4 {v(WQO + 4 + j)}, {s(SRD_WQ, 4)}, {s(S_SW)} offen offset:{1024 * j}{ntw} lds')
        p.e(f's_add_u32 m0, {s(S_LX)}, {slot}')
        for j in range(4):
            p.e(f'buffer_load_dwordx4 {v(XO + j)}, {s(SRD_X, 4)}, {s(S_SX)} offen offset:{1024 * j}{ntx} lds')
        if t < 9:
            p.e(f's_add_u32 {s(S_SX)}, {s(S_SX)}, 128')
            p.e(f's_cmp_eq_u32 {s(S_SX)}, 1280')
            p.e(f's_cselect_b32 {s(S_SX)}, 0, {s(S_SX)}')
        vm.add(f'S{t}', 12)

    def bar(*tags):
        vm.wait(*tags)
        if not o.post: st.dyn(SV)
        p.e('s_barrier')
        if o.post: st.dyn(SV)

    def setup():
        srds_loader()
        srds_common()
        p.e(f's_and_b32 s82, {s(S_LW)}, 1')
        p.e(f's_lshr_b32 s83, {s(S_LW)}, 1')
        p.e(f's_lshl_b32 {s(S_KG)}, s83, 6')
        p.e(f's_add_u32 {s(S_KG)}, {s(S_KG)}, s82')
        p.e(f's_lshl_b32 {s(S_KG)}, {s(S_KG)}, 13')
        p.e('s_lshl_b32 s82, s82, 1')
        p.e('s_add_u32 s82, s82, s83')
        p.e('s_lshl_b32 s82, s82, 12')
        p.e(f's_add_u32 {s(S_KL)}, s82, {KB}')
        p.e('v_lshrrev_b32 v3, 4, v2')
        p.e('v_and_b32 v4, 15, v2')
        p.e('v_xor_b32 v4, v3, v4')
        p.e('v_lshlrev_b32 v4, 4, v4')
        p.e(f'v_lshl_add_u32 {v(KO)}, v3, 8, v4')
        for jj in range(1, 4):
            p.e(f'v_xor_b32 {v(KO + jj)}, {64 * jj}, {v(KO)}')
        p.e(f'v_lshlrev_b32 {v(LN16)}, 4, v2')
        p.e(f's_mul_i32 {s(S_T)}, {s(S_LW)}, 20480')
        p.e(f's_mov_b32 {s(S_T2)}, 52429')
        for j in range(5):
            p.e(f'v_add_u32 v3, {64 * j}, v2')
            p.e(f'v_mul_u32_u24 v4, {s(S_T2)}, v3')
            p.e('v_lshrrev_b32 v4, 20, v4')
            p.e('v_and_b32 v5, 8, v4')
            p.e('v_lshrrev_b32 v5, 2, v5')
            p.e('v_xor_b32 v3, v3, v5')
            p.e('v_mul_u32_u24 v4, 960, v4')
            p.e('v_lshl_add_u32 v4, v3, 4, v4')
            p.e(f'v_add_u32 v4, {s(S_T)}, v4')
            p.e(f'v_subrev_u32 {v(WO + j)}, {1024 * (j & 3)}, v4')
        p.e('v_lshrrev_b32 v3, 3, v2')
        p.e('v_lshlrev_b32 v3, 8, v3')
        p.e(f's_lshl_b32 {s(S_T)}, {s(S_LW)}, 18')
        p.e(f'v_add_u32 v3, {s(S_T)}, v3')
        p.e('v_and_b32 v4, 7, v2')
        p.e('v_lshrrev_b32 v5, 4, v2')
        p.e('v_xor_b32 v4, v4, v5')
        p.e('v_lshl_add_u32 v6, v4, 4, v3')
        p.e('v_xor_b32 v7, 64, v6')
        for j in range(4):
            p.e(f'v_add_u32 {v(VO + j)}, {1024 * j}, {"v7" if j & 1 else "v6"}')
        p.e(f's_lshl_b32 {s(S_T)}, {s(S_LW)}, 16')
        p.e(f'v_add_u32 {v(PO)}, {s(S_T)}, {v(LN16)}')
        p.e(f'v_and_b32 {v(FA)}, {7 if o.cpub else 3}, v2')
        p.e(f'v_lshlrev_b32 {v(FA)}, 2, {v(FA)}')
        p.e(f's_mul_i32 {s(S_LWO)}, {s(S_LW)}, 5120')
        p.e(f's_lshl_b32 {s(S_LV)}, {s(S_LW)}, 12')
        p.e(f's_add_u32 {s(S_LV)}, {s(S_LV)}, {VOFF}')
        p.e(f's_lshl_b32 {s(S_PL)}, {s(S_LW)}, 11')
        p.e(f's_add_u32 {s(S_PL)}, {s(S_PL)}, {PBUF}')
        p.e(f's_lshl_b32 {s(S_TV)}, {s(S_HP)}, 1')
        p.e(f's_lshl_b32 {s(S_T)}, {s(S_BG)}, 3')
        p.e(f's_and_b32 {s(S_T2)}, s2, 7')
        p.e(f's_add_u32 {s(S_T)}, {s(S_T)}, {s(S_T2)}')
        if o.cpub:
            p.e(f's_lshl_b32 {s(S_T)}, {s(S_T)}, 1')
            p.e(f's_lshr_b32 {s(S_T2)}, {s(S_LW)}, 1')
            p.e(f's_add_u32 {s(S_T)}, {s(S_T)}, {s(S_T2)}')
        else:
            p.e(f's_lshl_b32 {s(S_T)}, {s(S_T)}, 2')
            p.e(f's_add_u32 {s(S_T)}, {s(S_T)}, {s(S_LW)}')
        p.e(f's_lshl_b32 {s(S_PF)}, {s(S_T)}, 7')
        p.e(f'v_add_u32 {v(TO)}, {s(S_LV)}, {v(LN16)}')
        p.e(f's_lshr_b32 {s(S_T)}, {s(S_BG)}, 2')
        p.e(f's_lshl_b32 {s(S_T)}, {s(S_T)}, 2')
        p.e(f's_add_u32 {s(S_T)}, {s(S_T)}, {s(S_LW)}')
        p.e(f's_lshl_b32 {s(S_T)}, {s(S_T)}, 4')
        p.e('v_lshrrev_b32 v42, 2, v2')
        p.e(f'v_add_u32 v42, {s(S_T)}, v42')
        p.e('v_mul_u32_u24 v42, 1280, v42')
        p.e('v_and_b32 v3, 3, v2')
        p.e('v_lshlrev_b32 v3, 7, v3')
        p.e('v_min_u32 v3, 316, v3')
        p.e('v_add_u32 v42, v42, v3')
        if o.sent:
            for r in range(4):
                p.e(f'v_mov_b32 {v(60 + r)}, -1')
            p.e(f's_mul_i32 s82, {s(S_XQ)}, 40960')
            p.e(f's_lshl_b32 {s(S_T)}, {s(S_LW)}, 11')
            p.e(f's_add_u32 s83, s82, {s(S_T)}')
            p.e(f's_lshl_b32 {s(S_T)}, {s(S_LW)}, 9')
            p.e(f's_add_u32 s82, s82, {s(S_T)}')
            p.e('s_add_u32 s82, s82, 8192')
            p.e('v_lshlrev_b32 v7, 3, v2')
        p.e('v_lshlrev_b32 v43, 7, v2')
        p.e(f's_lshl_b32 {s(S_T)}, {s(S_LW)}, 18')
        p.e(f'v_add_u32 v41, {s(S_T)}, v43')

    def headsel(i):
        if o.order == 'own':
            p.e(f's_add_u32 {s(S_T)}, {s(S_TV)}, {i}')
        else:
            p.e(f's_add_u32 {s(S_T)}, {s(S_TV)}, {2 * (i & 3) + (i >> 2)}')
        p.e(f's_and_b32 {s(S_T)}, {s(S_T)}, 7')

    def producer(i):
        return (i >> 1) if o.order == 'own' else (i & 3)
    NOWN = 2 if o.order == 'own' else 1
    vslot = {}

    def vsoff(T):
        headsel(T >> 1)
        p.e(f's_lshl_b32 {s(S_T)}, {s(S_T)}, 13')
        if T & 1:
            p.e(f's_add_u32 {s(S_T)}, {s(S_T)}, 128')

    nt_k = ' nt' if o.nt_k else ''
    done = set()
    nspin = [0]
    checked = [1]
    ldsw = set()

    def act(x):
        k, n = x[:2], (int(x[2:]) if len(x) > 2 else None)
        done.add(x)
        if o.cpub and k in ('pp', 'pf'):
            assert o.order == 'own'
            return
        if k == 'kp':
            p.e(f's_add_u32 {s(S_T)}, {s(S_KG)}, {(n >> 1) * 32 * 8192 + (n & 1) * 4096}')
            for jj in range(4):
                p.e(f'buffer_load_dwordx4 {v(KP + 16 * n + 4 * jj, 4)}, {v(KO + jj)}, {s(SRD_K, 4)}, {s(S_T)} offen offset:{1024 * jj}{nt_k}')
            vm.add(f'K{n}', 4)
        elif k == 'kf':
            vm.wait(f'K{n}')
            p.e(f'v_add_u32 v3, {s(S_KL)}, {v(LN16)}')
            for jj in range(4):
                p.e(f'ds_write_b128 v3, {v(KP + 16 * n + 4 * jj, 4)} offset:{n * 16384 + jj * 1024}')
        elif k == 'kd':
            p.e(f's_add_u32 {s(S_T)}, {s(S_KG)}, {(n >> 1) * 32 * 8192 + (n & 1) * 4096}')
            p.e(f's_add_u32 m0, {s(S_KL)}, {n * 16384}')
            for jj in range(4):
                p.e(f'buffer_load_dwordx4 {v(KO + jj)}, {s(SRD_K, 4)}, {s(S_T)} offen offset:{1024 * jj}{nt_k} lds')
            vm.add('KD', 4)
            done.add(f'kf{n}')
        elif k == 'vp':
            vsoff(n)
            for j in range(4):
                p.e(f'buffer_load_dwordx4 {v(VP + 16 * (n & 3) + 64 * 0 + 4 * j, 4)}, {v(VO + j)}, {s(SRD_V, 4)}, {s(S_T)} offen offset:{1024 * j}')
            vm.add(f'V{n}', 4)
        elif k == 'vf':
            vm.wait(f'V{n}')
            if n & 3:
                p.e(f'v_add_u32 v3, {(n & 3) * STG}, {v(TO)}')
            for j in range(4):
                p.e(f'ds_write_b128 {"v3" if n & 3 else v(TO)}, {v(VP + 16 * (n & 3) + 4 * j, 4)} offset:{1024 * j}')
            ldsw.add(n)
        elif k == 'vd':
            vsoff(n)
            p.e(f's_add_u32 m0, {s(S_LV)}, {(n & 3) * STG}')
            for j in range(4):
                p.e(f'buffer_load_dwordx4 {v(VO + j)}, {s(SRD_V, 4)}, {s(S_T)} offen offset:{1024 * j} lds')
            vm.add(f'T{n}', 4)
        elif k == 'wd':
            headsel(n >> 1)
            p.e(f's_mul_i32 {s(S_T)}, {s(S_T)}, {128 * 1280}')
            if n & 1:
                p.e(f's_add_u32 {s(S_T)}, {s(S_T)}, {64 * 1280}')
            p.e(f's_add_u32 m0, {s(S_LWO)}, {(n & 3) * STG}')
            for j in range(4):
                p.e(f'buffer_load_dwordx4 {v(WO + j)}, {s(SRD_WO, 4)}, {s(S_T)} offen offset:{1024 * j} lds')
            p.e('s_add_u32 m0, m0, 4096')
            p.e(f'buffer_load_dwordx4 {v(WO + 4)}, {s(SRD_WO, 4)}, {s(S_T)} offen lds')
            vm.add(f'T{n}', 5)
        elif k == 'wp':
            headsel(n >> 1)
            p.e(f's_mul_i32 {s(S_T)}, {s(S_T)}, {128 * 1280}')
            if n & 1:
                p.e(f's_add_u32 {s(S_T)}, {s(S_T)}, {64 * 1280}')
            for j in range(5):
                p.e(f'buffer_load_dwordx4 {v(204 + 20 * (n & 1) + 4 * j, 4)}, {v(WO + j)}, {s(SRD_WO, 4)}, {s(S_T)} offen offset:{1024 * (j & 3)}')
            vm.add(f'W{n}', 5)
        elif k == 'wf':
            vm.wait(f'W{n}')
            p.e(f's_add_u32 {s(S_T)}, {s(S_LWO)}, {(n & 3) * STG}')
            p.e(f'v_add_u32 v3, {s(S_T)}, {v(LN16)}')
            for j in range(5):
                p.e(f'ds_write_b128 v3, {v(204 + 20 * (n & 1) + 4 * j, 4)} offset:{1024 * j}')
            done.add(f'wd{n}')
            ldsw.add(n)
        elif k == 'vt':
            headsel(n)
            p.e(f's_lshl_b32 {s(S_T)}, {s(S_T)}, 13')
            p.e(f'buffer_load_dword v9, v41, {s(SRD_V, 4)}, {s(S_T)} offen')
            vm.add('VT')
        elif k == 'kt':
            p.e(f's_add_u32 {s(S_T)}, {s(S_KG)}, {n * 32 * 8192}')
            p.e(f'buffer_load_dword v9, v43, {s(SRD_K, 4)}, {s(S_T)} offen')
            vm.add('KT')
        elif k == 'wt':
            headsel(n)
            p.e(f's_mul_i32 {s(S_T)}, {s(S_T)}, {128 * 1280}')
            p.e(f'buffer_load_dword v9, v42, {s(SRD_WO, 4)}, {s(S_T)} offen')
            vm.add('WT')
        elif k == 'pr':
            p.e(f's_setprio {n}')
        elif k == 'td':
            act(f'vd{n}'); act(f'wd{n}')
        elif k == 'pd':
            headsel(n)
            p.e(f's_lshl_b32 {s(S_T)}, {s(S_T)}, 11')
            p.e(f's_add_u32 m0, {s(S_PL)}, {(n & 1) * 8192}')
            for j in range(2):
                p.e(f'buffer_load_dwordx4 {v(PO)}, {s(SRD_P, 4)}, {s(S_T)} offen offset:{1024 * j} sc1 lds')
            vm.add(f'P{n}', 2)
        elif k == 'pp':
            p.e(f'v_add_u32 v3, {s(S_PL)}, {v(LN16)}')
            for q in range(4):
                p.e(f'ds_read_b128 {v(PR + 4 * q, 4)}, v3 offset:{(q >> 1) * 8192 + (q & 1) * 1024}')
            p.e(f's_lshl_b32 {s(S_T)}, {s(S_HP)}, 12')
            for q in range(4):
                p.e(f'buffer_store_dwordx4 {v(PR + 4 * q, 4)}, {v(PO)}, {s(SRD_P, 4)}, {s(S_T)} offen offset:{q * 1024} sc1')
            vm.add('PS', 4)
        elif k == 'pf':
            assert 'pp' in done
            p.e(f'v_mov_b32 v4, {s(S_TAG)}')
            p.e('v_mov_b32 v5, 0')
            p.e(f's_lshl_b32 {s(S_T)}, {s(S_HP)}, 2')
            p.e(f's_add_u32 {s(S_T)}, {s(S_T)}, {s(S_PF)}')
            vm.wait('PS')
            p.e(f'buffer_store_dword v4, v5, {s(SRD_FL, 4)}, {s(S_T)} offen sc1')
            vm.add('FL')
        elif k == 'po':
            p.e(f'buffer_load_dword v6, {v(FA)}, {s(SRD_FL, 4)}, {s(S_PF)} offen sc1')
            vm.add('PL')
        elif k == 'ck':
            assert 'pf' in done
            p.e('s_mov_b32 s78, 0')
            for d in range(4):
                if n >> d & 1:
                    p.e(f's_add_u32 {s(S_T)}, {s(S_HP)}, {d}')
                    p.e(f's_and_b32 {s(S_T)}, {s(S_T)}, 3')
                    if o.cpub:
                        p.e(f's_lshl_b32 {s(S_T)}, {s(S_T)}, 1')
                        p.e(f's_lshl_b32 {s(S_T)}, 0x03030303, {s(S_T)}')
                    else:
                        p.e(f's_lshl_b32 {s(S_T)}, 0x11111111, {s(S_T)}')
                    p.e(f's_or_b32 s78, s78, {s(S_T)}')
            p.e('s_not_b32 s78, s78')
            p.e('s_mov_b32 s79, s78')
            vm.wait('PL')
            nspin[0] += 1
            spin(f'L_pspin{nspin[0]}', 6, FA, S_PF, 78, first_issued=True)
            checked[0] |= n
            if not o.post: st.dyn(SV)
        elif k == 'xf':
            p.e(f's_xor_b32 {s(S_T)}, {s(S_XQ)}, {n + 1}')
            p.e(f's_mul_i32 {s(S_T)}, {s(S_T)}, 10240')
            p.e(f's_add_u32 {s(S_T2)}, {s(S_T)}, s83')
            for h in range(2):
                p.e(f'buffer_store_dwordx4 v[60:63], {v(LN16)}, {s(SRD_XB, 4)}, {s(S_T2)} offen offset:{h * 1024} sc1')
            p.e(f's_add_u32 {s(S_T2)}, {s(S_T)}, s82')
            p.e(f'buffer_store_dwordx2 v[60:61], v7, {s(SRD_XB, 4)}, {s(S_T2)} offen sc1')
            vm.add('XF', 3)
        elif k == 'xr':
            assert all(f'xf{i}' in done for i in range(3)) and (checked[0] == 15 or o.sent == 2)
            p.e(f's_lshr_b32 s80, s2, 2')
            p.e('s_lshl_b32 s80, s80, 7')
            p.e(f's_add_u32 s80, s80, {FL_XF + 65536}')
            p.e(f'v_mov_b32 v4, {s(S_TAG)}')
            p.e('v_mov_b32 v5, 0')
            p.e(f's_lshl_b32 {s(S_T)}, {s(S_XQ)}, 2')
            p.e(f's_add_u32 {s(S_T)}, {s(S_T)}, {s(S_LW)}')
            p.e(f's_lshl_b32 {s(S_T)}, {s(S_T)}, 2')
            p.e(f's_add_u32 {s(S_T)}, {s(S_T)}, s80')
            p.e(f'v_and_b32 v8, 15, v2')
            p.e('v_lshlrev_b32 v8, 2, v8')
            vm.wait('XF')
            p.e(f'buffer_store_dword v4, v5, {s(SRD_FL, 4)}, {s(S_T)} offen sc1')
            vm.add('FL')
        elif k == 'xo':
            assert 'xr' in done
            p.e(f'buffer_load_dword v6, v8, {s(SRD_FL, 4)}, s80 offen sc1')
            vm.add('XL')
        elif k == 'xc':
            p.e('s_mov_b64 s[78:79], 0')
            vm.wait('XL')
            spin('L_xrspin', 6, 8, 80, 78, first_issued=True)
        else:
            raise ValueError(x)

    st.dyn(SV)
    issue1(0)
    setup()
    issue1(1)
    make_tag()
    traces_p1 = []
    ngrp = len(o.ksched)
    if ngrp > 1:
        p.e(f's_and_b32 {s(S_T)}, {s(S_BG)}, {ngrp - 1}')
        for gi in range(1, ngrp):
            p.e(f's_cmp_eq_u32 {s(S_T)}, {gi}')
            p.e(f's_cbranch_scc1 L_kg{gi}')
    l1b = p.pos()
    q0 = list(vm.q)
    endq = []
    for gi, ks in enumerate(o.ksched):
        if gi >= 1:
            p.e(f'L_kg{gi}:')
        ga = p.pos()
        vm.q = list(q0)
        nxt = 2
        for t in range(2, 10):
            assert nxt > t - 2
            bar(f'S{t - 2}')
            acts = list(ks.get(t, []))
            if 'S' not in acts and 'N' not in acts: acts = ['S'] + acts
            for x in acts:
                if x == 'N':
                    pass
                elif x == 'S':
                    assert nxt <= t
                    issue1(nxt); nxt += 1
                else:
                    assert x[:2] in ('kp', 'vp', 'wp', 'vt', 'kt', 'wt', 'xf') or x in ('kf3', 'kd3'), x
                    act(x)
        assert nxt == 10
        bar('S8')
        endq.append(list(vm.q))
        if gi < ngrp - 1:
            p.e('s_branch L_kjoin')
        traces_p1.append((ga, p.pos()))
    if ngrp > 1:
        p.e('L_kjoin:')
    endq.sort(key=len)
    assert all(endq[-1][len(endq[-1]) - len(x):] == x for x in endq if x), endq
    vm.q = endq[-1]
    l2 = p.pos()
    plan_ = dict(o.plan)
    EARLY = {'B8': [], 'B9': ['wd0', 'vd0', 'vf0', 'td0', 'wf0'], 'B10': ['wd0', 'vd0', 'vf0', 'td0', 'wf0', 'wd1', 'vd1', 'vf1', 'td1', 'wf1', 'wd2']}

    EARLY['BK'] = EARLY['B10'] + ['vd2', 'vf2', 'td2', 'wd3', 'vd3', 'vf3', 'td3']

    def run_early(key):
        for x in plan_.get(key, []):
            if x[:2] in ('wd', 'vd', 'vf', 'td', 'wf'):
                assert x in EARLY[key], (key, x)
            assert x[:2] not in ('pd', 'pp', 'pf')
            act(x)

    run_early('B8')
    bar('S9')
    run_early('B9')
    assert all(f'kf{g}' in done for g in range(4))
    p.e('s_waitcnt lgkmcnt(0)')
    bar('KD')
    run_early('B10')
    if o.bk:
        bar()
        run_early('BK')
    for T in range(0, 16):
        single = (T >> 1) >= o.n2b
        if single and T & 1:
            assert not plan_.get(f'P{T}'), T
            continue
        tags = []
        for TT in ([T, T + 1] if single else [T]):
            assert f'vf{TT}' in done or f'vd{TT}' in done, TT
            assert f'wd{TT}' in done, TT
            tags.append(f'T{TT}')
        need = [T // 2 - 1] if T % 2 == 0 and T >= 2 else []
        if T == 15: need = need + [7]
        for i in need:
            if i >= NOWN:
                assert f'pd{i}' in done, (T, i)
                tags.append(f'P{i}')
        if T in ldsw or (single and T + 1 in ldsw):
            p.e('s_waitcnt lgkmcnt(0)')
            ldsw.clear()
        if T == 15 and o.sent: assert 'xc' in done
        bar(*tags)
        for x in plan_.get(f'P{T}', []):
            k, n = x[:2], (int(x[2:]) if len(x) > 2 else None)
            if k in ('vd', 'wd', 'td', 'vf', 'wf'): assert n - 4 < T, (T, x)
            if k == 'pd':
                assert 2 * (n - 2) + 3 <= T, (T, x)
                assert checked[0] >> producer(n) & 1, (T, x)
                assert 'pf' in done
                assert 'pp' in done
            act(x)
    if o.n2b < 8:
        assert 'pd7' in done
        if o.sent: assert 'xc' in done
        bar('P7')
    reduce_setup(42, LN16, VOUT, S_LW)
    p.e(f's_lshl_b32 {s(S_T)}, {s(S_LW)}, 12')
    p.e(f'v_add_u32 v3, {s(S_T)}, {v(LN16)}')
    p.e('s_barrier')
    st.dyn(SV)
    for q in range(4):
        p.e(f'ds_read_b128 {v(48 + 4 * q, 4)}, v3 offset:{q * 1024}')
    reduce_run(48, 64, 42, LN16, VOUT, 'L_xspin_l', SV)
    st.flush(SV, 201)
    p.e('L_end:')
    p.e('s_endpgm')
    l5 = p.pos()
    for tr in traces_p1:
        p.add_trace([(t0, t1), (l0, l1b), tr, (l2, l5)])

    p.e('L_compute:')
    c0 = p.pos()
    ACC = 0; AF = 128; BF = 160; AA = 192; BA = 200; SR = 212
    LN16c, KA, PD, WA, VA, PA, VTAG, VZ, SVC = 244, 245, 247, 248, 250, 252, 253, 254, 255
    L = 'v202'
    p.e(f'v_mov_b32 {L}, v2')
    if o.codepf:
        p.e(f's_cmp_lt_u32 {s(S_WV)}, {o.codepf}')
        p.e('s_cbranch_scc0 L_nopf')
        p.e(f's_and_b32 {s(S_T)}, {s(S_BG)}, {o.codepf_mask}')
        p.e(f's_cmp_eq_u32 {s(S_T)}, 0')
        p.e('s_cbranch_scc0 L_nopf')
        p.e('s_getpc_b64 s[76:77]')
        p.e('L_pc:')
        p.e(f's_sub_u32 s76, s76, L_pc-{KN}')
        p.e('s_subb_u32 s77, s77, 0')
        p.e('v_lshlrev_b32 v210, 7, v0')
        p.e(f'v_min_u32 v210, L_codeend-{KN}-4, v210')
        p.e('global_load_dword v246, v210, s[76:77]')
        p.e('L_nopf:')
    S_HH, S_BP = 77, 78
    p.e(f's_and_b32 {s(S_HH)}, {s(S_WV)}, 1')
    p.e(f's_lshr_b32 {s(S_BP)}, {s(S_WV)}, 1')
    p.e(f'v_bfe_u32 v203, {L}, 2, 2')
    p.e(f'v_lshrrev_b32 v204, 4, {L}')
    p.e(f'v_and_b32 v205, 3, {L}')
    p.e(f'v_and_b32 v206, 15, {L}')
    p.e('v_lshl_add_u32 v207, v204, 3, v203')
    p.e('v_and_b32 v208, 1, v204')
    p.e('v_lshl_add_u32 v209, v208, 2, v203')
    p.e('v_lshlrev_b32 v209, 5, v209')
    p.e('v_lshl_add_u32 v209, v207, 9, v209')
    p.e('v_lshl_add_u32 v209, v205, 3, v209')
    p.e(f's_lshl_b32 {s(S_T)}, {s(S_HH)}, 8')
    p.e(f's_add_u32 {s(S_T)}, {s(S_T)}, {16384 + SLOT}')
    p.e(f'v_add_u32 {v(AA)}, {s(S_T)}, v209')
    for j in range(1, 8):
        p.e(f'v_xor_b32 {v(AA + j)}, {j * 32}, {v(AA)}')
    p.e('v_lshrrev_b32 v209, 1, v206')
    p.e('v_xor_b32 v209, v209, v204')
    p.e('v_lshlrev_b32 v209, 4, v209')
    p.e('v_lshl_add_u32 v209, v206, 7, v209')
    p.e(f's_lshl_b32 {s(S_T)}, {s(S_BP)}, 13')
    p.e(f's_add_u32 {s(S_T2)}, {s(S_T)}, {SLOT}')
    p.e(f'v_add_u32 {v(BA)}, {s(S_T2)}, v209')
    p.e(f'v_xor_b32 {v(BA + 1)}, 64, {v(BA)}')
    p.e(f's_add_u32 {s(S_T2)}, {s(S_T)}, {VOFF}')
    p.e(f'v_add_u32 {v(VA)}, {s(S_T2)}, v209')
    p.e(f'v_xor_b32 {v(VA + 1)}, 64, {v(VA)}')
    p.e('v_lshrrev_b32 v209, 1, v204')
    p.e('v_xor_b32 v209, v209, v206')
    p.e('v_lshlrev_b32 v209, 4, v209')
    p.e('v_lshl_add_u32 v209, v206, 8, v209')
    p.e('v_lshl_add_u32 v209, v208, 3, v209')
    p.e(f's_lshl_b32 {s(S_T)}, {s(S_HH)}, 1')
    p.e(f's_add_u32 {s(S_T)}, {s(S_T)}, {s(S_BP)}')
    p.e(f's_lshl_b32 {s(S_T)}, {s(S_T)}, 12')
    p.e(f's_add_u32 {s(S_T2)}, {s(S_T)}, {KB}')
    p.e(f'v_add_u32 {v(KA)}, {s(S_T2)}, v209')
    p.e(f'v_lshlrev_b32 {v(LN16c)}, 4, {L}')
    p.e(f's_add_u32 {s(S_T2)}, {s(S_T)}, {PBUF}')
    p.e(f'v_add_u32 {v(PD)}, {s(S_T2)}, {v(LN16c)}')
    p.e(f's_lshl_b32 {s(S_T)}, {s(S_BP)}, 12')
    p.e(f's_add_u32 {s(S_T)}, {s(S_T)}, {PBUF}')
    p.e(f'v_add_u32 {v(PA)}, {s(S_T)}, {v(LN16c)}')
    p.e('v_mul_u32_u24 v209, 320, v207')
    p.e('v_lshl_add_u32 v209, v205, 3, v209')
    p.e(f's_mul_i32 {s(S_T)}, {s(S_HH)}, 160')
    p.e(f'v_add_u32 v209, {s(S_T)}, v209')
    p.e(f's_mul_i32 {s(S_T)}, {s(S_HH)}, -64')
    p.e(f's_add_u32 {s(S_T)}, {s(S_T)}, 32')
    p.e(f'v_mul_lo_u32 v210, {s(S_T)}, v208')
    p.e(f'v_add_u32 {v(WA)}, v209, v210')
    p.e(f'v_sub_u32 {v(WA + 1)}, v209, v210')
    for r in range(128):
        p.e(f'v_mov_b32 {v(ACC + r)}, 0')
    p.e('s_waitcnt lgkmcnt(0)')
    if o.cpub:
        p.e(f's_lshl_b32 s76, {s(S_BG)}, 7')
        p.e(f's_lshl_b32 {s(S_T)}, {s(S_XQ)}, 3')
        p.e(f's_add_u32 s76, s76, {s(S_T)}')
        p.e(f's_lshl_b32 {s(S_T)}, {s(S_BR)}, 10')
        p.e(f's_add_u32 {s(S_T)}, {s(S_T)}, s76')
        p.e(f's_lshl_b32 {s(S_T)}, {s(S_T)}, 11')
        srd(p, SRD_P, S_WS, S_T, 4 << 20)
        p.e(f's_lshl_b32 s80, {s(S_BP)}, 6')
        p.e(f's_lshl_b32 {s(S_T)}, {s(S_HP)}, 1')
        p.e(f's_add_u32 {s(S_T)}, {s(S_T)}, {s(S_HH)}')
        p.e(f's_add_u32 s80, s80, {s(S_T)}')
        p.e('s_lshl_b32 s80, s80, 11')
        p.e(f's_add_u32 s81, s80, {32 * 2048}')
        p.e(f's_lshl_b32 s82, {s(S_BG)}, 3')
        p.e(f's_and_b32 {s(S_T2)}, s2, 7')
        p.e(f's_add_u32 s82, s82, {s(S_T2)}')
        p.e('s_lshl_b32 s82, s82, 1')
        p.e(f's_add_u32 s82, s82, {s(S_BP)}')
        p.e('s_lshl_b32 s82, s82, 7')
        p.e(f's_lshl_b32 {s(S_T)}, {s(S_T)}, 2')
        p.e(f's_add_u32 s82, s82, {s(S_T)}')
    srds_common()
    make_tag()
    p.e(f'v_mov_b32 {v(VTAG)}, {s(S_TAG)}')
    p.e(f'v_mov_b32 {v(VZ)}, 0')
    p.e(f's_mov_b32 {s(S_CNT)}, 0')
    p.e(f's_mov_b32 {s(S_POS)}, 1')
    p.e(f's_mov_b32 {s(S_STEP)}, {SLOT}')
    cexp = (128 ** -0.5) * math.log2(math.e)
    p.e(f's_mov_b32 {s(S_C)}, {f32hex(cexp)}')
    p.e(f's_mov_b32 {s(S_C + 1)}, {f32hex(cexp)}')

    def acc(j, qt):
        return ACC + ((j >> 1) * 4 + qt) * 8 + (j & 1) * 4

    def a_reads(f):
        tp, j = f >> 3, f & 7
        return [f'ds_read_b64_tr_b16 {v(AF + j * 4 + 2 * u, 2)}, {v(AA + j)} offset:{(32 * tp + 4 * u) * 512}' for u in range(2)]

    def b_read(tp, qt):
        return f'ds_read_b128 {v(BF + tp * 16 + qt * 4, 4)}, {v(BA + tp)} offset:{qt * 2048}'

    def m1(m):
        tp, j, qt = m >> 5, (m >> 2) & 7, m & 3
        if o.hack_skip1 and (m % o.hack_skip1[1]) < o.hack_skip1[0]:
            return 's_nop 1'
        return f'{M16} {v(acc(j, qt), 4)}, {v(AF + j * 4, 4)}, {v(BF + tp * 16 + qt * 4, 4)}, {v(acc(j, qt), 4)}'

    bB = o.bB
    head_reads = [(b_read(0, 0), bB, 63)] + [(r, bB, 63) for r in a_reads(0)] + [(b_read(0, q), bB, 63) for q in (1, 2, 3)]
    nh = 0
    for f in range(1, 8):
        lo = max(bB, 4 * (f + 8) + 3)
        if len(head_reads) + 2 > 63 - bB or lo > 62:
            break
        head_reads += [(r, lo, 63) for r in a_reads(f)]
        nh = f
    G1 = Gaps(64)
    G1.fix(bB, ['s_waitcnt lgkmcnt(0)', 's_barrier'])
    body = []
    for f in range(nh + 1, 16):
        lo = max(0, 4 * (f - 8) + 3)
        body += [(r, lo, min(4 * f - 8, bB - 6)) for r in a_reads(f)]
        if f == 8:
            body += [(b_read(1, q), 0, 24) for q in range(4)]
    gend = G1.place(body)
    sal = [f's_add_u32 {s(S_POS)}, {s(S_POS)}, 1', f's_cmp_eq_u32 {s(S_POS)}, 3',
           f's_cselect_b32 {s(S_DELTA)}, {-2 * SLOT & 0xffffffff}, {s(S_STEP)}', f's_cselect_b32 {s(S_POS)}, 0, {s(S_POS)}',
           f's_add_u32 {s(S_CNT)}, {s(S_CNT)}, 1']
    G1.place([(x, 2, 30) for x in sal], step=2)
    advv = [f'v_add_u32 {v(a)}, {s(S_DELTA)}, {v(a)}' for a in list(range(AA, AA + 8)) + [BA, BA + 1]]
    G1.place([(x, gend, bB - 1) for x in advv], start=gend, step=0)
    G1.place([(f's_cmp_eq_u32 {s(S_CNT)}, 10', bB - 1, bB - 1)]) if G1.room(bB - 1, False) else G1.fix(bB - 1, [f's_cmp_eq_u32 {s(S_CNT)}, 10'])
    Gh = Gaps(64)
    Gh.place(head_reads, start=bB)

    st.dyn(SVC)
    p.e('s_barrier')
    st.dyn(SVC); st.dyn(SVC, True)
    for r, _, _ in head_reads:
        p.e(r)
    if o.al1 is not None:
        p.e('.p2align 6')
        for _ in range(o.al1): p.e('s_nop 0')
    c1 = p.pos()
    p.e('L_c1:')
    for m in range(bB + 1):
        p.e(m1(m))
        for x in G1.g[m]:
            p.e(x)
    p.e('s_cbranch_scc1 L_c1_done')
    c1b = p.pos()
    for x in Gh.g[bB]:
        p.e(x)
    for m in range(bB + 1, 64):
        p.e(m1(m))
        for x in Gh.g[m]:
            p.e(x)
    p.e('s_branch L_c1')
    c2 = p.pos()
    p.e('L_c1_done:')
    st.dyn(SVC); st.dyn(SVC, True)
    assert bB == 47
    KF = [BF, AF, AF + 16, BF + 16]
    nd = 63 - bB
    ms = [m1(m) for m in range(bB + 1, 64)]
    for t in range(4):
        for bb in range(2):
            for a in range(2):
                for c in range(2):
                    d = SR + (bb * 2 + c) * 8 + a * 4
                    cc = '0' if t == 0 else v(d, 4)
                    ms.append(f'{M16} {v(d, 4)}, {v(KF[t] + (bb * 2 + a) * 4, 4)}, {v(ACC + (t * 4 + bb * 2 + c) * 8, 4)}, {cc}')
    kx = [f'v_xor_b32 {v(AA + i)}, {i * 32}, {v(KA)}' for i in range(8)]

    def k_reads(t):
        return [f'ds_read_b64 {v(KF[t] + g * 4 + 2 * h, 2)}, {v(AA + 2 * t + h)} offset:{g * 16384}' for g in range(4) for h in range(2)]

    def q_cvt(t):
        return [f'v_cvt_pk_bf16_f32 {v(ACC + (t * 4 + qt) * 8 + r)}, {v(ACC + (t * 4 + qt) * 8 + 2 * r)}, {v(ACC + (t * 4 + qt) * 8 + 2 * r + 1)}'
                for qt in range(4) for r in range(4)]

    for x in kx[:4]:
        p.e(x)
    GT = Gaps(len(ms), cap=3)
    GT.place([(r, 0, nd - 1) for r in k_reads(0) + k_reads(1)])
    GT.place([(x, 0, nd - 1) for x in q_cvt(0)] + [(x, 0, nd + 6) for x in kx[4:] + q_cvt(1)], step=0)
    GT.place([(r, nd - 1, nd + 14) for r in k_reads(2)] + [(r, nd - 1, nd + 22) for r in k_reads(3)], start=nd - 1)
    GT.place([(x, 10, nd + 14) for x in q_cvt(2)] + [(x, nd + 2, nd + 22) for x in q_cvt(3)], step=0)
    for m, x in enumerate(ms):
        p.e(x)
        for y in GT.g[m]:
            p.e(y)

    if o.bk:
        p.e('s_waitcnt lgkmcnt(0)')
        p.e('s_barrier')
    TM = AA
    U = [SR + u * 8 for u in range(4)]
    for u in range(4):
        p.e(f'v_max3_f32 {v(TM + u)}, {v(U[u])}, {v(U[u] + 1)}, {v(U[u] + 2)}')
    for u in range(4):
        p.e(f'v_max3_f32 {v(TM + 4 + u)}, {v(U[u] + 3)}, {v(U[u] + 4)}, {v(U[u] + 5)}')
    for u in range(4):
        p.e(f'v_max3_f32 {v(TM + u)}, {v(TM + u)}, {v(U[u] + 6)}, {v(U[u] + 7)}')
    for u in range(4):
        p.e(f'v_max_f32 {v(TM + u)}, {v(TM + u)}, {v(TM + 4 + u)}')

    def xreduce(op):
        a0, a1, a2, a3 = TM, TM + 1, TM + 2, TM + 3
        p.e(f'v_permlane32_swap_b32 {v(a0)}, {v(a1)}')
        p.e(f'v_permlane32_swap_b32 {v(a2)}, {v(a3)}')
        p.e(f'{op} {v(a0)}, {v(a0)}, {v(a1)}')
        p.e(f'{op} {v(a2)}, {v(a2)}, {v(a3)}')
        p.e(f'v_permlane16_swap_b32 {v(a0)}, {v(a2)}')
        p.e(f'{op} {v(a0)}, {v(a0)}, {v(a2)}')

    def xbcast():
        a0 = TM
        p.e(f'v_mov_b32 {v(TM + 4)}, {v(a0)}')
        p.e(f'v_permlane16_swap_b32 {v(a0)}, {v(TM + 4)}')
        p.e(f'v_mov_b32 {v(TM + 2)}, {v(a0)}')
        p.e(f'v_mov_b32 {v(TM + 6)}, {v(TM + 4)}')
        p.e(f'v_permlane32_swap_b32 {v(a0)}, {v(TM + 2)}')
        p.e(f'v_permlane32_swap_b32 {v(TM + 4)}, {v(TM + 6)}')

    xreduce('v_max_f32')
    p.e(f'v_mul_f32 {v(TM)}, {s(S_C)}, {v(TM)}')
    xbcast()
    for u in range(4):
        for r in range(0, 8, 2):
            p.e(f'v_pk_fma_f32 {v(U[u] + r, 2)}, {v(U[u] + r, 2)}, {s(S_C, 2)}, {v(TM + 2 * u, 2)} op_sel_hi:[1,1,0] neg_lo:[0,0,1] neg_hi:[0,0,1]')
    for u in range(4):
        for r in range(8):
            p.e(f'v_exp_f32 {v(U[u] + r)}, {v(U[u] + r)}')
    T2 = BF
    for u in range(4):
        p.e(f'v_pk_add_f32 {v(T2 + 4 * u, 2)}, {v(U[u], 2)}, {v(U[u] + 2, 2)}')
        p.e(f'v_pk_add_f32 {v(T2 + 4 * u + 2, 2)}, {v(U[u] + 4, 2)}, {v(U[u] + 6, 2)}')
    for u in range(4):
        p.e(f'v_pk_add_f32 {v(T2 + 4 * u, 2)}, {v(T2 + 4 * u, 2)}, {v(T2 + 4 * u + 2, 2)}')
    for u in range(4):
        p.e(f'v_add_f32 {v(TM + u)}, {v(T2 + 4 * u)}, {v(T2 + 4 * u + 1)}')
    xreduce('v_add_f32')
    p.e(f'v_rcp_f32 {v(TM)}, {v(TM)}')
    xbcast()
    for u in range(4):
        for r in range(0, 8, 2):
            p.e(f'v_pk_mul_f32 {v(U[u] + r, 2)}, {v(U[u] + r, 2)}, {v(TM + 2 * u, 2)} op_sel_hi:[1,0]')
        for r in range(4):
            p.e(f'v_cvt_pk_bf16_f32 {v(U[u] + r)}, {v(U[u] + 2 * r)}, {v(U[u] + 2 * r + 1)}')
        p.e(f'ds_write_b128 {v(PD)}, {v(U[u], 4)} offset:{u * 1024}')
        if o.cpub:
            p.e(f'buffer_store_dwordx4 {v(U[u], 4)}, {v(LN16c)}, {s(SRD_P, 4)}, {s(80 + (u >> 1))} offen offset:{(u & 1) * 1024} sc1')

    OUT = 0; VW = 80; VF = 160; WF = 192; NW = 5; PF = 212
    bO, bE = o.bO, o.bE
    p.e(f's_mov_b32 {s(S_CNT)}, 0')
    p.e(f's_mov_b32 {s(S_POS)}, 0')
    p.e(f's_mov_b32 {s(S_STEP)}, {STG}')

    def w_reads(f):
        ks, n = (f // 5) & 1, f % 5
        d = WF + (f % NW) * 4
        return [f'ds_read_b64_tr_b16 {v(d + 2 * u, 2)}, {v(WA + (n & 1))} offset:{(32 * ks + 4 * u) * 320 + n * 32}' for u in range(2)]

    def v_reads(ks):
        return [f'ds_read_b128 {v(VF + (ks & 1) * 16 + u * 4, 4)}, {v(VA + (ks & 1))} offset:{u * 2048}' for u in range(4)]

    def p_reads():
        return [f'ds_read_b128 {v(PF + 4 * u, 4)}, {v(PA)} offset:{1024 * u}' for u in range(4)]

    def m2(m, first):
        if m < 80:
            ks, n, u = m // 20, (m % 20) >> 2, m & 3
            d = VW + (n * 2 + (u >> 1)) * 8 + (u & 1) * 4
            cc = '0' if ks == 0 else v(d, 4)
            return f'{M16} {v(d, 4)}, {v(VF + (ks & 1) * 16 + u * 4, 4)}, {v(WF + ((m >> 2) % NW) * 4, 4)}, {cc}'
        n, u = (m - 80) >> 2, m & 3
        d = OUT + n * 16 + u * 4
        cc = '0' if first else v(d, 4)
        return f'{M16} {v(d, 4)}, {v(VW + (n * 2 + (u >> 1)) * 8, 4)}, {v(PF + 4 * u, 4)}, {cc}'

    def adv2():
        sal = [f's_add_u32 {s(S_POS)}, {s(S_POS)}, 1', f's_cmp_eq_u32 {s(S_POS)}, 4',
               f's_cselect_b32 {s(S_DELTA)}, {(-3 * STG) & 0xffffffff}, {s(S_STEP)}', f's_cselect_b32 {s(S_POS)}, 0, {s(S_POS)}']
        ad = [f'v_add_u32 {v(a)}, {s(S_DELTA)}, {v(a)}' for a in (WA, WA + 1, VA, VA + 1)]
        return sal, ad

    pre_reads = v_reads(0)[:1] + w_reads(0) + v_reads(0)[1:] + sum((w_reads(f) for f in range(1, 5)), []) + v_reads(1)

    def head_gaps(last, two=True):
        G = Gaps(100)
        bO = o.bO if two else 22
        if two:
            G.fix(bO, ['s_waitcnt lgkmcnt(0)', 's_barrier'])
        if not last:
            G.fix(bE, ['s_waitcnt lgkmcnt(0)', 's_barrier'])
        elif not two:
            G.fix(bE, ['s_barrier'])
        ge = G.place([(r, 4 * (f - 5) + 3, o.bO - 5) for f in range(5, 10) for r in w_reads(f)])
        sal, ad = adv2()
        G.place([(x, 1, 20) for x in sal], step=2)
        G.place([(x, ge, bO) for x in ad], start=ge, step=0)
        it = [(v_reads(2)[0], bO + 1, 34)] + [(r, bO + 1, 34) for r in w_reads(10)] + [(r, bO + 1, 36) for r in v_reads(2)[1:]]
        for f in range(11, 20):
            it += [(r, max(bO + 1, 4 * (f - 5) + 3), min(4 * f - 5, bE - 5)) for r in w_reads(f)]
            if f == 14:
                it += [(r, 39, 54) for r in v_reads(3)]
        go = G.place(it)
        if not last:
            sal, ad = adv2()
            G.place([(x, bO + 2, 55) for x in sal], step=2)
            G.place([(x, go, bE - 1) for x in ad], start=go, step=0)
        slot_free = lambda f: 4 * (f + 15) + 3
        nx = [(r, bE + 1, 76) for r in p_reads()]
        if not last:
            v0 = v_reads(0); v1 = v_reads(1)
            nx += [(v0[0], bE + 1, 99)] + [(r, slot_free(0), 99) for r in w_reads(0)] + [(r, bE + 1, 99) for r in v0[1:]]
            for f in range(1, 5):
                nx += [(r, slot_free(f), 99) for r in w_reads(f)]
            nx += [(r, 79, 99) for r in v1]
        G.place(nx, start=bE + 1)
        if not last:
            G.place([(f'v_xor_b32 {v(PA)}, 8192, {v(PA)}', 78, 99)])
        cv = []
        for n in range(5):
            for bb in range(2):
                b = VW + (n * 2 + bb) * 8
                cv += [(f'v_cvt_pk_bf16_f32 {v(b + r)}, {v(b + 2 * r)}, {v(b + 2 * r + 1)}', 60 + 4 * n + 2 * bb + 1 + 3, 80 + 4 * n + 2 * bb - 2) for r in range(4)]
        G.place(cv, step=0)
        return G

    def emit_head(G, first, lo=0, hi=100):
        for m in range(lo, hi):
            p.e(m2(m, first))
            for x in G.g[m]:
                p.e(x)

    p.e('s_waitcnt lgkmcnt(0)')
    st.dyn(SVC)
    p.e('s_barrier')
    st.dyn(SVC); st.dyn(SVC, True)
    for r in pre_reads:
        p.e(r)
    G0 = head_gaps(False, o.n2b > 0)
    if o.cpub:
        G0.fix(o.cpub, ['s_waitcnt vmcnt(0)', f'buffer_store_dword {v(VTAG)}, {v(VZ)}, {s(SRD_FL, 4)}, s82 offen sc1'])
    emit_head(G0, True)
    npeel = 1
    if 1 < o.n2b < 7:
        for _ in range(1, o.n2b):
            emit_head(head_gaps(False, True), False)
        npeel = o.n2b
    if o.al2 is not None:
        p.e('.p2align 3')
        for _ in range(o.al2): p.e('s_nop 0')
    c3 = p.pos()
    p.e('L_c2:')
    Gm = head_gaps(False, o.n2b >= 7)
    Gm.place([(f's_add_u32 {s(S_CNT)}, {s(S_CNT)}, 1', 94, 98), (f's_cmp_lt_u32 {s(S_CNT)}, {7 - npeel}', 95, 99)])
    Gm.fix(99, ['s_cbranch_scc1 L_c2'])
    emit_head(Gm, False)
    c4 = p.pos()
    Gl = head_gaps(True, o.n2b >= 8)
    Gl.place([(x, 40, 79) for x in [f's_mul_i32 s76, {s(S_WV)}, 40960', f's_mul_i32 {s(S_T)}, {s(S_XQ)}, 10240', f's_add_u32 s76, s76, {s(S_T)}',
                                     's_add_u32 s77, s76, 4096', 's_add_u32 s78, s76, 8192',
                                     's_and_b32 s79, s2, 0xfc', f's_add_u32 s79, s79, {s(S_WV)}', 's_lshl_b32 s79, s79, 7',
                                     f's_lshl_b32 {s(S_T2)}, {s(S_XQ)}, 2', f's_add_u32 s79, s79, {s(S_T2)}', f's_add_u32 s79, s79, {FL_XF}',
                                     f's_cmp_eq_u32 {s(S_WV)}, {s(S_XQ)}']], step=0)
    emit_head(Gl, False, 0, 80)
    p.e('s_cbranch_scc1 L_keeper')
    c5 = p.pos()
    Gs = [list(x) for x in Gl.g] + [[] for _ in range(8)]
    for pc in range(10):
        b = OUT + 8 * pc
        d = VF + pc * 4
        g = 80 + 2 * pc + 1 + 3
        Gs[g] += [f'v_cvt_pk_bf16_f32 {v(d + r)}, {v(b + 2 * r)}, {v(b + 2 * r + 1)}' for r in range(4)]
        Gs[g] += [f'buffer_store_dwordx4 {v(d, 4)}, {v(LN16c)}, {s(SRD_XB, 4)}, {s(76 + pc // 4)} offen offset:{(pc % 4) * 1024} sc1']
    for m in range(80, 108):
        if m < 100: p.e(m2(m, False))
        for x in Gs[m]:
            p.e(x)
    if o.sent == 2:
        p.e(f'buffer_store_dword {v(VTAG)}, {v(VZ)}, {s(SRD_FL, 4)}, s79 offen sc1')
    st.dyn(SVC); st.dyn(SVC, True)
    p.e('s_barrier')
    if not o.sent:
        p.e(f's_and_b32 {s(S_T)}, s2, 0xfc')
        p.e(f's_add_u32 {s(S_T)}, {s(S_T)}, {s(S_WV)}')
        p.e(f's_lshl_b32 {s(S_T)}, {s(S_T)}, {9 if o.seplines else 7}')
        p.e(f's_lshl_b32 {s(S_T2)}, {s(S_XQ)}, {7 if o.seplines else 2}')
        p.e(f's_add_u32 {s(S_T)}, {s(S_T)}, {s(S_T2)}')
        p.e(f's_add_u32 {s(S_T)}, {s(S_T)}, {FL_XF}')
        st.fixed(SVC, 58)
        p.e('s_waitcnt vmcnt(0)')
        st.fixed(SVC, 59)
        st.dyn(SVC)
        if o.lane1: p.e('s_mov_b64 exec, 1')
        p.e(f'buffer_store_dword {v(VTAG)}, {v(VZ)}, {s(SRD_FL, 4)}, {s(S_T)} offen sc1')
        if o.lane1: p.e('s_mov_b64 exec, -1')
    elif o.stamps:
        p.e('s_waitcnt vmcnt(0)')
        st.dyn(SVC)
    st.flush(SVC, 132)
    p.e('s_endpgm')
    c6 = p.pos()
    p.e('L_keeper:')
    Gk = [list(x) for x in Gl.g] + [[] for _ in range(8)]
    for q in range(16):
        Gk[80 + q + 4] += [f'ds_write_b128 {v(LN16c)}, {v(OUT + 4 * q, 4)} offset:{q * 1024}']
    for m in range(80, 108):
        if m < 100: p.e(m2(m, False))
        for x in Gk[m]:
            p.e(x)
    st.dyn(SVC); st.dyn(SVC, True)
    p.e(f's_mov_b32 {s(S_T)}, 4')
    reduce_setup(230, LN16c, 228, S_T)
    p.e('s_waitcnt lgkmcnt(0)')
    p.e('s_barrier')
    reduce_run(64, 160, 230, LN16c, 228, 'L_xspin_k')
    p.e(f's_or_b32 {s(S_T)}, {s(S_XQ)}, {s(S_HP)}')
    p.e(f's_cmp_eq_u32 {s(S_T)}, 0')
    p.e('s_cbranch_scc0 L_kdone')
    p.e(f'buffer_store_dword {v(VTAG)}, {v(VZ)}, {s(SRD_FL, 4)}, {s(S_EP)} offen sc1')
    p.e('L_kdone:')
    st.flush(SVC, 138)
    p.e('s_endpgm')
    p.e('L_codeend:')
    c7 = p.pos()
    pre = [(t0, t1), (c0, c1), (c1, c2), (c1, c2), (c1, c1b), (c2, c3), (c3, c4), (c3, c4), (c4, c5)]
    p.add_trace(pre + [(c5, c6)])
    p.add_trace(pre + [(c6, c7)])


def kd(name, vgpr=256, sgpr=100):
    acc = (vgpr + 3) // 4 * 4
    return f'''.p2align 6
.amdhsa_kernel {name}
  .amdhsa_next_free_vgpr {vgpr}
  .amdhsa_next_free_sgpr {sgpr}
  .amdhsa_accum_offset {acc}
  .amdhsa_group_segment_fixed_size 0
  .amdhsa_kernarg_size 104
  .amdhsa_user_sgpr_count 2
  .amdhsa_user_sgpr_kernarg_segment_ptr 1
  .amdhsa_system_sgpr_workgroup_id_x 1
.end_amdhsa_kernel
'''


def build(o):
    p = Prog()
    p.lg_hi, p.lg_lo = o.lg
    gen(p, o)
    txt = HEADER + '; @launch grid=(256,1,1) block=(512,1,1) lds=163840\n.amdgcn_target "amdgcn-amd-amdhsa--gfx950"\n.text\n'
    body = p.text()
    if o.dmapol:
        body = '\n'.join((l.replace(' lds', o.dmapol + ' lds') if (l.rstrip().endswith(' lds') and ' sc1' not in l and ' nt' not in l) else l) for l in body.split('\n'))
    txt += body
    txt += '.section .rodata,"a"\n' + kd(KN)
    return txt


if __name__ == '__main__':
    o = Opt()
    out = sys.argv[1]
    for a in sys.argv[2:]:
        k, val = a.split('=', 1)
        setattr(o, k, eval(val))
    open(out, 'w').write(build(o))
    from chk import check
    check(out)
```
